```python
import torch

def _softmax(x, axis=-1):
    return torch.softmax(x, dim=axis)
def _gelu(x):
    return torch.nn.functional.gelu(x, approximate="tanh")
def _silu(x):
    return torch.nn.functional.silu(x)
def _sigmoid(x):
    return torch.sigmoid(x)
def _layernorm(x, axis=-1, eps=1e-5):
    m = x.mean(dim=axis, keepdim=True)
    v = x.var(dim=axis, keepdim=True, unbiased=False)
    return (x - m) / torch.sqrt(v + eps)
def _scatter_add(tgt, idx, src, axis=0):
    return tgt.clone().index_add_(axis, idx, src)
def _segment_sum(src, seg, n):
    out = torch.zeros((n,) + src.shape[1:], dtype=src.dtype)
    return out.index_add_(0, seg, src)
def _pad(x, pw):
    flat = tuple(v for pair in reversed(pw) for v in pair)
    return torch.nn.functional.pad(x, flat)

kernel_name = 'standalone__paged_block_table_kv_pagedattention__sampling'

def setup_inputs():

    _w = (lambda a: (lambda t: t.to(torch.bfloat16) if t.is_floating_point() else t)(torch.as_tensor(a)))
    B, Hq, Hkv, Sq, Skv, D = 16, 32, 32, 32, 2048, 128
    bs = 16
    nbps = max(1, Skv // bs)
    num_phys = B * nbps + 4
    bt = torch.randperm(num_phys)[: B * nbps].reshape(B, nbps).to(torch.int64)
    cl = (nbps * bs - (torch.arange(1, B + 1, dtype=torch.int64) * 2654435761) % max(1, nbps * bs // 2)).to(torch.int64)
    return {
        "q": _w((lambda *s: torch.randn(*s, dtype=torch.bfloat16) * 0.8)(B, Hq, Sq, D)),
        "k_cache": _w((lambda *s: torch.randn(*s, dtype=torch.bfloat16) * 0.8)(num_phys, bs, Hkv, D)),
        "v_cache": _w((lambda *s: torch.randn(*s, dtype=torch.bfloat16) * 0.05)(num_phys, bs, Hkv, D)),
        "block_table": _w(bt),
        "context_lens": _w(cl),
    }

def reference(q, k_cache, v_cache, block_table, context_lens):
    B, Hq, Sq, D = q.shape
    bs = k_cache.shape[1]
    Hkv = k_cache.shape[2]
    nbps = block_table.shape[1]
    Skv = nbps * bs
    bt = block_table.reshape(-1)
    k = (lambda x, *d: x.permute(*d))(k_cache[bt].reshape(B, Skv, Hkv, D), 0, 2, 1, 3)
    v = (lambda x, *d: x.permute(*d))(v_cache[bt].reshape(B, Skv, Hkv, D), 0, 2, 1, 3)
    g = Hq // Hkv
    qg = q.reshape(B, Hkv, g, Sq, D)
    scores = torch.einsum("bhgqd,bhkd->bhgqk", qg, k) * (D ** -0.5)
    pos = torch.arange(Skv)
    msk = pos[None, :] < context_lens[:, None]
    scores = torch.where(msk[:, None, None, None, :], scores, -1e9)
    p = _softmax(scores, axis=-1)
    out = torch.einsum("bhgqk,bhkd->bhgqd", p, v)
    return out.reshape(B, Hq, Sq, D)
```

```python
import argparse
import struct

NAME = "standalone__paged_block_table_kv_pagedattention__sampling"
HEADER = """; Kernarg layout for this problem (64 bytes, ptrs only, base s[0:1]):
"""


def f2u(x):
    return struct.unpack("<I", struct.pack("<f", x))[0]


def gen(R=4, pol="nt", mapping=0, diag=False, compute=True, qpol="", opol="", pat=0):
    L = []
    e = L.append
    RING = 32768
    QB = 4 * RING
    MLB = QB + 16384
    LDS = MLB + 2048
    assert R <= 4
    CSC = f2u((128 ** -0.5) * 1.4426950408889634)
    NEG = f2u(-1e30)

    sQ, sK, sV, sBT = 4, 6, 8, 10
    sCL, sOUT = 12, 14
    sDBG, sWS = 16, 18
    KS, VS, QS, OS = 20, 24, 28, 32
    sKh, sVh = 36, 38
    sW, sP, sH = 40, 41, 42
    sB1, sB2, sE1, sE2, sT1, sT2 = 43, 44, 45, 46, 47, 48
    sC1, sC2, sC = 49, 50, 51
    sN1, sN, sKc = 52, 53, 54
    sSlot, sRingEnd, sRing0 = 55, 56, 57
    sT0, sTa, sTb, sTc, sTd, sTe = 58, 59, 60, 61, 62, 63
    sM0, sM1 = 64, 66
    sTS = 70
    sQo1, sQo2 = 86, 87

    vL = 1
    vKo = [2, 3, 4, 5]
    vVo = [6, 7, 8, 9]
    vKrd, vVrd = 10, 11
    vPg, vNr = 12, 13
    vA = list(range(14, 22))
    vM, vLs, vM1, vL1 = 22, 23, 24, 25
    vAl = 26
    vT0, vT1, vT2, vT3 = 28, 29, 30, 31
    vHH4 = 27
    vS = 32
    vP_ = 48
    vX = 56
    vQ = 64
    vF = 96
    vO = 128
    NV = 192

    def ts(i):
        if diag:
            e(f"    s_memrealtime s[{sTS+2*i}:{sTS+2*i+1}]")

    e(HEADER.rstrip())
    e(f"; @launch grid=(256,1,1) block=(256,1,1) lds={LDS}")
    e('.amdgcn_target "amdgcn-amd-amdhsa--gfx950"')
    e(".text")
    e(f".globl {NAME}_kernel")
    e(".p2align 8")
    e(f".type {NAME}_kernel,@function")
    e(f"{NAME}_kernel:")
    e("    s_cmp_ge_u32 s2, 256")
    e("    s_cbranch_scc1 L_done")
    ts(0)
    e(f"    s_load_dwordx8 s[4:11], s[0:1], 0")
    e(f"    s_load_dwordx4 s[12:15], s[0:1], 32")
    if diag:
        e(f"    s_load_dwordx4 s[16:19], s[0:1], 48")
    e(f"    v_lshrrev_b32 v{vT0}, 6, v0")
    e(f"    v_and_b32 v{vL}, 63, v0")
    e(f"    v_readfirstlane_b32 s{sW}, v{vT0}")
    if mapping == 0:
        e(f"    s_and_b32 s{sP}, s2, 7")
        e(f"    s_lshr_b32 s{sH}, s2, 3")
    else:
        e(f"    s_lshr_b32 s{sP}, s2, 5")
        e(f"    s_and_b32 s{sH}, s2, 31")
    e(f"    v_and_b32 v{vX+0}, 60, v{vL}")
    e(f"    v_and_b32 v{vX+1}, 3, v{vL}")
    e(f"    v_lshlrev_b32 v{vX+2}, 4, v{vX+1}")
    e(f"    v_lshlrev_b32 v{vX+3}, 7, v{vL}")
    e("    s_waitcnt lgkmcnt(0)")
    ts(1)
    e(f"    global_load_dword v{vS}, v{vX+0}, s[{sCL}:{sCL+1}]")
    e(f"    global_load_dwordx4 v[{vS+4}:{vS+7}], v{vX+2}, s[{sCL}:{sCL+1}]")
    e(f"    global_load_dword v{vS+8}, v{vX+3}, s[{sBT}:{sBT+1}]")
    e(f"    v_lshrrev_b32 v{vT0}, 4, v{vL}")
    e(f"    v_and_b32 v{vT1}, 15, v{vL}")
    e(f"    v_lshlrev_b32 v{vT2}, 2, v{vT0}")
    e(f"    v_xor_b32 v{vT1}, v{vT1}, v{vT2}")
    e(f"    v_lshlrev_b32 v{vT1}, 4, v{vT1}")
    e(f"    v_lshl_add_u32 v{vVo[0]}, v{vT0}, 13, v{vT1}")
    for i in range(1, 4):
        e(f"    v_add_u32 v{vVo[i]}, {i*(32768-1024)}, v{vVo[0]}")
    e(f"    v_mov_b32 v{vKo[0]}, v{vVo[0]}")
    for i in range(1, 4):
        e(f"    v_xor_b32 v{vKo[i]}, {i*16}, v{vVo[i]}")
    if pat == 1:
        e(f"    s_and_b32 s{sT0}, s{sH}, 3")
        e(f"    s_lshl_b32 s{sT0}, s{sT0}, 15")
        e(f"    v_lshlrev_b32 v{vVo[0]}, 4, v{vL}")
        e(f"    v_add_u32 v{vVo[0]}, s{sT0}, v{vVo[0]}")
        for i in range(1, 4):
            e(f"    v_add_u32 v{vVo[i]}, {i*(8192-1024)}, v{vVo[0]}")
        for i in range(4):
            e(f"    v_mov_b32 v{vKo[i]}, v{vVo[i]}")
        e(f"    s_and_b32 s{sH}, s{sH}, 28")
    if pat == 2:
        e(f"    s_and_b32 s{sT0}, s{sH}, 1")
        e(f"    s_lshl_b32 s{sT0}, s{sT0}, 16")
        e(f"    v_and_b32 v{vT2}, 31, v{vL}")
        e(f"    v_lshlrev_b32 v{vVo[0]}, 4, v{vT2}")
        e(f"    v_lshrrev_b32 v{vT2}, 5, v{vL}")
        e(f"    v_lshl_add_u32 v{vVo[0]}, v{vT2}, 13, v{vVo[0]}")
        e(f"    v_add_u32 v{vVo[0]}, s{sT0}, v{vVo[0]}")
        for i in range(1, 4):
            e(f"    v_add_u32 v{vVo[i]}, {i*(16384-1024)}, v{vVo[0]}")
        for i in range(4):
            e(f"    v_mov_b32 v{vKo[i]}, v{vVo[i]}")
        e(f"    s_and_b32 s{sH}, s{sH}, 30")
    if pat == 3:
        e(f"    s_lshl_b32 s{sT0}, s{sH}, 12")
        e(f"    v_lshlrev_b32 v{vVo[0]}, 4, v{vL}")
        e(f"    v_add_u32 v{vVo[0]}, s{sT0}, v{vVo[0]}")
        for i in range(1, 4):
            e(f"    v_mov_b32 v{vVo[i]}, v{vVo[0]}")
        for i in range(4):
            e(f"    v_mov_b32 v{vKo[i]}, v{vVo[i]}")
        e(f"    s_mov_b32 s{sH}, 0")
    e(f"    s_lshl_b32 s{sT0}, s{sW}, 11")
    e(f"    s_and_b32 s{sTa}, s{sW}, 1")
    e(f"    s_lshl_b32 s{sTa}, s{sTa}, 5")
    e(f"    v_lshl_add_u32 v{vX+4}, v{vT0}, 8, v{vT1}")
    e(f"    v_xor_b32 v{vX+4}, s{sTa}, v{vX+4}")
    e(f"    v_add_u32 v{vX+4}, s{sT0}, v{vX+4}")
    e(f"    v_xor_b32 v{vX+5}, 16, v{vX+4}")
    e(f"    v_and_b32 v{vT0}, 31, v{vL}")
    e(f"    v_lshrrev_b32 v{vT3}, 5, v{vL}")
    e(f"    v_and_b32 v{vT1}, 3, v{vL}")
    e(f"    v_bfe_u32 v{vT2}, v{vL}, 2, 2")
    e(f"    v_lshl_or_b32 v{vT1}, v{vT1}, 2, v{vT2}")
    e(f"    v_xor_b32 v{vT1}, v{vT1}, v{vT3}")
    e(f"    v_lshlrev_b32 v{vT1}, 4, v{vT1}")
    e(f"    v_lshl_add_u32 v{vKrd}, v{vT0}, 8, v{vT1}")
    e(f"    v_lshlrev_b32 v{vHH4}, 2, v{vT3}")
    e(f"    v_add_u32 v{vT0}, v{vHH4}, v{vT2}")
    e(f"    v_lshlrev_b32 v{vT0}, 8, v{vT0}")
    e(f"    v_lshl_or_b32 v{vT0}, v{vT2}, 6, v{vT0}")
    e(f"    v_bfe_u32 v{vT1}, v{vL}, 4, 1")
    e(f"    v_lshl_or_b32 v{vT0}, v{vT1}, 5, v{vT0}")
    e(f"    v_lshl_or_b32 v{vVrd}, v{vX+1}, 3, v{vT0}")
    e(f"    s_lshl_b32 s{sT0}, s{sH}, 8")
    e(f"    s_add_u32 s{sKh}, s{sK}, s{sT0}")
    e(f"    s_addc_u32 s{sKh+1}, s{sK+1}, 0")
    e(f"    s_add_u32 s{sVh}, s{sV}, s{sT0}")
    e(f"    s_addc_u32 s{sVh+1}, s{sV+1}, 0")
    e(f"    s_mov_b32 s{KS+3}, 0x20000")
    e(f"    s_mov_b32 s{VS+3}, 0x20000")
    e(f"    s_mov_b32 s{QS}, s{sQ}")
    e(f"    s_mov_b32 s{QS+1}, s{sQ+1}")
    e(f"    s_mov_b32 s{QS+2}, 0x400000")
    e(f"    s_mov_b32 s{QS+3}, 0x20000")
    e(f"    s_mov_b32 s{OS}, s{sOUT}")
    e(f"    s_mov_b32 s{OS+1}, s{sOUT+1}")
    e(f"    s_mov_b32 s{OS+2}, 0x400000")
    e(f"    s_mov_b32 s{OS+3}, 0x20000")
    e(f"    s_lshl_b32 s{sRing0}, s{sW}, 15")
    e(f"    s_add_u32 s{sRingEnd}, s{sRing0}, {R*8192}")
    e(f"    s_mov_b32 s{sSlot}, s{sRing0}")
    e(f"    s_sub_u32 s{sTe}, 15, s{sP}")
    e(f"    v_lshrrev_b32 v{vX+6}, 2, v{vL}")
    e(f"    v_lshlrev_b32 v{vX+7}, 2, v{vX+1}")
    e("    s_waitcnt vmcnt(1)")
    ts(2)
    e(f"    s_movk_i32 s{sT0}, 2047")
    e(f"    v_add_u32 v{vS+1}, -1, v{vS}")
    for j in range(4):
        e(f"    v_add_u32 v{vS+4+j}, -1, v{vS+4+j}")
    e(f"    v_min_u32 v{vS+1}, s{sT0}, v{vS+1}")
    for j in range(4):
        e(f"    v_min_u32 v{vS+4+j}, s{sT0}, v{vS+4+j}")
    e(f"    v_lshl_or_b32 v{vS+1}, v{vS+1}, 4, v{vX+6}")
    for j in range(4):
        e(f"    v_lshl_add_u32 v{vS+4+j}, v{vS+4+j}, 4, v{vX+7}")
    for j in range(1, 4):
        e(f"    v_add_u32 v{vS+4+j}, {j}, v{vS+4+j}")
    for j in range(4):
        e(f"    v_sub_u32 v{vS+4+j}, v{vS+1}, v{vS+4+j}")
    for j in range(4):
        e(f"    v_lshrrev_b32 v{vS+4+j}, 31, v{vS+4+j}")
    e(f"    v_add_u32 v{vS+4}, v{vS+4}, v{vS+5}")
    e(f"    v_add3_u32 v{vS+4}, v{vS+4}, v{vS+6}, v{vS+7}")
    e("    s_nop 1")
    e(f"    v_add_u32_dpp v{vS+5}, v{vS+4}, v{vS+4} quad_perm:[1,0,3,2] row_mask:0xf bank_mask:0xf")
    e("    s_nop 1")
    e(f"    v_add_u32_dpp v{vS+4}, v{vS+5}, v{vS+5} quad_perm:[2,3,0,1] row_mask:0xf bank_mask:0xf")
    e(f"    v_cmp_eq_u32 s[{sM0}:{sM0+1}], s{sP}, v{vS+4}")
    e(f"    v_cmp_eq_u32 s[{sM1}:{sM1+1}], s{sTe}, v{vS+4}")
    e(f"    s_ff1_i32_b64 s{sTa}, s[{sM0}:{sM0+1}]")
    e(f"    s_ff1_i32_b64 s{sTb}, s[{sM1}:{sM1+1}]")
    e(f"    v_readlane_b32 s{sE1}, v{vS+1}, s{sTa}")
    e(f"    v_readlane_b32 s{sE2}, v{vS+1}, s{sTb}")
    e(f"    v_readlane_b32 s{sTc}, v{vS}, s{sTa}")
    e(f"    v_readlane_b32 s{sTd}, v{vS}, s{sTb}")
    e(f"    s_and_b32 s{sB1}, s{sE1}, 15")
    e(f"    s_and_b32 s{sB2}, s{sE2}, 15")
    e(f"    s_lshr_b32 s{sE1}, s{sE1}, 4")
    e(f"    s_lshr_b32 s{sE2}, s{sE2}, 4")
    e(f"    s_lshr_b32 s{sT1}, s{sE1}, 5")
    e(f"    s_lshr_b32 s{sT2}, s{sE2}, 5")
    e(f"    s_add_u32 s{sT1}, s{sT1}, 1")
    e(f"    s_add_u32 s{sT2}, s{sT2}, 1")
    e(f"    s_add_u32 s{sE1}, s{sE1}, 1")
    e(f"    s_add_u32 s{sE2}, s{sE2}, 1")
    e(f"    v_and_b32 v{vT0}, 62, v{vL}")
    e(f"    v_and_b32 v{vT1}, 1, v{vL}")
    e(f"    s_lshl_b32 s{sT0}, s{sW}, 1")
    e(f"    v_lshl_add_u32 v{vT0}, v{vT0}, 2, v{vT1}")
    e(f"    v_add_u32 v{vT0}, s{sT0}, v{vT0}")
    e(f"    s_lshl_b32 s{sTa}, s{sT1}, 1")
    e(f"    v_cmp_gt_u32 vcc, s{sTa}, v{vT0}")
    e(f"    s_lshl_b32 s{sTb}, s{sB1}, 7")
    e(f"    s_lshl_b32 s{sTe}, s{sB2}, 7")
    e(f"    s_sub_u32 s{sTe}, s{sTe}, s{sTa}")
    e(f"    v_mov_b32 v{vT1}, s{sTe}")
    e(f"    v_mov_b32 v{vT2}, s{sTb}")
    e(f"    v_cndmask_b32 v{vT1}, v{vT1}, v{vT2}, vcc")
    e(f"    v_add_u32 v{vT1}, v{vT1}, v{vT0}")
    e(f"    v_min_u32 v{vT1}, 0x7ff, v{vT1}")
    e(f"    v_lshlrev_b32 v{vT1}, 2, v{vT1}")
    e(f"    global_load_dword v{vPg}, v{vT1}, s[{sBT}:{sBT+1}]")
    e(f"    s_lshl_b32 s{sQo1}, s{sB1}, 5")
    e(f"    s_add_u32 s{sQo1}, s{sQo1}, s{sH}")
    e(f"    s_lshl_b32 s{sQo1}, s{sQo1}, 13")
    e(f"    s_lshl_b32 s{sQo2}, s{sB2}, 5")
    e(f"    s_add_u32 s{sQo2}, s{sQo2}, s{sH}")
    e(f"    s_lshl_b32 s{sQo2}, s{sQo2}, 13")
    e(f"    s_lshl_b32 s{sT0}, s{sW}, 11")
    e(f"    s_add_u32 m0, s{sT0}, {QB}")
    e(f"    s_lshl_b32 s{sTb}, s{sT1}, 5")
    e(f"    buffer_load_dwordx4 v{vX+4}, s[{QS}:{QS+3}], s{sQo1} offen {qpol} lds")
    e(f"    buffer_load_dwordx4 v{vX+5}, s[{QS}:{QS+3}], s{sQo1} offen offset:1024 {qpol} lds")
    e(f"    s_add_u32 m0, s{sT0}, {QB+8192}")
    e(f"    s_add_u32 s{sTb}, s{sTb}, s{sE2}")
    e(f"    buffer_load_dwordx4 v{vX+4}, s[{QS}:{QS+3}], s{sQo2} offen {qpol} lds")
    e(f"    buffer_load_dwordx4 v{vX+5}, s[{QS}:{QS+3}], s{sQo2} offen offset:1024 {qpol} lds")
    e(f"    v_mov_b32 v{vT1}, s{sTb}")
    e(f"    v_mov_b32 v{vT2}, s{sE1}")
    e(f"    v_cndmask_b32 v{vT1}, v{vT1}, v{vT2}, vcc")
    e(f"    v_lshlrev_b32 v{vT0}, 4, v{vT0}")
    e(f"    v_sub_u32 v{vT1}, v{vT1}, v{vT0}")
    e(f"    v_med3_i32 v{vT1}, v{vT1}, 0, 16")
    e(f"    v_lshlrev_b32 v{vNr}, 13, v{vT1}")
    e(f"    s_cmp_gt_i32 s{sTc}, 0")
    e(f"    s_cselect_b32 s{sC1}, {CSC:#x}, 0")
    e(f"    s_cmp_gt_i32 s{sTd}, 0")
    e(f"    s_cselect_b32 s{sC2}, {CSC:#x}, 0")
    e(f"    s_mov_b32 s{sC}, s{sC1}")
    e(f"    s_sub_u32 s{sT0}, 3, s{sW}")
    e(f"    s_add_u32 s{sN1}, s{sT1}, s{sT0}")
    e(f"    s_add_u32 s{sN}, s{sN1}, s{sT2}")
    e(f"    s_lshr_b32 s{sN1}, s{sN1}, 2")
    e(f"    s_lshr_b32 s{sN}, s{sN}, 2")
    e("    s_waitcnt vmcnt(4)")
    ts(3)
    e(f"    v_min_u32 v{vPg}, 0x803, v{vPg}")
    e(f"    v_lshlrev_b32 v{vPg}, 17, v{vPg}")

    def prep_dma(kreg_expr_setup):
        pass

    def dma_setup(tile_imm=None, tile_add=None):
        out = []
        if tile_imm is not None:
            out.append(f"    v_readlane_b32 s{sTa}, v{vPg}, {2*tile_imm}")
            out.append(f"    v_readlane_b32 s{sTb}, v{vNr}, {2*tile_imm}")
            out.append(f"    v_readlane_b32 s{sTc}, v{vPg}, {2*tile_imm+1}")
            out.append(f"    v_readlane_b32 s{sTd}, v{vNr}, {2*tile_imm+1}")
        else:
            out.append(f"    s_add_u32 s{sT0}, s{sKc}, {tile_add}")
            out.append(f"    s_lshl_b32 s{sTe}, s{sT0}, 1")
            out.append(f"    s_and_b32 s{sTe}, s{sTe}, 62")
            out.append(f"    v_readlane_b32 s{sTa}, v{vPg}, s{sTe}")
            out.append(f"    v_readlane_b32 s{sTb}, v{vNr}, s{sTe}")
            out.append(f"    s_add_u32 s{sTe}, s{sTe}, 1")
            out.append(f"    v_readlane_b32 s{sTc}, v{vPg}, s{sTe}")
            out.append(f"    v_readlane_b32 s{sTd}, v{vNr}, s{sTe}")
            out.append(f"    s_cmp_lt_u32 s{sT0}, s{sN}")
            out.append(f"    s_cselect_b32 s{sTb}, s{sTb}, 0")
            out.append(f"    s_cselect_b32 s{sTd}, s{sTd}, 0")
        return out

    def dma_groups(isK):
        S = KS if isK else VS
        base = sKh if isK else sVh
        vo = vKo if isK else vVo
        groups = []
        for pg in range(2):
            so, sn = (sTa, sTb) if pg == 0 else (sTc, sTd)
            for i in range(4):
                g = []
                if i == 0:
                    g.append(f"    s_add_u32 s{S}, s{base}, s{so}")
                    g.append(f"    s_addc_u32 s{S+1}, s{base+1}, 0")
                    if pg == 0:
                        g.append(f"    s_mov_b32 m0, s{sSlot}")
                    else:
                        g.append(f"    s_add_u32 m0, s{sSlot}, 4096")
                    g.append(f"    s_mov_b32 s{S+2}, s{sn}")
                off = f" offset:{i*1024}" if i else ""
                g.append(f"    buffer_load_dwordx4 v{vo[i]}, s[{S}:{S+3}], 0 offen{off} {pol} lds")
                groups.append(g)
        return groups

    def adv_slot():
        return [
            f"    s_add_u32 s{sSlot}, s{sSlot}, 8192",
            f"    s_cmp_eq_u32 s{sSlot}, s{sRingEnd}",
            f"    s_cselect_b32 s{sSlot}, s{sRing0}, s{sSlot}",
        ]

    e("    s_nop 0")
    for pos in range(R):
        if pos % 2 == 0:
            L.extend(dma_setup(tile_imm=pos // 2))
        for g in dma_groups(pos % 2 == 0):
            L.extend(g)
        L.extend(adv_slot())
    ts(4)
    for i in range(64):
        e(f"    v_mov_b32 v{vO+i}, 0")
    e(f"    v_mov_b32 v{vM}, {NEG:#x}")
    e(f"    v_mov_b32 v{vLs}, 0")
    e(f"    s_mov_b32 s{sKc}, 0")

    def read_q(item):
        out = [f"    v_add_u32 v{vA[0]}, {QB + item*8192}, v{vKrd}"]
        for j in range(1, 8):
            out.append(f"    v_xor_b32 v{vA[j]}, {j<<5}, v{vA[0]}")
        for j in range(8):
            out.append(f"    ds_read_b128 v[{vQ+4*j}:{vQ+4*j+3}], v{vA[j]}")
        return out

    e(f"    s_waitcnt vmcnt({8*R})")
    e("    s_barrier")
    L.extend(read_q(0))

    kadd_afterK = R // 2
    afterK_isK = (R % 2 == 0)
    kadd_afterV = (R + 1) // 2
    afterV_isK = (R % 2 == 1)

    e("    .p2align 6")
    e("L_loop:")
    e(f"    s_cmp_eq_u32 s{sKc}, s{sN1}")
    e("    s_cbranch_scc1 L_switch")
    e("L_loop_chk:")
    e(f"    s_cmp_ge_u32 s{sKc}, s{sN}")
    e("    s_cbranch_scc1 L_epi")
    e(f"    v_add_u32 v{vA[0]}, s{sSlot}, v{vKrd}")
    for j in range(1, 8):
        e(f"    v_xor_b32 v{vA[j]}, {j<<5}, v{vA[0]}")
    L.extend(dma_setup(tile_add=kadd_afterK))
    e(f"    s_waitcnt vmcnt({8*(R-1)})")
    if diag:
        e(f"    s_cmp_lg_u32 s{sKc}, 0")
        e("    s_cbranch_scc1 L_nots5")
        ts(5)
        e("L_nots5:")
    for j in range(8):
        e(f"    ds_read_b128 v[{vF+4*j}:{vF+4*j+3}], v{vA[j]}")
    e("    s_waitcnt lgkmcnt(0)")
    groups = dma_groups(afterK_isK)
    for j in range(8):
        if compute:
            c = "0" if j == 0 else f"v[{vS}:{vS+15}]"
            e(f"    v_mfma_f32_32x32x16_bf16 v[{vS}:{vS+15}], v[{vF+4*j}:{vF+4*j+3}], v[{vQ+4*j}:{vQ+4*j+3}], {c}")
        L.extend(groups[j])
    L.extend(adv_slot())
    e(f"    v_add_u32 v{vA[0]}, s{sSlot}, v{vVrd}")
    for n in range(1, 4):
        e(f"    v_xor_b32 v{vA[n]}, {n<<6}, v{vA[0]}")
    e(f"    s_lshl_b32 s{sTe}, s{sKc}, 1")
    e(f"    v_readlane_b32 s{sM0}, v{vNr}, s{sTe}")
    e(f"    s_add_u32 s{sTe}, s{sTe}, 1")
    e(f"    v_readlane_b32 s{sM0+1}, v{vNr}, s{sTe}")
    L.extend(dma_setup(tile_add=kadd_afterV))
    if compute:
        e(f"    s_add_u32 s{sM0}, s{sM0}, s{sM0+1}")
        e(f"    s_cmp_lg_u32 s{sM0}, {32*8192}")
        e("    s_cbranch_scc1 L_mask")
        e("L_nomask:")
        e(f"    v_max3_f32 v{vT0}, v{vS}, v{vS+1}, v{vS+2}")
        e(f"    v_max3_f32 v{vT1}, v{vS+3}, v{vS+4}, v{vS+5}")
        e(f"    v_max3_f32 v{vT2}, v{vS+6}, v{vS+7}, v{vS+8}")
        e(f"    v_max3_f32 v{vT3}, v{vS+9}, v{vS+10}, v{vS+11}")
        e(f"    v_max3_f32 v{vT0}, v{vT0}, v{vS+12}, v{vS+13}")
        e(f"    v_max3_f32 v{vT1}, v{vT1}, v{vS+14}, v{vS+15}")
        e(f"    v_max3_f32 v{vT2}, v{vT2}, v{vT3}, v{vM}")
        e(f"    v_max3_f32 v{vT0}, v{vT0}, v{vT1}, v{vT2}")
        e(f"    v_mov_b32 v{vT1}, v{vT0}")
        e("    s_nop 1")
        e(f"    v_permlane32_swap_b32 v{vT0}, v{vT1}")
        e(f"    v_max_f32 v{vT0}, v{vT0}, v{vT1}")
        e(f"    v_sub_f32 v{vT1}, v{vM}, v{vT0}")
        e(f"    v_mul_f32 v{vT2}, s{sC}, v{vT0}")
        e(f"    v_mul_f32 v{vT1}, s{sC}, v{vT1}")
        e(f"    v_mov_b32 v{vM}, v{vT0}")
        e(f"    v_exp_f32 v{vAl}, v{vT1}")
        for i in range(16):
            e(f"    v_fma_f32 v{vS+i}, v{vS+i}, s{sC}, -v{vT2}")
        for i in range(16):
            e(f"    v_exp_f32 v{vS+i}, v{vS+i}")
        for i in range(32):
            e(f"    v_pk_mul_f32 v[{vO+2*i}:{vO+2*i+1}], v[{vO+2*i}:{vO+2*i+1}], v[{vAl}:{vAl+1}] op_sel_hi:[1,0]")
        for i in range(8):
            e(f"    v_cvt_pk_bf16_f32 v{vP_+i}, v{vS+2*i}, v{vS+2*i+1}")
        for i in range(4):
            e(f"    v_pk_add_f32 v[{vS+2*i}:{vS+2*i+1}], v[{vS+2*i}:{vS+2*i+1}], v[{vS+8+2*i}:{vS+8+2*i+1}]")
        for i in range(2):
            e(f"    v_pk_add_f32 v[{vS+2*i}:{vS+2*i+1}], v[{vS+2*i}:{vS+2*i+1}], v[{vS+4+2*i}:{vS+4+2*i+1}]")
        e(f"    v_pk_add_f32 v[{vS}:{vS+1}], v[{vS}:{vS+1}], v[{vS+2}:{vS+3}]")
        e(f"    v_fma_f32 v{vLs}, v{vLs}, v{vAl}, v{vS}")
        e(f"    v_add_f32 v{vLs}, v{vLs}, v{vS+1}")
    e(f"    s_waitcnt vmcnt({8*(R-1)})")
    for n in range(4):
        for m in range(2):
            for jj in range(2):
                r = vF + 8 * n + 4 * m + 2 * jj
                e(f"    ds_read_b64_tr_b16 v[{r}:{r+1}], v{vA[n]} offset:{m*4096+jj*2048}")
    e("    s_waitcnt lgkmcnt(0)")
    groups = dma_groups(afterV_isK)
    idx = 0
    for m in range(2):
        for n in range(4):
            if compute:
                a = vF + 8 * n + 4 * m
                e(f"    v_mfma_f32_32x32x16_bf16 v[{vO+16*n}:{vO+16*n+15}], v[{a}:{a+3}], v[{vP_+4*m}:{vP_+4*m+3}], v[{vO+16*n}:{vO+16*n+15}]")
            L.extend(groups[idx])
            idx += 1
    L.extend(adv_slot())
    e(f"    s_add_u32 s{sKc}, s{sKc}, 1")
    e("    s_branch L_loop")

    if compute:
        e("L_mask:")
        e(f"    s_lshr_b32 s{sM0}, s{sM0}, 13")
        e(f"    v_sub_u32 v{vT0}, s{sM0}, v{vHH4}")
        e(f"    v_mov_b32 v{vT1}, {NEG:#x}")
        for v in range(16):
            t = 8 * (v >> 2) + (v & 3)
            e(f"    v_cmp_lt_i32 vcc, {t}, v{vT0}")
            e("    s_nop 1")
            e(f"    v_cndmask_b32 v{vS+v}, v{vT1}, v{vS+v}, vcc")
        e("    s_branch L_nomask")

    e("L_switch:")
    e("    s_nop 7")
    e("    s_nop 7")
    L.extend(read_q(1))
    for i in range(64):
        e(f"    v_accvgpr_write_b32 a{i}, v{vO+i}")
    for i in range(64):
        e(f"    v_mov_b32 v{vO+i}, 0")
    e(f"    v_mov_b32 v{vM1}, v{vM}")
    e(f"    v_mov_b32 v{vL1}, v{vLs}")
    e(f"    v_mov_b32 v{vM}, {NEG:#x}")
    e(f"    v_mov_b32 v{vLs}, 0")
    e(f"    s_mov_b32 s{sC}, s{sC2}")
    e(f"    s_mov_b32 s{sN1}, -1")
    e("    s_branch L_loop_chk")

    e("L_epi:")
    ts(6)
    e(f"    v_mov_b32 v{vT0}, v{vL1}")
    e(f"    v_mov_b32 v{vT1}, v{vLs}")
    e(f"    v_and_b32 v{vT2}, 31, v{vL}")
    e(f"    v_lshrrev_b32 v{vT3}, 5, v{vL}")
    e(f"    v_permlane32_swap_b32 v{vT0}, v{vL1}")
    e(f"    v_permlane32_swap_b32 v{vT1}, v{vLs}")
    e(f"    v_add_f32 v{vL1}, v{vL1}, v{vT0}")
    e(f"    v_add_f32 v{vLs}, v{vLs}, v{vT1}")
    e(f"    v_and_b32 v{vT0}, 7, v{vL}")
    e(f"    v_xor_b32 v{vT0}, v{vT0}, v{vT3}")
    e(f"    v_lshlrev_b32 v{vT0}, 4, v{vT0}")
    e(f"    v_lshl_add_u32 v{vT0}, v{vT2}, 9, v{vT0}")
    e(f"    v_add_u32 v{vA[0]}, s{sRing0}, v{vT0}")
    for i in range(1, 4):
        e(f"    v_xor_b32 v{vA[i]}, {i<<5}, v{vA[0]}")
    e(f"    s_lshl_b32 s{sT0}, s{sW}, 3")
    e(f"    s_add_u32 s{sT0}, s{sT0}, {MLB}")
    e(f"    v_lshlrev_b32 v{vT2}, 5, v{vT2}")
    e(f"    v_add_u32 v{vA[4]}, s{sT0}, v{vT2}")
    e("    s_waitcnt vmcnt(0)")
    e(f"    ds_write_b64 v{vA[4]}, v[{vM1}:{vL1}]")
    e(f"    ds_write_b64 v{vA[4]}, v[{vM}:{vLs}] offset:1024")
    for n in range(4):
        for i in range(4):
            r = 16 * n + 4 * i
            e(f"    ds_write_b128 v{vA[i]}, a[{r}:{r+3}] offset:{n*128}")
    for n in range(4):
        for i in range(4):
            r = vO + 16 * n + 4 * i
            e(f"    ds_write_b128 v{vA[i]}, v[{r}:{r+3}] offset:{16384+n*128}")
    e(f"    v_lshrrev_b32 v{vT0}, 3, v{vL}")
    e(f"    v_and_b32 v{vT1}, 7, v{vL}")
    e(f"    s_lshl_b32 s{sT0}, s{sW}, 3")
    e(f"    v_add_u32 v{vT2}, s{sT0}, v{vT0}")
    e(f"    v_lshlrev_b32 v{vT3}, 1, v{vT1}")
    e(f"    v_xor_b32 v{vT3}, v{vT3}, v{vT0}")
    e(f"    v_lshlrev_b32 v{vT3}, 4, v{vT3}")
    e(f"    v_lshl_add_u32 v{vA[0]}, v{vT2}, 9, v{vT3}")
    e(f"    v_xor_b32 v{vA[1]}, 16, v{vA[0]}")
    e(f"    v_add_u32 v{vA[2]}, 0x10000, v{vA[0]}")
    e(f"    v_add_u32 v{vA[3]}, 0x10000, v{vA[1]}")
    e(f"    v_lshlrev_b32 v{vT3}, 5, v{vT2}")
    e(f"    v_add_u32 v{vA[4]}, {MLB}, v{vT3}")
    e(f"    v_lshlrev_b32 v{vT1}, 4, v{vT1}")
    e(f"    v_lshl_add_u32 v{vA[5]}, v{vT2}, 8, v{vT1}")
    e("    s_waitcnt lgkmcnt(0)")
    e("    s_barrier")
    for item in range(2):
        ml = vS + 8 * item
        e(f"    ds_read_b128 v[{ml}:{ml+3}], v{vA[4]} offset:{item*1024}")
        e(f"    ds_read_b128 v[{ml+4}:{ml+7}], v{vA[4]} offset:{item*1024+16}")
    dst = [vQ, vO]
    for item in range(2):
        for w in range(4):
            for e1 in range(2):
                for e0 in range(2):
                    r = dst[item] + 16 * w + 8 * e1 + 4 * e0
                    a = vA[e0 + 2 * (w >> 1)]
                    off = (w & 1) * 32768 + item * 16384 + e1 * 256
                    e(f"    ds_read_b128 v[{r}:{r+3}], v{a} offset:{off}")
        if item == 0:
            e("    s_waitcnt lgkmcnt(15)")
        if item == 0:
            for it in range(2):
                ml = vS + 8 * it
                sc = sC1 if it == 0 else sC2
                e(f"    v_max3_f32 v{vT0}, v{ml}, v{ml+2}, v{ml+4}")
                e(f"    v_max_f32 v{vT0}, v{vT0}, v{ml+6}")
                for w in range(4):
                    e(f"    v_sub_f32 v{ml+2*w}, v{ml+2*w}, v{vT0}")
                for w in range(4):
                    e(f"    v_mul_f32 v{ml+2*w}, s{sc}, v{ml+2*w}")
                for w in range(4):
                    e(f"    v_exp_f32 v{ml+2*w}, v{ml+2*w}")
                e("    s_nop 0")
                e(f"    v_mul_f32 v{vT0}, v{ml}, v{ml+1}")
                for w in range(1, 4):
                    e(f"    v_fma_f32 v{vT0}, v{ml+2*w}, v{ml+2*w+1}, v{vT0}")
                e(f"    v_rcp_f32 v{vT0}, v{vT0}")
                e("    s_nop 0")
                for w in range(4):
                    e(f"    v_mul_f32 v{ml+2*w}, v{ml+2*w}, v{vT0}")
    for item in range(2):
        ml = vS + 8 * item
        d = dst[item]
        e(f"    s_waitcnt lgkmcnt({15 if item == 0 else 0})")
        if item == 0:
            pass
        for i in range(8):
            e(f"    v_pk_mul_f32 v[{d+2*i}:{d+2*i+1}], v[{d+2*i}:{d+2*i+1}], v[{ml}:{ml+1}] op_sel_hi:[1,0]")
        for w in range(1, 4):
            for i in range(8):
                s = d + 16 * w + 2 * i
                e(f"    v_pk_fma_f32 v[{d+2*i}:{d+2*i+1}], v[{s}:{s+1}], v[{ml+2*w}:{ml+2*w+1}], v[{d+2*i}:{d+2*i+1}] op_sel_hi:[1,0,1]")
        o = vP_ if item == 0 else vX
        for i in range(8):
            e(f"    v_cvt_pk_bf16_f32 v{o+i}, v{d+2*i}, v{d+2*i+1}")
        so = sQo1 if item == 0 else sQo2
        e(f"    buffer_store_dwordx4 v[{o}:{o+3}], v{vA[5]}, s[{OS}:{OS+3}], s{so} offen {opol}")
        e(f"    buffer_store_dwordx4 v[{o+4}:{o+7}], v{vA[5]}, s[{OS}:{OS+3}], s{so} offen offset:128 {opol}")
    if diag:
        e("    s_waitcnt vmcnt(0)")
        ts(7)
        e("    s_getreg_b32 s88, hwreg(HW_REG_XCC_ID)")
        e("    s_getreg_b32 s89, hwreg(HW_REG_HW_ID)")
        e("    s_waitcnt lgkmcnt(0)")
        e(f"    s_lshl_b32 s{sT0}, s2, 2")
        e(f"    s_add_u32 s{sT0}, s{sT0}, s{sW}")
        e(f"    s_lshl_b32 s{sT0}, s{sT0}, 7")
        e(f"    v_mov_b32 v{vT0}, s{sT0}")
        for i in range(4):
            for j in range(4):
                e(f"    v_mov_b32 v{vS+j}, s{sTS+4*i+j}")
            e(f"    global_store_dwordx4 v{vT0}, v[{vS}:{vS+3}], s[{sWS}:{sWS+1}] offset:{16*i}")
            e("    s_nop 1")
        e(f"    v_mov_b32 v{vS}, s88")
        e(f"    v_mov_b32 v{vS+1}, s89")
        e(f"    v_mov_b32 v{vS+2}, s{sN}")
        e(f"    v_mov_b32 v{vS+3}, s{sB1}")
        e(f"    global_store_dwordx4 v{vT0}, v[{vS}:{vS+3}], s[{sWS}:{sWS+1}] offset:64")
    e("L_done:")
    e("    s_endpgm")
    e('.section .rodata,"a"')
    e(".p2align 6")
    e(f".amdhsa_kernel {NAME}_kernel")
    e(f"  .amdhsa_next_free_vgpr {NV+64}")
    e("  .amdhsa_next_free_sgpr 96")
    e(f"  .amdhsa_accum_offset {NV}")
    e("  .amdhsa_group_segment_fixed_size 0")
    e("  .amdhsa_kernarg_size 64")
    e("  .amdhsa_user_sgpr_count 2")
    e("  .amdhsa_user_sgpr_kernarg_segment_ptr 1")
    e("  .amdhsa_system_sgpr_workgroup_id_x 1")
    e("  .amdhsa_float_denorm_mode_32 3")
    e(".end_amdhsa_kernel")
    return "\n".join(L) + "\n"


if __name__ == "__main__":
    ap = argparse.ArgumentParser()
    ap.add_argument("-o", default="/dev/stdout")
    ap.add_argument("--R", type=int, default=4)
    ap.add_argument("--pol", default="nt")
    ap.add_argument("--qpol", default="")
    ap.add_argument("--opol", default="")
    ap.add_argument("--mapping", type=int, default=0)
    ap.add_argument("--diag", action="store_true")
    ap.add_argument("--pat", type=int, default=0)
    ap.add_argument("--nocompute", action="store_true")
    a = ap.parse_args()
    open(a.o, "w").write(gen(R=a.R, pol=a.pol, mapping=a.mapping, diag=a.diag,
                             compute=not a.nocompute, qpol=a.qpol, opol=a.opol, pat=a.pat))
```

```python
import argparse
import struct
from gen import HEADER, NAME, f2u


def gen(W=21, pol="nt", mapping=0, diag=False, qpol="", opol="", Wtail=None, prio=3):
    L = []
    e = L.append
    RING = 32768
    QB = 4 * RING
    MLB = QB + 16384
    LDS = MLB + 2048
    assert 2 <= W <= 32
    if Wtail is None:
        Wtail = W
    CSC = f2u((128 ** -0.5) * 1.4426950408889634)
    NEG = f2u(-1e30)

    sQ, sK, sV, sBT = 4, 6, 8, 10
    sCL, sOUT = 12, 14
    sDBG, sWS = 16, 18
    KS, QS, OS = 20, 28, 32
    sKh, sVh = 36, 38
    sWv, sP, sH = 40, 41, 42
    sB1, sB2, sE1, sE2, sT1, sT2 = 43, 44, 45, 46, 47, 48
    sC1, sC2, sC = 49, 50, 51
    sN1, sN, sKc = 52, 53, 54
    sSlot, sG, sRing0 = 55, 56, 57
    sT0, sTa, sTb, sTc, sTd, sTe = 58, 59, 60, 61, 62, 63
    sM0, sM1 = 64, 66
    sW = 68
    sIdx = 69
    sTS = 70
    sQo1, sQo2 = 86, 87
    sMk, sNv, sMk2, sNv2 = 24, 25, 26, 27
    sPg = [28, 29, 30, 31, 32, 33, 34, 35]
    sNr = [90, 91, 92, 93, 94, 95, 96, 97]

    vL = 1
    vKo = [2, 3, 4, 5]
    vVo = [6, 7, 8, 9]
    vKrd, vVrd = 10, 11
    vA = list(range(14, 22))
    vM, vLs, vM1, vL1 = 22, 23, 24, 25
    vAl = 26
    vHH4 = 27
    vT0, vT1, vT2, vT3 = 28, 29, 30, 31
    vS = 32
    vP_ = 48
    vX = 56
    vQ = 64
    vF = 96
    vO = 128
    NV = 192
    vPg = [64, 65, 66, 67]
    vNr = [68, 69, 70, 71]

    def ts(i):
        if diag:
            e(f"    s_memrealtime s[{sTS+2*i}:{sTS+2*i+1}]")

    def diag_store():
        e("    s_getreg_b32 s88, hwreg(HW_REG_XCC_ID)")
        e("    s_getreg_b32 s89, hwreg(HW_REG_HW_ID)")
        e("    s_waitcnt lgkmcnt(0)")
        e(f"    s_mul_i32 s{sT0}, s2, 5")
        e(f"    s_add_u32 s{sT0}, s{sT0}, s{sWv}")
        e(f"    s_lshl_b32 s{sT0}, s{sT0}, 7")
        e(f"    v_mov_b32 v{vT0}, s{sT0}")
        for i in range(4):
            for j in range(4):
                e(f"    v_mov_b32 v{vS+j}, s{sTS+4*i+j}")
            e(f"    global_store_dwordx4 v{vT0}, v[{vS}:{vS+3}], s[{sWS}:{sWS+1}] offset:{16*i}")
            e("    s_nop 1")
        e(f"    v_mov_b32 v{vS}, s88")
        e(f"    v_mov_b32 v{vS+1}, s89")
        e(f"    v_mov_b32 v{vS+2}, s{sG}")
        e(f"    v_mov_b32 v{vS+3}, s{sB1}")
        e(f"    global_store_dwordx4 v{vT0}, v[{vS}:{vS+3}], s[{sWS}:{sWS+1}] offset:64")

    e(HEADER.rstrip())
    e(f"; @launch grid=(256,1,1) block=(320,1,1) lds={LDS}")
    e('.amdgcn_target "amdgcn-amd-amdhsa--gfx950"')
    e(".text")
    e(f".globl {NAME}_kernel")
    e(".p2align 8")
    e(f".type {NAME}_kernel,@function")
    e(f"{NAME}_kernel:")
    e("    s_cmp_ge_u32 s2, 256")
    e("    s_cbranch_scc1 L_done")
    if diag:
        for i in range(16):
            e(f"    s_mov_b32 s{sTS+i}, 0")
    ts(0)
    e(f"    s_load_dwordx8 s[4:11], s[0:1], 0")
    e(f"    s_load_dwordx4 s[12:15], s[0:1], 32")
    if diag:
        e(f"    s_load_dwordx4 s[16:19], s[0:1], 48")
    e(f"    v_lshrrev_b32 v{vT0}, 6, v0")
    e(f"    v_and_b32 v{vL}, 63, v0")
    e(f"    v_readfirstlane_b32 s{sWv}, v{vT0}")
    if mapping == 0:
        e(f"    s_and_b32 s{sP}, s2, 7")
        e(f"    s_lshr_b32 s{sH}, s2, 3")
    else:
        e(f"    s_lshr_b32 s{sP}, s2, 5")
        e(f"    s_and_b32 s{sH}, s2, 31")
    e(f"    v_and_b32 v{vX+0}, 60, v{vL}")
    e(f"    v_and_b32 v{vX+1}, 3, v{vL}")
    e(f"    v_lshlrev_b32 v{vX+2}, 4, v{vX+1}")
    e(f"    v_lshlrev_b32 v{vX+3}, 7, v{vL}")
    e(f"    v_lshrrev_b32 v{vX+6}, 2, v{vL}")
    e(f"    v_lshlrev_b32 v{vX+7}, 2, v{vX+1}")
    e(f"    s_sub_u32 s{sTe}, 15, s{sP}")
    e(f"    s_sub_u32 s{sW}, s{sWv}, 1")
    e(f"    s_cmp_lg_u32 s{sWv}, 0")
    e("    s_waitcnt lgkmcnt(0)")
    ts(1)
    e(f"    global_load_dword v{vS}, v{vX+0}, s[{sCL}:{sCL+1}]")
    e(f"    global_load_dwordx4 v[{vS+4}:{vS+7}], v{vX+2}, s[{sCL}:{sCL+1}]")
    e("    s_cbranch_scc1 L_cons_pre")
    e(f"    global_load_dword v{vS+8}, v{vX+3}, s[{sBT}:{sBT+1}]")
    if prio:
        e(f"    s_setprio {prio}")
    e(f"    v_lshrrev_b32 v{vT0}, 4, v{vL}")
    e(f"    v_and_b32 v{vT1}, 15, v{vL}")
    e(f"    v_lshlrev_b32 v{vT2}, 2, v{vT0}")
    e(f"    v_xor_b32 v{vT1}, v{vT1}, v{vT2}")
    e(f"    v_lshlrev_b32 v{vT1}, 4, v{vT1}")
    e(f"    v_lshl_add_u32 v{vVo[0]}, v{vT0}, 13, v{vT1}")
    for i in range(1, 4):
        e(f"    v_add_u32 v{vVo[i]}, {i*(32768-1024)}, v{vVo[0]}")
    e(f"    v_mov_b32 v{vKo[0]}, v{vVo[0]}")
    for i in range(1, 4):
        e(f"    v_xor_b32 v{vKo[i]}, {i*16}, v{vVo[i]}")
    e(f"    s_lshl_b32 s{sT0}, s{sH}, 8")
    e(f"    s_add_u32 s{sKh}, s{sK}, s{sT0}")
    e(f"    s_addc_u32 s{sKh+1}, s{sK+1}, 0")
    e(f"    s_add_u32 s{sVh}, s{sV}, s{sT0}")
    e(f"    s_addc_u32 s{sVh+1}, s{sV+1}, 0")
    e(f"    s_mov_b32 s{KS+3}, 0x20000")
    e("    s_waitcnt vmcnt(1)")
    e("    s_branch L_sort")
    e("L_cons_pre:")
    e(f"    v_lshrrev_b32 v{vT0}, 4, v{vL}")
    e(f"    v_and_b32 v{vT1}, 15, v{vL}")
    e(f"    v_lshlrev_b32 v{vT2}, 2, v{vT0}")
    e(f"    v_xor_b32 v{vT1}, v{vT1}, v{vT2}")
    e(f"    v_lshlrev_b32 v{vT1}, 4, v{vT1}")
    e(f"    s_lshl_b32 s{sT0}, s{sW}, 11")
    e(f"    s_and_b32 s{sTa}, s{sW}, 1")
    e(f"    s_lshl_b32 s{sTa}, s{sTa}, 5")
    e(f"    v_lshl_add_u32 v{vX+4}, v{vT0}, 8, v{vT1}")
    e(f"    v_xor_b32 v{vX+4}, s{sTa}, v{vX+4}")
    e(f"    v_add_u32 v{vX+4}, s{sT0}, v{vX+4}")
    e(f"    v_xor_b32 v{vX+5}, 16, v{vX+4}")
    e(f"    v_and_b32 v{vT0}, 31, v{vL}")
    e(f"    v_lshrrev_b32 v{vT3}, 5, v{vL}")
    e(f"    v_and_b32 v{vT1}, 3, v{vL}")
    e(f"    v_bfe_u32 v{vT2}, v{vL}, 2, 2")
    e(f"    v_lshl_or_b32 v{vT1}, v{vT1}, 2, v{vT2}")
    e(f"    v_xor_b32 v{vT1}, v{vT1}, v{vT3}")
    e(f"    v_lshlrev_b32 v{vT1}, 4, v{vT1}")
    e(f"    v_lshl_add_u32 v{vKrd}, v{vT0}, 8, v{vT1}")
    e(f"    v_lshlrev_b32 v{vHH4}, 2, v{vT3}")
    e(f"    v_add_u32 v{vT0}, v{vHH4}, v{vT2}")
    e(f"    v_lshlrev_b32 v{vT0}, 8, v{vT0}")
    e(f"    v_lshl_or_b32 v{vT0}, v{vT2}, 6, v{vT0}")
    e(f"    v_bfe_u32 v{vT1}, v{vL}, 4, 1")
    e(f"    v_lshl_or_b32 v{vT0}, v{vT1}, 5, v{vT0}")
    e(f"    v_lshl_or_b32 v{vVrd}, v{vX+1}, 3, v{vT0}")
    e(f"    s_mov_b32 s{QS}, s{sQ}")
    e(f"    s_mov_b32 s{QS+1}, s{sQ+1}")
    e(f"    s_mov_b32 s{QS+2}, 0x400000")
    e(f"    s_mov_b32 s{QS+3}, 0x20000")
    e(f"    s_mov_b32 s{OS}, s{sOUT}")
    e(f"    s_mov_b32 s{OS+1}, s{sOUT+1}")
    e(f"    s_mov_b32 s{OS+2}, 0x400000")
    e(f"    s_mov_b32 s{OS+3}, 0x20000")
    e(f"    s_lshl_b32 s{sRing0}, s{sW}, 15")
    e("    s_waitcnt vmcnt(0)")
    e("L_sort:")
    ts(2)
    e(f"    s_movk_i32 s{sT0}, 2047")
    e(f"    v_add_u32 v{vS+1}, -1, v{vS}")
    for j in range(4):
        e(f"    v_add_u32 v{vS+4+j}, -1, v{vS+4+j}")
    e(f"    v_min_u32 v{vS+1}, s{sT0}, v{vS+1}")
    for j in range(4):
        e(f"    v_min_u32 v{vS+4+j}, s{sT0}, v{vS+4+j}")
    e(f"    v_lshl_or_b32 v{vS+1}, v{vS+1}, 4, v{vX+6}")
    for j in range(4):
        e(f"    v_lshl_add_u32 v{vS+4+j}, v{vS+4+j}, 4, v{vX+7}")
    for j in range(1, 4):
        e(f"    v_add_u32 v{vS+4+j}, {j}, v{vS+4+j}")
    for j in range(4):
        e(f"    v_sub_u32 v{vS+4+j}, v{vS+1}, v{vS+4+j}")
    for j in range(4):
        e(f"    v_lshrrev_b32 v{vS+4+j}, 31, v{vS+4+j}")
    e(f"    v_add_u32 v{vS+4}, v{vS+4}, v{vS+5}")
    e(f"    v_add3_u32 v{vS+4}, v{vS+4}, v{vS+6}, v{vS+7}")
    e("    s_nop 1")
    e(f"    v_add_u32_dpp v{vS+5}, v{vS+4}, v{vS+4} quad_perm:[1,0,3,2] row_mask:0xf bank_mask:0xf")
    e("    s_nop 1")
    e(f"    v_add_u32_dpp v{vS+4}, v{vS+5}, v{vS+5} quad_perm:[2,3,0,1] row_mask:0xf bank_mask:0xf")
    e(f"    v_cmp_eq_u32 s[{sM0}:{sM0+1}], s{sP}, v{vS+4}")
    e(f"    v_cmp_eq_u32 s[{sM1}:{sM1+1}], s{sTe}, v{vS+4}")
    e(f"    s_ff1_i32_b64 s{sTa}, s[{sM0}:{sM0+1}]")
    e(f"    s_ff1_i32_b64 s{sTb}, s[{sM1}:{sM1+1}]")
    e(f"    v_readlane_b32 s{sE1}, v{vS+1}, s{sTa}")
    e(f"    v_readlane_b32 s{sE2}, v{vS+1}, s{sTb}")
    e(f"    v_readlane_b32 s{sTc}, v{vS}, s{sTa}")
    e(f"    v_readlane_b32 s{sTd}, v{vS}, s{sTb}")
    e(f"    s_and_b32 s{sB1}, s{sE1}, 15")
    e(f"    s_and_b32 s{sB2}, s{sE2}, 15")
    e(f"    s_lshr_b32 s{sE1}, s{sE1}, 4")
    e(f"    s_lshr_b32 s{sE2}, s{sE2}, 4")
    e(f"    s_lshr_b32 s{sT1}, s{sE1}, 5")
    e(f"    s_lshr_b32 s{sT2}, s{sE2}, 5")
    e(f"    s_add_u32 s{sT1}, s{sT1}, 1")
    e(f"    s_add_u32 s{sT2}, s{sT2}, 1")
    e(f"    s_add_u32 s{sE1}, s{sE1}, 1")
    e(f"    s_add_u32 s{sE2}, s{sE2}, 1")
    e(f"    s_add_u32 s{sG}, s{sT1}, s{sT2}")
    e(f"    s_cmp_lg_u32 s{sWv}, 0")
    e("    s_cbranch_scc1 L_consumer")

    e(f"    s_lshl_b32 s{sTa}, s{sT1}, 1")
    e(f"    s_lshl_b32 s{sTb}, s{sB1}, 7")
    e(f"    s_lshl_b32 s{sTe}, s{sB2}, 7")
    e(f"    s_sub_u32 s{sTe}, s{sTe}, s{sTa}")
    e(f"    s_lshl_b32 s{sTc}, s{sT1}, 5")
    e(f"    s_add_u32 s{sTc}, s{sTc}, s{sE2}")
    e(f"    v_mov_b32 v{vT1}, s{sTe}")
    e(f"    v_mov_b32 v{vT2}, s{sTb}")
    e(f"    s_movk_i32 s{sT0}, 2047")
    masks = [sM0, sM1, 90, 92]
    for r in range(4):
        e(f"    v_add_u32 v{vX+r}, {64*r}, v{vL}")
        e(f"    v_cmp_gt_u32 s[{masks[r]}:{masks[r]+1}], s{sTa}, v{vX+r}")
    for r in range(4):
        e(f"    v_cndmask_b32 v{vT0}, v{vT1}, v{vT2}, s[{masks[r]}:{masks[r]+1}]")
        e(f"    v_add_u32 v{vT0}, v{vT0}, v{vX+r}")
        e(f"    v_min_u32 v{vT0}, s{sT0}, v{vT0}")
        e(f"    v_lshlrev_b32 v{vT0}, 2, v{vT0}")
        e(f"    global_load_dword v{vPg[r]}, v{vT0}, s[{sBT}:{sBT+1}]")
    e(f"    v_mov_b32 v{vT1}, s{sTc}")
    e(f"    v_mov_b32 v{vT2}, s{sE1}")
    for r in range(4):
        e(f"    v_cndmask_b32 v{vT0}, v{vT1}, v{vT2}, s[{masks[r]}:{masks[r]+1}]")
        e(f"    v_lshlrev_b32 v{vX+r}, 4, v{vX+r}")
        e(f"    v_sub_u32 v{vT0}, v{vT0}, v{vX+r}")
        e(f"    v_med3_i32 v{vT0}, v{vT0}, 0, 16")
        e(f"    v_lshlrev_b32 v{vNr[r]}, 13, v{vT0}")
    e(f"    s_add_u32 s{sTa}, s{sG}, 3")
    e(f"    s_lshr_b32 s{sN}, s{sTa}, 2")
    e(f"    s_sub_u32 s{sN}, s{sN}, 1")
    e(f"    s_and_b32 s{sN1}, s{sTa}, 3")
    e(f"    s_mov_b32 s{sKc}, 0")
    e(f"    s_mov_b32 s{sIdx}, 0")
    e(f"    s_mov_b32 s{sSlot}, 0")
    e(f"    s_movk_i32 s{sT0}, 0x803")
    e("    s_waitcnt vmcnt(0)")
    ts(3)
    for r in range(4):
        e(f"    v_min_u32 v{vPg[r]}, s{sT0}, v{vPg[r]}")
        e(f"    v_lshlrev_b32 v{vPg[r]}, 17, v{vPg[r]}")

    def page_setup(isK, j):
        out = []
        if isK:
            out.append(f"    v_readlane_b32 s{sPg[j]}, v{vPg[0]}, s{sIdx}")
            out.append(f"    v_readlane_b32 s{sNr[j]}, v{vNr[0]}, s{sIdx}")
            out.append(f"    s_add_u32 s{sIdx}, s{sIdx}, 1")
        base = sKh if isK else sVh
        c = (j >> 1) * 32768 + (j & 1) * 4096 + (0 if isK else 8192)
        out.append(f"    s_add_u32 m0, s{sSlot}, {c}")
        out.append(f"    s_add_u32 s{KS}, s{base}, s{sPg[j]}")
        out.append(f"    s_addc_u32 s{KS+1}, s{base+1}, 0")
        out.append(f"    s_mov_b32 s{KS+2}, s{sNr[j]}")
        return out

    uid = [0]

    def prev_barrier():
        uid[0] += 1
        return [f"    s_cmp_eq_u32 s{sKc}, 0",
                f"    s_cbranch_scc1 L_nb{uid[0]}",
                "    s_barrier",
                f"L_nb{uid[0]}:"]

    def group_code(nt, Wn, last):
        out = []
        seq = [(True, j, i) for j in range(2 * nt) for i in range(4)] + \
              [(False, j, i) for j in range(2 * nt) for i in range(4)]
        pend = [(0, "prev"), (8 * nt, "K")]
        if last:
            pend.append((16 * nt, "V"))
        for n, (isK, j, i) in enumerate(seq):
            if i == 0:
                out += page_setup(isK, j)
            out.append(f"    s_waitcnt vmcnt({Wn-1})")
            while pend and n - pend[0][0] >= Wn - 1:
                out += prev_barrier() if pend[0][1] == "prev" else ["    s_barrier"]
                pend.pop(0)
            vo = vKo if isK else vVo
            off = f" offset:{i*1024}" if i else ""
            out.append(f"    buffer_load_dwordx4 v{vo[i]}, s[{KS}:{KS+3}], 0 offen{off} {pol} lds")
        if last:
            for (pos, name) in pend:
                out.append(f"    s_waitcnt vmcnt({len(seq)-pos})")
                out += prev_barrier() if name == "prev" else ["    s_barrier"]
        else:
            assert not pend
        return out

    e("    .p2align 6")
    e("L_ld_loop:")
    e(f"    s_cmp_lg_u32 s{sIdx}, 64")
    e("    s_cbranch_scc1 L_ld_noshift")
    for r in range(3):
        e(f"    v_mov_b32 v{vPg[r]}, v{vPg[r+1]}")
        e(f"    v_mov_b32 v{vNr[r]}, v{vNr[r+1]}")
    e(f"    s_mov_b32 s{sIdx}, 0")
    e("L_ld_noshift:")
    e(f"    s_cmp_ge_u32 s{sKc}, s{sN}")
    e("    s_cbranch_scc1 L_ld_last")
    L.extend(group_code(4, W, False))
    e(f"    s_xor_b32 s{sSlot}, s{sSlot}, 16384")
    e(f"    s_add_u32 s{sKc}, s{sKc}, 1")
    e("    s_branch L_ld_loop")
    e("L_ld_last:")
    for nt in (1, 2, 3):
        e(f"    s_cmp_eq_u32 s{sN1}, {nt-1}")
        e(f"    s_cbranch_scc1 L_ld_last{nt}")
    for nt in (4, 3, 2, 1):
        e(f"L_ld_last{nt}:")
        L.extend(group_code(nt, Wtail, True))
        if diag:
            e("    s_branch L_ld_end")
        else:
            e("    s_endpgm")
    if diag:
        e("L_ld_end:")
        ts(6)
        ts(7)
        diag_store()
        e("    s_endpgm")

    e("L_consumer:")
    e(f"    s_lshl_b32 s{sQo1}, s{sB1}, 5")
    e(f"    s_add_u32 s{sQo1}, s{sQo1}, s{sH}")
    e(f"    s_lshl_b32 s{sQo1}, s{sQo1}, 13")
    e(f"    s_lshl_b32 s{sQo2}, s{sB2}, 5")
    e(f"    s_add_u32 s{sQo2}, s{sQo2}, s{sH}")
    e(f"    s_lshl_b32 s{sQo2}, s{sQo2}, 13")
    e(f"    s_lshl_b32 s{sT0}, s{sW}, 11")
    e(f"    s_add_u32 m0, s{sT0}, {QB}")
    e(f"    s_nop 0")
    e(f"    buffer_load_dwordx4 v{vX+4}, s[{QS}:{QS+3}], s{sQo1} offen {qpol} lds")
    e(f"    buffer_load_dwordx4 v{vX+5}, s[{QS}:{QS+3}], s{sQo1} offen offset:1024 {qpol} lds")
    e(f"    s_add_u32 m0, s{sT0}, {QB+8192}")
    e(f"    s_nop 0")
    e(f"    buffer_load_dwordx4 v{vX+4}, s[{QS}:{QS+3}], s{sQo2} offen {qpol} lds")
    e(f"    buffer_load_dwordx4 v{vX+5}, s[{QS}:{QS+3}], s{sQo2} offen offset:1024 {qpol} lds")
    e(f"    s_cmp_gt_i32 s{sTc}, 0")
    e(f"    s_cselect_b32 s{sC1}, {CSC:#x}, 0")
    e(f"    s_cmp_gt_i32 s{sTd}, 0")
    e(f"    s_cselect_b32 s{sC2}, {CSC:#x}, 0")
    e(f"    s_mov_b32 s{sC}, s{sC1}")
    e(f"    s_sub_u32 s{sT0}, 3, s{sW}")
    e(f"    s_add_u32 s{sN1}, s{sT1}, s{sT0}")
    e(f"    s_add_u32 s{sN}, s{sG}, s{sT0}")
    e(f"    s_lshr_b32 s{sN1}, s{sN1}, 2")
    e(f"    s_lshr_b32 s{sN}, s{sN}, 2")
    e(f"    s_sub_u32 s{sTa}, s{sT1}, 1")
    e(f"    s_lshl_b32 s{sTb}, s{sTa}, 5")
    e(f"    s_sub_u32 s{sNv}, s{sE1}, s{sTb}")
    e(f"    s_lshr_b32 s{sMk}, s{sTa}, 2")
    e(f"    s_and_b32 s{sTa}, s{sTa}, 3")
    e(f"    s_cmp_eq_u32 s{sTa}, s{sW}")
    e(f"    s_cselect_b32 s{sMk}, s{sMk}, -1")
    e(f"    s_sub_u32 s{sTa}, s{sT2}, 1")
    e(f"    s_lshl_b32 s{sTb}, s{sTa}, 5")
    e(f"    s_sub_u32 s{sNv2}, s{sE2}, s{sTb}")
    e(f"    s_sub_u32 s{sTa}, s{sG}, 1")
    e(f"    s_lshr_b32 s{sMk2}, s{sTa}, 2")
    e(f"    s_and_b32 s{sTa}, s{sTa}, 3")
    e(f"    s_cmp_eq_u32 s{sTa}, s{sW}")
    e(f"    s_cselect_b32 s{sMk2}, s{sMk2}, -1")
    e(f"    s_add_u32 s{sG}, s{sG}, 3")
    e(f"    s_lshr_b32 s{sG}, s{sG}, 2")
    e(f"    s_mov_b32 s{sSlot}, s{sRing0}")
    for i in range(64):
        e(f"    v_mov_b32 v{vO+i}, 0")
    e(f"    v_mov_b32 v{vM}, {NEG:#x}")
    e(f"    v_mov_b32 v{vLs}, 0")
    e(f"    s_mov_b32 s{sKc}, 0")
    e(f"    s_mov_b32 s{sTe}, {QB}")
    e("    s_waitcnt vmcnt(0)")
    ts(3)

    e("    .p2align 6")
    e("L_loop:")
    e(f"    s_cmp_eq_u32 s{sKc}, s{sN1}")
    e("    s_cbranch_scc1 L_switch")
    e("L_loop_chk:")
    e(f"    s_cmp_ge_u32 s{sKc}, s{sN}")
    e("    s_cbranch_scc1 L_fin")
    e(f"    v_add_u32 v{vA[0]}, s{sSlot}, v{vKrd}")
    for j in range(1, 8):
        e(f"    v_xor_b32 v{vA[j]}, {j<<5}, v{vA[0]}")
    e("    s_barrier")
    if diag:
        e(f"    s_cmp_lg_u32 s{sKc}, 0")
        e("    s_cbranch_scc1 L_nots5")
        ts(5)
        e("L_nots5:")
    e(f"    s_cmp_lg_u32 s{sTe}, 0")
    e("    s_cbranch_scc1 L_readq")
    e("L_noq:")
    for j in range(8):
        e(f"    ds_read_b128 v[{vF+4*j}:{vF+4*j+3}], v{vA[j]}")
    for j in range(8):
        e(f"    s_waitcnt lgkmcnt({0 if diag else 7-j})")
        c = "0" if j == 0 else f"v[{vS}:{vS+15}]"
        e(f"    v_mfma_f32_32x32x16_bf16 v[{vS}:{vS+15}], v[{vF+4*j}:{vF+4*j+3}], v[{vQ+4*j}:{vQ+4*j+3}], {c}")
    e(f"    s_add_u32 s{sT0}, s{sSlot}, 8192")
    e(f"    v_add_u32 v{vA[0]}, s{sT0}, v{vVrd}")
    for n in range(1, 4):
        e(f"    v_xor_b32 v{vA[n]}, {n<<6}, v{vA[0]}")
    e(f"    s_xor_b32 s{sSlot}, s{sSlot}, 16384")
    e("    s_nop 3")
    e(f"    s_cmp_eq_u32 s{sKc}, s{sMk}")
    e("    s_cbranch_scc1 L_mask")
    e("L_nomask:")
    e(f"    v_max3_f32 v{vT0}, v{vS}, v{vS+1}, v{vS+2}")
    e(f"    v_max3_f32 v{vT1}, v{vS+3}, v{vS+4}, v{vS+5}")
    e(f"    v_max3_f32 v{vT2}, v{vS+6}, v{vS+7}, v{vS+8}")
    e(f"    v_max3_f32 v{vT3}, v{vS+9}, v{vS+10}, v{vS+11}")
    e(f"    v_max3_f32 v{vT0}, v{vT0}, v{vS+12}, v{vS+13}")
    e(f"    v_max3_f32 v{vT1}, v{vT1}, v{vS+14}, v{vS+15}")
    e(f"    v_max3_f32 v{vT2}, v{vT2}, v{vT3}, v{vM}")
    e(f"    v_max3_f32 v{vT0}, v{vT0}, v{vT1}, v{vT2}")
    e(f"    v_mov_b32 v{vT1}, v{vT0}")
    e("    s_nop 1")
    e(f"    v_permlane32_swap_b32 v{vT0}, v{vT1}")
    e(f"    v_max_f32 v{vT0}, v{vT0}, v{vT1}")
    e(f"    v_sub_f32 v{vT1}, v{vM}, v{vT0}")
    e(f"    v_mul_f32 v{vT2}, s{sC}, v{vT0}")
    e(f"    v_mul_f32 v{vT1}, s{sC}, v{vT1}")
    e(f"    v_mov_b32 v{vM}, v{vT0}")
    e(f"    v_exp_f32 v{vAl}, v{vT1}")
    for i in range(16):
        e(f"    v_fma_f32 v{vS+i}, v{vS+i}, s{sC}, -v{vT2}")
    for i in range(16):
        e(f"    v_exp_f32 v{vS+i}, v{vS+i}")
    for i in range(32):
        e(f"    v_pk_mul_f32 v[{vO+2*i}:{vO+2*i+1}], v[{vO+2*i}:{vO+2*i+1}], v[{vAl}:{vAl+1}] op_sel_hi:[1,0]")
    for i in range(8):
        e(f"    v_cvt_pk_bf16_f32 v{vP_+i}, v{vS+2*i}, v{vS+2*i+1}")
    for i in range(4):
        e(f"    v_pk_add_f32 v[{vS+2*i}:{vS+2*i+1}], v[{vS+2*i}:{vS+2*i+1}], v[{vS+8+2*i}:{vS+8+2*i+1}]")
    for i in range(2):
        e(f"    v_pk_add_f32 v[{vS+2*i}:{vS+2*i+1}], v[{vS+2*i}:{vS+2*i+1}], v[{vS+4+2*i}:{vS+4+2*i+1}]")
    e(f"    v_pk_add_f32 v[{vS}:{vS+1}], v[{vS}:{vS+1}], v[{vS+2}:{vS+3}]")
    e(f"    v_fma_f32 v{vLs}, v{vLs}, v{vAl}, v{vS}")
    e(f"    v_add_f32 v{vLs}, v{vLs}, v{vS+1}")
    e("    s_barrier")
    order = [(m, n) for m in range(2) for n in range(4)]
    for (m, n) in order:
        for jj in range(2):
            r = vF + 8 * n + 4 * m + 2 * jj
            e(f"    ds_read_b64_tr_b16 v[{r}:{r+1}], v{vA[n]} offset:{m*4096+jj*2048}")
    for idx, (m, n) in enumerate(order):
        e(f"    s_waitcnt lgkmcnt({14-2*idx})")
        a = vF + 8 * n + 4 * m
        e(f"    v_mfma_f32_32x32x16_bf16 v[{vO+16*n}:{vO+16*n+15}], v[{a}:{a+3}], v[{vP_+4*m}:{vP_+4*m+3}], v[{vO+16*n}:{vO+16*n+15}]")
    e(f"    s_add_u32 s{sKc}, s{sKc}, 1")
    e("    s_branch L_loop")

    e("L_readq:")
    e(f"    v_add_u32 v{vX}, s{sTe}, v{vKrd}")
    for j in range(1, 8):
        e(f"    v_xor_b32 v{vX+j}, {j<<5}, v{vX}")
    for j in range(8):
        e(f"    ds_read_b128 v[{vQ+4*j}:{vQ+4*j+3}], v{vX+j}")
    e(f"    s_mov_b32 s{sTe}, 0")
    e("    s_waitcnt lgkmcnt(0)")
    e("    s_branch L_noq")

    e("L_mask:")
    e(f"    v_sub_u32 v{vT0}, s{sNv}, v{vHH4}")
    e(f"    v_mov_b32 v{vT1}, {NEG:#x}")
    for v in range(16):
        t = 8 * (v >> 2) + (v & 3)
        e(f"    v_cmp_lt_i32 vcc, {t}, v{vT0}")
        e("    s_nop 1")
        e(f"    v_cndmask_b32 v{vS+v}, v{vT1}, v{vS+v}, vcc")
    e("    s_branch L_nomask")

    e("L_switch:")
    e("    s_nop 7")
    e("    s_nop 7")
    for i in range(64):
        e(f"    v_accvgpr_write_b32 a{i}, v{vO+i}")
    for i in range(64):
        e(f"    v_mov_b32 v{vO+i}, 0")
    e(f"    v_mov_b32 v{vM1}, v{vM}")
    e(f"    v_mov_b32 v{vL1}, v{vLs}")
    e(f"    v_mov_b32 v{vM}, {NEG:#x}")
    e(f"    v_mov_b32 v{vLs}, 0")
    e(f"    s_mov_b32 s{sC}, s{sC2}")
    e(f"    s_mov_b32 s{sN1}, -1")
    e(f"    s_mov_b32 s{sMk}, s{sMk2}")
    e(f"    s_mov_b32 s{sNv}, s{sNv2}")
    e(f"    s_mov_b32 s{sTe}, {QB+8192}")
    e("    s_branch L_loop_chk")

    e("L_fin:")
    e(f"    s_cmp_ge_u32 s{sKc}, s{sG}")
    e("    s_cbranch_scc1 L_epi")
    e("    s_barrier")
    e("    s_barrier")
    e("L_epi:")
    ts(6)
    e(f"    v_mov_b32 v{vT0}, v{vL1}")
    e(f"    v_mov_b32 v{vT1}, v{vLs}")
    e(f"    v_and_b32 v{vT2}, 31, v{vL}")
    e(f"    v_lshrrev_b32 v{vT3}, 5, v{vL}")
    e(f"    v_permlane32_swap_b32 v{vT0}, v{vL1}")
    e(f"    v_permlane32_swap_b32 v{vT1}, v{vLs}")
    e(f"    v_add_f32 v{vL1}, v{vL1}, v{vT0}")
    e(f"    v_add_f32 v{vLs}, v{vLs}, v{vT1}")
    e(f"    v_and_b32 v{vT0}, 7, v{vL}")
    e(f"    v_xor_b32 v{vT0}, v{vT0}, v{vT3}")
    e(f"    v_lshlrev_b32 v{vT0}, 4, v{vT0}")
    e(f"    v_lshl_add_u32 v{vT0}, v{vT2}, 9, v{vT0}")
    e(f"    v_add_u32 v{vA[0]}, s{sRing0}, v{vT0}")
    for i in range(1, 4):
        e(f"    v_xor_b32 v{vA[i]}, {i<<5}, v{vA[0]}")
    e(f"    s_lshl_b32 s{sT0}, s{sW}, 3")
    e(f"    s_add_u32 s{sT0}, s{sT0}, {MLB}")
    e(f"    v_lshlrev_b32 v{vT2}, 5, v{vT2}")
    e(f"    v_add_u32 v{vA[4]}, s{sT0}, v{vT2}")
    e(f"    ds_write_b64 v{vA[4]}, v[{vM1}:{vL1}]")
    e(f"    ds_write_b64 v{vA[4]}, v[{vM}:{vLs}] offset:1024")
    for n in range(4):
        for i in range(4):
            r = 16 * n + 4 * i
            e(f"    ds_write_b128 v{vA[i]}, a[{r}:{r+3}] offset:{n*128}")
    for n in range(4):
        for i in range(4):
            r = vO + 16 * n + 4 * i
            e(f"    ds_write_b128 v{vA[i]}, v[{r}:{r+3}] offset:{16384+n*128}")
    e(f"    v_lshrrev_b32 v{vT0}, 3, v{vL}")
    e(f"    v_and_b32 v{vT1}, 7, v{vL}")
    e(f"    s_lshl_b32 s{sT0}, s{sW}, 3")
    e(f"    v_add_u32 v{vT2}, s{sT0}, v{vT0}")
    e(f"    v_lshlrev_b32 v{vT3}, 1, v{vT1}")
    e(f"    v_xor_b32 v{vT3}, v{vT3}, v{vT0}")
    e(f"    v_lshlrev_b32 v{vT3}, 4, v{vT3}")
    e(f"    v_lshl_add_u32 v{vA[0]}, v{vT2}, 9, v{vT3}")
    e(f"    v_xor_b32 v{vA[1]}, 16, v{vA[0]}")
    e(f"    v_add_u32 v{vA[2]}, 0x10000, v{vA[0]}")
    e(f"    v_add_u32 v{vA[3]}, 0x10000, v{vA[1]}")
    e(f"    v_lshlrev_b32 v{vT3}, 5, v{vT2}")
    e(f"    v_add_u32 v{vA[4]}, {MLB}, v{vT3}")
    e(f"    v_lshlrev_b32 v{vT1}, 4, v{vT1}")
    e(f"    v_lshl_add_u32 v{vA[5]}, v{vT2}, 8, v{vT1}")
    e("    s_waitcnt lgkmcnt(0)")
    e("    s_barrier")
    for item in range(2):
        ml = vS + 8 * item
        e(f"    ds_read_b128 v[{ml}:{ml+3}], v{vA[4]} offset:{item*1024}")
        e(f"    ds_read_b128 v[{ml+4}:{ml+7}], v{vA[4]} offset:{item*1024+16}")
    dst = [vQ, vO]
    for item in range(2):
        for w in range(4):
            for e1 in range(2):
                for e0 in range(2):
                    r = dst[item] + 16 * w + 8 * e1 + 4 * e0
                    a = vA[e0 + 2 * (w >> 1)]
                    off = (w & 1) * 32768 + item * 16384 + e1 * 256
                    e(f"    ds_read_b128 v[{r}:{r+3}], v{a} offset:{off}")
        if item == 0:
            e("    s_waitcnt lgkmcnt(15)")
            for it in range(2):
                ml = vS + 8 * it
                sc = sC1 if it == 0 else sC2
                e(f"    v_max3_f32 v{vT0}, v{ml}, v{ml+2}, v{ml+4}")
                e(f"    v_max_f32 v{vT0}, v{vT0}, v{ml+6}")
                for w in range(4):
                    e(f"    v_sub_f32 v{ml+2*w}, v{ml+2*w}, v{vT0}")
                for w in range(4):
                    e(f"    v_mul_f32 v{ml+2*w}, s{sc}, v{ml+2*w}")
                for w in range(4):
                    e(f"    v_exp_f32 v{ml+2*w}, v{ml+2*w}")
                e("    s_nop 0")
                e(f"    v_mul_f32 v{vT0}, v{ml}, v{ml+1}")
                for w in range(1, 4):
                    e(f"    v_fma_f32 v{vT0}, v{ml+2*w}, v{ml+2*w+1}, v{vT0}")
                e(f"    v_rcp_f32 v{vT0}, v{vT0}")
                e("    s_nop 0")
                for w in range(4):
                    e(f"    v_mul_f32 v{ml+2*w}, v{ml+2*w}, v{vT0}")
    for item in range(2):
        ml = vS + 8 * item
        d = dst[item]
        e(f"    s_waitcnt lgkmcnt({15 if item == 0 else 0})")
        for i in range(8):
            e(f"    v_pk_mul_f32 v[{d+2*i}:{d+2*i+1}], v[{d+2*i}:{d+2*i+1}], v[{ml}:{ml+1}] op_sel_hi:[1,0]")
        for w in range(1, 4):
            for i in range(8):
                s = d + 16 * w + 2 * i
                e(f"    v_pk_fma_f32 v[{d+2*i}:{d+2*i+1}], v[{s}:{s+1}], v[{ml+2*w}:{ml+2*w+1}], v[{d+2*i}:{d+2*i+1}] op_sel_hi:[1,0,1]")
        o = vP_ if item == 0 else vX
        for i in range(8):
            e(f"    v_cvt_pk_bf16_f32 v{o+i}, v{d+2*i}, v{d+2*i+1}")
        so = sQo1 if item == 0 else sQo2
        e(f"    buffer_store_dwordx4 v[{o}:{o+3}], v{vA[5]}, s[{OS}:{OS+3}], s{so} offen {opol}")
        e(f"    buffer_store_dwordx4 v[{o+4}:{o+7}], v{vA[5]}, s[{OS}:{OS+3}], s{so} offen offset:128 {opol}")
    if diag:
        ts(4)
        e("    s_waitcnt vmcnt(0)")
        ts(7)
        diag_store()
    e("L_done:")
    e("    s_endpgm")
    e('.section .rodata,"a"')
    e(".p2align 6")
    e(f".amdhsa_kernel {NAME}_kernel")
    e(f"  .amdhsa_next_free_vgpr {NV+64}")
    e("  .amdhsa_next_free_sgpr 100")
    e(f"  .amdhsa_accum_offset {NV}")
    e("  .amdhsa_group_segment_fixed_size 0")
    e("  .amdhsa_kernarg_size 64")
    e("  .amdhsa_user_sgpr_count 2")
    e("  .amdhsa_user_sgpr_kernarg_segment_ptr 1")
    e("  .amdhsa_system_sgpr_workgroup_id_x 1")
    e("  .amdhsa_float_denorm_mode_32 3")
    e(".end_amdhsa_kernel")
    return "\n".join(L) + "\n"


if __name__ == "__main__":
    ap = argparse.ArgumentParser()
    ap.add_argument("-o", default="/dev/stdout")
    ap.add_argument("--W", type=int, default=21)
    ap.add_argument("--Wtail", type=int, default=None)
    ap.add_argument("--pol", default="nt")
    ap.add_argument("--qpol", default="")
    ap.add_argument("--opol", default="")
    ap.add_argument("--mapping", type=int, default=0)
    ap.add_argument("--prio", type=int, default=3)
    ap.add_argument("--diag", action="store_true")
    a = ap.parse_args()
    open(a.o, "w").write(gen(W=a.W, pol=a.pol, mapping=a.mapping, diag=a.diag,
                             qpol=a.qpol, opol=a.opol, Wtail=a.Wtail, prio=a.prio))
```

```python
import argparse
import struct
from gen import HEADER, NAME, f2u


def gen(W=21, pol="nt", mapping=0, diag=False, opol="", Wtail=None, tailg=0, prio=3,
        spol="", early=True, fixt=0, shortfirst=False, wtab=None, cpre=0, noepi=False, strided=True):
    L = []
    e = L.append
    RING = 32768
    QB = 4 * RING
    MLB = QB + 16384
    LDS = MLB + 2048
    assert 2 <= W <= 32
    if Wtail is None:
        Wtail = W
    CSC = f2u((128 ** -0.5) * 1.4426950408889634)
    NEG = f2u(-1e30)

    sQ, sK, sV, sBT = 4, 6, 8, 10
    sCL, sOUT = 12, 14
    sDBG, sWS = 16, 18
    KS, QS, OS = 20, 28, 32
    sKh, sVh = 36, 38
    sWv, sP, sH = 40, 41, 42
    sB1, sB2, sE1, sE2, sT1, sT2 = 43, 44, 45, 46, 47, 48
    sC1, sC2, sC = 49, 50, 51
    sN1, sN, sKc = 52, 53, 54
    sSlot, sG, sRing0 = 55, 56, 57
    sT0, sTa, sTb, sTc, sTd, sTe = 58, 59, 60, 61, 62, 63
    sM0, sM1 = 64, 66
    sW = 68
    sIdx = 69
    sTS = 70
    sQo1, sQo2 = 86, 87
    sMk, sNv, sMk2, sNv2 = 24, 25, 26, 27
    sEk, sH1, sH2 = 28, 29, 30
    sPg = [24, 25, 26, 27, 32, 33, 34, 35]
    sNr = [90, 91, 92, 93, 94, 95, 96, 97]
    sNt = 49

    vL = 1
    vKo = [2, 3, 4, 5]
    vVo = [6, 7, 8, 9]
    vKrd, vVrd = 10, 11
    vA = list(range(14, 22))
    vM, vLs, vM1, vL1 = 22, 23, 24, 25
    vAl = 26
    vHH4 = 27
    vT0, vT1, vT2, vT3 = 28, 29, 30, 31
    vS = 32
    vP_ = 48
    vX = 56
    vQ = 64
    vF = 96
    vO = 128
    NV = 192
    vPg = [64, 65, 66, 67]
    vNr = [68, 69, 70, 71]
    vQo = [72, 73, 74, 75]
    vEw, vEr, vMw, vMr, vOo = 2, 3, 4, 5, 6

    def ts(i):
        if diag:
            e(f"    s_memrealtime s[{sTS+2*i}:{sTS+2*i+1}]")

    def diag_store():
        e("    s_getreg_b32 s88, hwreg(HW_REG_XCC_ID)")
        e("    s_getreg_b32 s89, hwreg(HW_REG_HW_ID)")
        e("    s_waitcnt lgkmcnt(0)")
        e(f"    s_mul_i32 s{sT0}, s2, 5")
        e(f"    s_add_u32 s{sT0}, s{sT0}, s{sWv}")
        e(f"    s_lshl_b32 s{sT0}, s{sT0}, 7")
        e(f"    v_mov_b32 v{vT0}, s{sT0}")
        for i in range(4):
            for j in range(4):
                e(f"    v_mov_b32 v{vS+j}, s{sTS+4*i+j}")
            e(f"    global_store_dwordx4 v{vT0}, v[{vS}:{vS+3}], s[{sWS}:{sWS+1}] offset:{16*i}")
            e("    s_nop 1")
        e(f"    v_mov_b32 v{vS}, s88")
        e(f"    v_mov_b32 v{vS+1}, s89")
        e(f"    v_mov_b32 v{vS+2}, s{sG}")
        e(f"    v_mov_b32 v{vS+3}, s{sB1}")
        e(f"    global_store_dwordx4 v{vT0}, v[{vS}:{vS+3}], s[{sWS}:{sWS+1}] offset:64")

    e(HEADER.rstrip())
    e(f"; @launch grid=(256,1,1) block=(320,1,1) lds={LDS}")
    e('.amdgcn_target "amdgcn-amd-amdhsa--gfx950"')
    e(".text")
    e(f".globl {NAME}_kernel")
    e(".p2align 8")
    e(f".type {NAME}_kernel,@function")
    e(f"{NAME}_kernel:")
    e("    s_cmp_ge_u32 s2, 256")
    e("    s_cbranch_scc1 L_done")
    if diag:
        for i in range(16):
            e(f"    s_mov_b32 s{sTS+i}, 0")
    ts(0)
    if fixt:
        e("    s_memrealtime s[98:99]")
    e(f"    s_load_dwordx4 s[12:15], s[0:1], 32")
    e(f"    s_load_dwordx8 s[4:11], s[0:1], 0")
    if diag:
        e(f"    s_load_dwordx4 s[16:19], s[0:1], 48")
    e(f"    v_lshrrev_b32 v{vT0}, 6, v0")
    e(f"    v_and_b32 v{vL}, 63, v0")
    e(f"    v_readfirstlane_b32 s{sWv}, v{vT0}")
    if mapping == 0:
        e(f"    s_and_b32 s{sP}, s2, 7")
        e(f"    s_lshr_b32 s{sH}, s2, 3")
    else:
        e(f"    s_lshr_b32 s{sP}, s2, 5")
        e(f"    s_and_b32 s{sH}, s2, 31")
    e(f"    v_and_b32 v{vX+0}, 60, v{vL}")
    e(f"    v_and_b32 v{vX+1}, 3, v{vL}")
    e(f"    v_lshlrev_b32 v{vX+2}, 4, v{vX+1}")
    e(f"    v_lshlrev_b32 v{vX+3}, 7, v{vL}")
    e(f"    v_lshrrev_b32 v{vX+6}, 2, v{vL}")
    e(f"    v_lshlrev_b32 v{vX+7}, 2, v{vX+1}")
    e(f"    s_sub_u32 s{sTe}, 15, s{sP}")
    if shortfirst:
        e(f"    s_mov_b32 s{sT0}, s{sP}")
        e(f"    s_mov_b32 s{sP}, s{sTe}")
        e(f"    s_mov_b32 s{sTe}, s{sT0}")
    e(f"    s_sub_u32 s{sW}, s{sWv}, 1")
    e(f"    s_cmp_lg_u32 s{sWv}, 0")
    e("    s_waitcnt lgkmcnt(0)")
    ts(1)
    e(f"    global_load_dword v{vS}, v{vX+0}, s[{sCL}:{sCL+1}] {spol}")
    e(f"    global_load_dwordx4 v[{vS+4}:{vS+7}], v{vX+2}, s[{sCL}:{sCL+1}] {spol}")
    e("    s_cbranch_scc1 L_cons_pre")
    e(f"    global_load_dword v{vS+8}, v{vX+3}, s[{sBT}:{sBT+1}] {spol}")
    if prio:
        e(f"    s_setprio {prio}")
    e(f"    v_lshrrev_b32 v{vT0}, 4, v{vL}")
    e(f"    v_and_b32 v{vT1}, 15, v{vL}")
    e(f"    v_lshlrev_b32 v{vT2}, 2, v{vT0}")
    e(f"    v_xor_b32 v{vT1}, v{vT1}, v{vT2}")
    e(f"    v_lshlrev_b32 v{vT1}, 4, v{vT1}")
    e(f"    v_lshl_add_u32 v{vVo[0]}, v{vT0}, {15 if strided else 13}, v{vT1}")
    for i in range(1, 4):
        e(f"    v_add_u32 v{vVo[i]}, {i*((8192 if strided else 32768)-1024)}, v{vVo[0]}")
    e(f"    v_mov_b32 v{vKo[0]}, v{vVo[0]}")
    for i in range(1, 4):
        e(f"    v_xor_b32 v{vKo[i]}, {i*16}, v{vVo[i]}")
    e(f"    v_lshl_add_u32 v{vQo[0]}, v{vT0}, 8, v{vT1}")
    for i in range(1, 4):
        e(f"    v_xor_b32 v{vQo[i]}, {i*16}, v{vQo[0]}")
    e(f"    s_lshl_b32 s{sT0}, s{sH}, 8")
    e(f"    s_add_u32 s{sKh}, s{sK}, s{sT0}")
    e(f"    s_addc_u32 s{sKh+1}, s{sK+1}, 0")
    e(f"    s_add_u32 s{sVh}, s{sV}, s{sT0}")
    e(f"    s_addc_u32 s{sVh+1}, s{sV+1}, 0")
    e(f"    s_mov_b32 s{KS+3}, 0x20000")
    e(f"    s_mov_b32 s{QS}, s{sQ}")
    e(f"    s_mov_b32 s{QS+1}, s{sQ+1}")
    e(f"    s_mov_b32 s{QS+2}, 0x400000")
    e(f"    s_mov_b32 s{QS+3}, 0x20000")
    for r in range(4):
        e(f"    v_add_u32 v{vX+r}, {64*r}, v{vL}")
    e("    s_waitcnt vmcnt(1)")
    e("    s_branch L_sort")
    e("L_cons_pre:")
    e(f"    v_and_b32 v{vT0}, 31, v{vL}")
    e(f"    v_lshrrev_b32 v{vT3}, 5, v{vL}")
    e(f"    v_bfe_u32 v{vT2}, v{vL}, 2, 2")
    e(f"    v_lshl_or_b32 v{vT1}, v{vX+1}, 2, v{vT2}")
    e(f"    v_xor_b32 v{vT1}, v{vT1}, v{vT3}")
    e(f"    v_lshlrev_b32 v{vT1}, 4, v{vT1}")
    e(f"    v_lshl_add_u32 v{vKrd}, v{vT0}, 8, v{vT1}")
    e(f"    v_lshlrev_b32 v{vHH4}, 2, v{vT3}")
    e(f"    s_lshl_b32 s{sRing0}, s{sW}, 15")
    e(f"    v_and_b32 v{vX+4}, 7, v{vL}")
    e(f"    v_xor_b32 v{vT1}, v{vX+4}, v{vT3}")
    e(f"    v_lshlrev_b32 v{vT1}, 4, v{vT1}")
    e(f"    v_lshl_add_u32 v{vT1}, v{vT0}, 9, v{vT1}")
    e(f"    v_add_u32 v{vEw}, s{sRing0}, v{vT1}")
    e(f"    s_lshl_b32 s{sT0}, s{sW}, 3")
    e(f"    s_add_u32 s{sTa}, s{sT0}, {MLB}")
    e(f"    v_lshl_add_u32 v{vMw}, v{vT0}, 5, s{sTa}")
    e(f"    v_add_u32 v{vT0}, v{vHH4}, v{vT2}")
    e(f"    v_lshlrev_b32 v{vT0}, 8, v{vT0}")
    e(f"    v_lshl_or_b32 v{vT0}, v{vT2}, 6, v{vT0}")
    e(f"    v_bfe_u32 v{vT1}, v{vL}, 4, 1")
    e(f"    v_lshl_or_b32 v{vT0}, v{vT1}, 5, v{vT0}")
    e(f"    v_lshl_or_b32 v{vVrd}, v{vX+1}, 3, v{vT0}")
    e(f"    v_lshrrev_b32 v{vT0}, 3, v{vL}")
    e(f"    v_add_u32 v{vT2}, s{sT0}, v{vT0}")
    e(f"    v_lshlrev_b32 v{vT3}, 1, v{vX+4}")
    e(f"    v_xor_b32 v{vT3}, v{vT3}, v{vT0}")
    e(f"    v_lshlrev_b32 v{vT3}, 4, v{vT3}")
    e(f"    v_lshl_add_u32 v{vEr}, v{vT2}, 9, v{vT3}")
    e(f"    v_lshlrev_b32 v{vT3}, 5, v{vT2}")
    e(f"    v_add_u32 v{vMr}, {MLB}, v{vT3}")
    e(f"    v_lshlrev_b32 v{vT1}, 4, v{vX+4}")
    e(f"    v_lshl_add_u32 v{vOo}, v{vT2}, 8, v{vT1}")
    e(f"    s_mov_b32 s{OS}, s{sOUT}")
    e(f"    s_mov_b32 s{OS+1}, s{sOUT+1}")
    e(f"    s_mov_b32 s{OS+2}, 0x400000")
    e(f"    s_mov_b32 s{OS+3}, 0x20000")
    e("    s_waitcnt vmcnt(0)")
    e("L_sort:")
    ts(2)
    e(f"    s_movk_i32 s{sT0}, 2047")
    e(f"    v_add_u32 v{vS+1}, -1, v{vS}")
    for j in range(4):
        e(f"    v_add_u32 v{vS+4+j}, -1, v{vS+4+j}")
    e(f"    v_min_u32 v{vS+1}, s{sT0}, v{vS+1}")
    for j in range(4):
        e(f"    v_min_u32 v{vS+4+j}, s{sT0}, v{vS+4+j}")
    e(f"    v_lshl_or_b32 v{vS+1}, v{vS+1}, 4, v{vX+6}")
    for j in range(4):
        e(f"    v_lshl_add_u32 v{vS+4+j}, v{vS+4+j}, 4, v{vX+7}")
    for j in range(1, 4):
        e(f"    v_add_u32 v{vS+4+j}, {j}, v{vS+4+j}")
    for j in range(4):
        e(f"    v_sub_u32 v{vS+4+j}, v{vS+1}, v{vS+4+j}")
    for j in range(4):
        e(f"    v_lshrrev_b32 v{vS+4+j}, 31, v{vS+4+j}")
    e(f"    v_add_u32 v{vS+4}, v{vS+4}, v{vS+5}")
    e(f"    v_add3_u32 v{vS+4}, v{vS+4}, v{vS+6}, v{vS+7}")
    e("    s_nop 1")
    e(f"    v_add_u32_dpp v{vS+5}, v{vS+4}, v{vS+4} quad_perm:[1,0,3,2] row_mask:0xf bank_mask:0xf")
    e("    s_nop 1")
    e(f"    v_add_u32_dpp v{vS+4}, v{vS+5}, v{vS+5} quad_perm:[2,3,0,1] row_mask:0xf bank_mask:0xf")
    e(f"    v_cmp_eq_u32 s[{sM0}:{sM0+1}], s{sP}, v{vS+4}")
    e(f"    v_cmp_eq_u32 s[{sM1}:{sM1+1}], s{sTe}, v{vS+4}")
    e(f"    s_ff1_i32_b64 s{sTa}, s[{sM0}:{sM0+1}]")
    e(f"    s_ff1_i32_b64 s{sTb}, s[{sM1}:{sM1+1}]")
    e(f"    v_readlane_b32 s{sE1}, v{vS+1}, s{sTa}")
    e(f"    v_readlane_b32 s{sE2}, v{vS+1}, s{sTb}")
    e(f"    v_readlane_b32 s{sTc}, v{vS}, s{sTa}")
    e(f"    v_readlane_b32 s{sTd}, v{vS}, s{sTb}")
    e(f"    s_and_b32 s{sB1}, s{sE1}, 15")
    e(f"    s_and_b32 s{sB2}, s{sE2}, 15")
    e(f"    s_lshr_b32 s{sT1}, s{sE1}, 9")
    e(f"    s_lshr_b32 s{sT2}, s{sE2}, 9")
    e(f"    s_lshr_b32 s{sE1}, s{sE1}, 4")
    e(f"    s_lshr_b32 s{sE2}, s{sE2}, 4")
    e(f"    s_add_u32 s{sT1}, s{sT1}, 1")
    e(f"    s_add_u32 s{sT2}, s{sT2}, 1")
    e(f"    s_add_u32 s{sE1}, s{sE1}, 1")
    e(f"    s_add_u32 s{sE2}, s{sE2}, 1")
    e(f"    s_add_u32 s{sG}, s{sT1}, s{sT2}")
    e(f"    s_lshl_b32 s{sQo1}, s{sB1}, 5")
    e(f"    s_add_u32 s{sQo1}, s{sQo1}, s{sH}")
    e(f"    s_lshl_b32 s{sQo1}, s{sQo1}, 13")
    e(f"    s_lshl_b32 s{sQo2}, s{sB2}, 5")
    e(f"    s_add_u32 s{sQo2}, s{sQo2}, s{sH}")
    e(f"    s_lshl_b32 s{sQo2}, s{sQo2}, 13")
    e(f"    s_cmp_lg_u32 s{sWv}, 0")
    e("    s_cbranch_scc1 L_consumer")

    e(f"    s_lshl_b32 s{sTa}, s{sT1}, 1")
    e(f"    s_lshl_b32 s{sTb}, s{sB1}, 7")
    e(f"    s_lshl_b32 s{sTe}, s{sB2}, 7")
    e(f"    s_sub_u32 s{sTe}, s{sTe}, s{sTa}")
    masks = [sM0, sM1, 90, 92]
    for r in range(4):
        e(f"    v_cmp_gt_u32 s[{masks[r]}:{masks[r]+1}], s{sTa}, v{vX+r}")
    e(f"    v_mov_b32 v{vT1}, s{sTe}")
    e(f"    v_mov_b32 v{vT2}, s{sTb}")
    for r in range(4):
        e(f"    v_cndmask_b32 v{vT0}, v{vT1}, v{vT2}, s[{masks[r]}:{masks[r]+1}]")
        e(f"    v_add_u32 v{vT0}, v{vT0}, v{vX+r}")
        e(f"    v_min_u32 v{vT0}, s{sT0}, v{vT0}")
        e(f"    v_lshlrev_b32 v{vT0}, 2, v{vT0}")
        e(f"    global_load_dword v{vPg[r]}, v{vT0}, s[{sBT}:{sBT+1}] {spol}")
    for item in range(2):
        so = sQo1 if item == 0 else sQo2
        for half in range(2):
            e(f"    s_mov_b32 m0, {QB + item*8192 + half*4096}")
            e(f"    s_add_u32 s{sTd}, s{so}, {half*4096}")
            for i in range(4):
                off = f" offset:{i*1024}" if i else ""
                e(f"    buffer_load_dwordx4 v{vQo[i]}, s[{QS}:{QS+3}], s{sTd} offen{off} {pol} lds")
    e(f"    s_lshl_b32 s{sTc}, s{sT1}, 5")
    e(f"    s_add_u32 s{sTc}, s{sTc}, s{sE2}")
    e(f"    v_mov_b32 v{vT1}, s{sTc}")
    e(f"    v_mov_b32 v{vT2}, s{sE1}")
    for r in range(4):
        e(f"    v_cndmask_b32 v{vT0}, v{vT1}, v{vT2}, s[{masks[r]}:{masks[r]+1}]")
        e(f"    v_lshlrev_b32 v{vX+r}, 4, v{vX+r}")
        e(f"    v_sub_u32 v{vT0}, v{vT0}, v{vX+r}")
        e(f"    v_med3_i32 v{vT0}, v{vT0}, 0, 16")
        e(f"    v_lshlrev_b32 v{vNr[r]}, 13, v{vT0}")
    e(f"    s_add_u32 s{sTa}, s{sG}, 3")
    e(f"    s_lshr_b32 s{sN}, s{sTa}, 2")
    e(f"    s_sub_u32 s{sN}, s{sN}, 1")
    e(f"    s_and_b32 s{sN1}, s{sTa}, 3")
    if tailg:
        e(f"    s_sub_i32 s{sNt}, s{sN}, {tailg}")
    sWx, sAcc = 50, 51
    if wtab:
        wx = [int(round(x * 16)) for x in wtab]
        Wlo, Whi = min(wx) // 16, (max(wx) + 15) // 16
        e(f"    s_and_b32 s{sTa}, s2, 7")
        e(f"    s_mov_b32 s{sWx}, {wx[0]}")
        for x in range(1, 8):
            e(f"    s_cmp_eq_u32 s{sTa}, {x}")
            e(f"    s_cselect_b32 s{sWx}, {wx[x]}, s{sWx}")
        e(f"    s_mov_b32 s{sAcc}, 8")
    e(f"    s_mov_b32 s{sKc}, 0")
    e(f"    s_mov_b32 s{sIdx}, 0")
    e(f"    s_mov_b32 s{sSlot}, 0")
    e(f"    s_movk_i32 s{sT0}, 0x803")
    e("    s_waitcnt vmcnt(16)")
    ts(3)
    for r in range(4):
        e(f"    v_min_u32 v{vPg[r]}, s{sT0}, v{vPg[r]}")
        e(f"    v_lshlrev_b32 v{vPg[r]}, 17, v{vPg[r]}")

    def page_setup(isK, j):
        out = []
        if isK:
            out.append(f"    v_readlane_b32 s{sPg[j]}, v{vPg[0]}, s{sIdx}")
            out.append(f"    v_readlane_b32 s{sNr[j]}, v{vNr[0]}, s{sIdx}")
            out.append(f"    s_add_u32 s{sIdx}, s{sIdx}, 1")
        base = sKh if isK else sVh
        c = (j >> 1) * 32768 + (j & 1) * 4096 + (0 if isK else 8192)
        out.append(f"    s_add_u32 m0, s{sSlot}, {c}")
        out.append(f"    s_add_u32 s{KS}, s{base}, s{sPg[j]}")
        out.append(f"    s_addc_u32 s{KS+1}, s{base+1}, 0")
        out.append(f"    s_mov_b32 s{KS+2}, s{sNr[j]}")
        return out

    uid = [0]

    def prev_barrier():
        uid[0] += 1
        return [f"    s_cmp_eq_u32 s{sKc}, 0",
                f"    s_cbranch_scc1 L_nb{uid[0]}",
                "    s_barrier",
                f"L_nb{uid[0]}:"]

    def group_code(nt, Wn, last):
        out = []
        seq = [(True, j, i) for j in range(2 * nt) for i in range(4)] + \
              [(False, j, i) for j in range(2 * nt) for i in range(4)]
        pend = [(0, "prev"), (8 * nt, "K")]
        if last:
            pend.append((16 * nt, "V"))
        for n, (isK, j, i) in enumerate(seq):
            if i == 0:
                out += page_setup(isK, j)
            out.append(f"    s_waitcnt vmcnt({Wn-1})")
            while pend and n - pend[0][0] >= Wn - 1:
                out += prev_barrier() if pend[0][1] == "prev" else ["    s_barrier"]
                pend.pop(0)
            vo = vKo if isK else vVo
            off = f" offset:{i*1024}" if i else ""
            out.append(f"    buffer_load_dwordx4 v{vo[i]}, s[{KS}:{KS+3}], 0 offen{off} {pol} lds")
        if last:
            for (pos, name) in pend:
                out.append(f"    s_waitcnt vmcnt({len(seq)-pos})")
                out += prev_barrier() if name == "prev" else ["    s_barrier"]
        else:
            assert not pend
        return out

    e("    .p2align 6")
    e("L_ld_loop:")
    e(f"    s_cmp_lg_u32 s{sIdx}, 64")
    e("    s_cbranch_scc1 L_ld_noshift")
    for r in range(3):
        e(f"    v_mov_b32 v{vPg[r]}, v{vPg[r+1]}")
        e(f"    v_mov_b32 v{vNr[r]}, v{vNr[r+1]}")
    e(f"    s_mov_b32 s{sIdx}, 0")
    e("L_ld_noshift:")
    e(f"    s_cmp_ge_u32 s{sKc}, s{sN}")
    e("    s_cbranch_scc1 L_ld_last")
    if tailg:
        e(f"    s_cmp_ge_i32 s{sKc}, s{sNt}")
        e("    s_cbranch_scc1 L_ld_tail")
    if wtab:
        e(f"    s_add_u32 s{sAcc}, s{sAcc}, s{sWx}")
        e(f"    s_lshr_b32 s{sTa}, s{sAcc}, 4")
        e(f"    s_and_b32 s{sAcc}, s{sAcc}, 15")
        for w in range(Wlo + 1, Whi + 1):
            e(f"    s_cmp_eq_u32 s{sTa}, {w}")
            e(f"    s_cbranch_scc1 L_ld_w{w}")
        for w in range(Wlo, Whi + 1):
            e(f"L_ld_w{w}:")
            L.extend(group_code(4, w, False))
            e(f"    s_xor_b32 s{sSlot}, s{sSlot}, 16384")
            e(f"    s_add_u32 s{sKc}, s{sKc}, 1")
            e("    s_branch L_ld_loop")
    else:
        L.extend(group_code(4, W, False))
        e(f"    s_xor_b32 s{sSlot}, s{sSlot}, 16384")
        e(f"    s_add_u32 s{sKc}, s{sKc}, 1")
        e("    s_branch L_ld_loop")
    if tailg:
        e("L_ld_tail:")
        L.extend(group_code(4, min(Wtail, 32), False))
        e(f"    s_xor_b32 s{sSlot}, s{sSlot}, 16384")
        e(f"    s_add_u32 s{sKc}, s{sKc}, 1")
        e("    s_branch L_ld_loop")
    e("L_ld_last:")
    for nt in (1, 2, 3):
        e(f"    s_cmp_eq_u32 s{sN1}, {nt-1}")
        e(f"    s_cbranch_scc1 L_ld_last{nt}")
    for nt in (4, 3, 2, 1):
        e(f"L_ld_last{nt}:")
        L.extend(group_code(nt, min(Wtail, 63), True))
        if diag:
            e("    s_branch L_ld_end")
        else:
            e("    s_endpgm")
    if diag:
        e("L_ld_end:")
        ts(6)
        ts(7)
        diag_store()
        e("    s_endpgm")

    def write_item(item):
        out = []
        m, l = (vM1, vL1) if item == 0 else (vM, vLs)
        sh = sH1 if item == 0 else sH2
        out.append(f"    v_mov_b32 v{vT0}, v{l}")
        out.append(f"    v_add_u32 v{vX}, s{sh}, v{vEw}")
        for i in range(1, 4):
            out.append(f"    v_xor_b32 v{vX+i}, {i<<5}, v{vX}")
        out.append(f"    v_permlane32_swap_b32 v{vT0}, v{l}")
        out.append(f"    v_add_f32 v{l}, v{l}, v{vT0}")
        for n in range(4):
            for i in range(4):
                r = 16 * n + 4 * i
                src = f"a[{r}:{r+3}]" if item == 0 else f"v[{vO+r}:{vO+r+3}]"
                out.append(f"    ds_write_b128 v{vX+i}, {src} offset:{n*128}")
        out.append(f"    ds_write_b64 v{vMw}, v[{m}:{l}] offset:{item*1024}")
        return out

    def combine_item(item, d, ml, o):
        out = []
        sh = sH1 if item == 0 else sH2
        sc = sC1 if item == 0 else sC2
        so = sQo1 if item == 0 else sQo2
        out.append(f"    ds_read_b128 v[{ml}:{ml+3}], v{vMr} offset:{item*1024}")
        out.append(f"    ds_read_b128 v[{ml+4}:{ml+7}], v{vMr} offset:{item*1024+16}")
        out.append(f"    v_add_u32 v{vX}, s{sh}, v{vEr}")
        out.append(f"    v_xor_b32 v{vX+1}, 16, v{vX}")
        out.append(f"    v_add_u32 v{vX+2}, 0x10000, v{vX}")
        out.append(f"    v_add_u32 v{vX+3}, 0x10000, v{vX+1}")
        nread = 0
        for w in range(4):
            for e1 in range(2):
                for e0 in range(2):
                    r = d + 16 * w + 8 * e1 + 4 * e0
                    a = vX + e0 + 2 * (w >> 1)
                    off = (w & 1) * 32768 + e1 * 256
                    out.append(f"    ds_read_b128 v[{r}:{r+3}], v{a} offset:{off}")
                    nread += 1
            if w == 2:
                out.append(f"    s_waitcnt lgkmcnt({0 if diag else nread})")
                out.append(f"    v_max3_f32 v{vT0}, v{ml}, v{ml+2}, v{ml+4}")
                out.append(f"    v_max_f32 v{vT0}, v{vT0}, v{ml+6}")
        for w in range(4):
            out.append(f"    v_sub_f32 v{ml+2*w}, v{ml+2*w}, v{vT0}")
        for w in range(4):
            out.append(f"    v_mul_f32 v{ml+2*w}, s{sc}, v{ml+2*w}")
        for w in range(4):
            out.append(f"    v_exp_f32 v{ml+2*w}, v{ml+2*w}")
        out.append("    s_nop 0")
        out.append(f"    v_mul_f32 v{vT0}, v{ml}, v{ml+1}")
        for w in range(1, 4):
            out.append(f"    v_fma_f32 v{vT0}, v{ml+2*w}, v{ml+2*w+1}, v{vT0}")
        out.append(f"    v_rcp_f32 v{vT0}, v{vT0}")
        out.append("    s_nop 0")
        for w in range(4):
            out.append(f"    v_mul_f32 v{ml+2*w}, v{ml+2*w}, v{vT0}")
        for w in range(4):
            out.append(f"    s_waitcnt lgkmcnt({12-4*w})")
            for i in range(8):
                s = d + 16 * w + 2 * i
                if w == 0:
                    out.append(f"    v_pk_mul_f32 v[{d+2*i}:{d+2*i+1}], v[{s}:{s+1}], v[{ml}:{ml+1}] op_sel_hi:[1,0]")
                else:
                    out.append(f"    v_pk_fma_f32 v[{d+2*i}:{d+2*i+1}], v[{s}:{s+1}], v[{ml+2*w}:{ml+2*w+1}], v[{d+2*i}:{d+2*i+1}] op_sel_hi:[1,0,1]")
        for i in range(4):
            out.append(f"    v_cvt_pk_bf16_f32 v{o+i}, v{d+2*i}, v{d+2*i+1}")
        out.append(f"    buffer_store_dwordx4 v[{o}:{o+3}], v{vOo}, s[{OS}:{OS+3}], s{so} offen {opol}")
        for i in range(4, 8):
            out.append(f"    v_cvt_pk_bf16_f32 v{o+i}, v{d+2*i}, v{d+2*i+1}")
        out.append(f"    buffer_store_dwordx4 v[{o+4}:{o+7}], v{vOo}, s[{OS}:{OS+3}], s{so} offen offset:128 {opol}")
        return out

    e("L_consumer:")
    if cpre:
        e(f"    s_getpc_b64 s[{sM0}:{sM0+1}]")
        e("L_pc:")
        e(f"    s_add_u32 s{sM0}, s{sM0}, L_ld_loop-L_pc")
        e(f"    s_addc_u32 s{sM0+1}, s{sM0+1}, -1")
        e(f"    s_lshl_b32 s{sT0}, s{sW}, 13")
        e(f"    v_lshl_add_u32 v{vT0}, v{vL}, 7, s{sT0}")
        e(f"    v_min_u32 v{vT0}, L_done-L_ld_loop, v{vT0}")
        e(f"    global_load_dword v12, v{vT0}, s[{sM0}:{sM0+1}]")
    e(f"    s_cmp_gt_i32 s{sTc}, 0")
    e(f"    s_cselect_b32 s{sC1}, {CSC:#x}, 0")
    e(f"    s_cmp_gt_i32 s{sTd}, 0")
    e(f"    s_cselect_b32 s{sC2}, {CSC:#x}, 0")
    e(f"    s_mov_b32 s{sC}, s{sC1}")
    e(f"    s_sub_u32 s{sT0}, 3, s{sW}")
    e(f"    s_add_u32 s{sN1}, s{sT1}, s{sT0}")
    e(f"    s_add_u32 s{sN}, s{sG}, s{sT0}")
    e(f"    s_lshr_b32 s{sN1}, s{sN1}, 2")
    e(f"    s_lshr_b32 s{sN}, s{sN}, 2")
    e(f"    s_sub_u32 s{sTa}, s{sT1}, 1")
    e(f"    s_lshl_b32 s{sTb}, s{sTa}, 5")
    e(f"    s_sub_u32 s{sNv}, s{sE1}, s{sTb}")
    e(f"    s_lshr_b32 s{sMk}, s{sTa}, 2")
    e(f"    s_and_b32 s{sTa}, s{sTa}, 3")
    e(f"    s_cmp_eq_u32 s{sTa}, s{sW}")
    e(f"    s_cselect_b32 s{sMk}, s{sMk}, -1")
    e(f"    s_sub_u32 s{sTa}, s{sT2}, 1")
    e(f"    s_lshl_b32 s{sTb}, s{sTa}, 5")
    e(f"    s_sub_u32 s{sNv2}, s{sE2}, s{sTb}")
    e(f"    s_sub_u32 s{sTa}, s{sG}, 1")
    e(f"    s_lshr_b32 s{sMk2}, s{sTa}, 2")
    e(f"    s_and_b32 s{sH2}, s{sMk2}, 1")
    e(f"    s_lshl_b32 s{sH2}, s{sH2}, 14")
    e(f"    s_xor_b32 s{sH1}, s{sH2}, 16384")
    if early:
        e(f"    s_lshl_b32 s{sTb}, s{sMk2}, 2")
        e(f"    s_cmp_le_u32 s{sT1}, s{sTb}")
        e(f"    s_cselect_b32 s{sEk}, s{sMk2}, -1")
    else:
        e(f"    s_mov_b32 s{sEk}, -1")
    e(f"    s_add_u32 s{sG}, s{sMk2}, 1")
    e(f"    s_and_b32 s{sTa}, s{sTa}, 3")
    e(f"    s_cmp_eq_u32 s{sTa}, s{sW}")
    e(f"    s_cselect_b32 s{sMk2}, s{sMk2}, -1")
    e(f"    s_mov_b32 s{sSlot}, s{sRing0}")
    for i in range(64):
        e(f"    v_mov_b32 v{vO+i}, 0")
    e(f"    v_mov_b32 v{vM}, {NEG:#x}")
    e(f"    v_mov_b32 v{vLs}, 0")
    e(f"    s_mov_b32 s{sKc}, 0")
    e(f"    s_mov_b32 s{sTe}, {QB}")
    ts(3)

    e("    .p2align 6")
    e("L_loop:")
    e(f"    s_cmp_eq_u32 s{sKc}, s{sN1}")
    e("    s_cbranch_scc1 L_switch")
    e("L_loop_a:")
    e(f"    s_cmp_eq_u32 s{sKc}, s{sEk}")
    e("    s_cbranch_scc1 L_early_w")
    e("L_loop_b:")
    e(f"    s_cmp_ge_u32 s{sKc}, s{sN}")
    e("    s_cbranch_scc1 L_fin")
    e(f"    v_add_u32 v{vA[0]}, s{sSlot}, v{vKrd}")
    for j in range(1, 8):
        e(f"    v_xor_b32 v{vA[j]}, {j<<5}, v{vA[0]}")
    e("    s_barrier")
    if diag:
        e(f"    s_cmp_lg_u32 s{sKc}, 0")
        e("    s_cbranch_scc1 L_nots5")
        ts(5)
        e("L_nots5:")
    e(f"    s_cmp_lg_u32 s{sTe}, 0")
    e("    s_cbranch_scc1 L_readq")
    e("L_noq:")
    for j in range(8):
        e(f"    ds_read_b128 v[{vF+4*j}:{vF+4*j+3}], v{vA[j]}")
    for j in range(8):
        e(f"    s_waitcnt lgkmcnt({0 if diag else 7-j})")
        c = "0" if j == 0 else f"v[{vS}:{vS+15}]"
        e(f"    v_mfma_f32_32x32x16_bf16 v[{vS}:{vS+15}], v[{vF+4*j}:{vF+4*j+3}], v[{vQ+4*j}:{vQ+4*j+3}], {c}")
    e(f"    s_add_u32 s{sT0}, s{sSlot}, 8192")
    e(f"    v_add_u32 v{vA[0]}, s{sT0}, v{vVrd}")
    for n in range(1, 4):
        e(f"    v_xor_b32 v{vA[n]}, {n<<6}, v{vA[0]}")
    e(f"    s_xor_b32 s{sSlot}, s{sSlot}, 16384")
    e("    s_nop 3")
    e(f"    s_cmp_eq_u32 s{sKc}, s{sMk}")
    e("    s_cbranch_scc1 L_mask")
    e("L_nomask:")
    e(f"    v_max3_f32 v{vT0}, v{vS}, v{vS+1}, v{vS+2}")
    e(f"    v_max3_f32 v{vT1}, v{vS+3}, v{vS+4}, v{vS+5}")
    e(f"    v_max3_f32 v{vT2}, v{vS+6}, v{vS+7}, v{vS+8}")
    e(f"    v_max3_f32 v{vT3}, v{vS+9}, v{vS+10}, v{vS+11}")
    e(f"    v_max3_f32 v{vT0}, v{vT0}, v{vS+12}, v{vS+13}")
    e(f"    v_max3_f32 v{vT1}, v{vT1}, v{vS+14}, v{vS+15}")
    e(f"    v_max3_f32 v{vT2}, v{vT2}, v{vT3}, v{vM}")
    e(f"    v_max3_f32 v{vT0}, v{vT0}, v{vT1}, v{vT2}")
    e(f"    v_mov_b32 v{vT1}, v{vT0}")
    e("    s_nop 1")
    e(f"    v_permlane32_swap_b32 v{vT0}, v{vT1}")
    e(f"    v_max_f32 v{vT0}, v{vT0}, v{vT1}")
    e(f"    v_sub_f32 v{vT1}, v{vM}, v{vT0}")
    e(f"    v_mul_f32 v{vT2}, s{sC}, v{vT0}")
    e(f"    v_mul_f32 v{vT1}, s{sC}, v{vT1}")
    e(f"    v_mov_b32 v{vM}, v{vT0}")
    e(f"    v_exp_f32 v{vAl}, v{vT1}")
    for i in range(16):
        e(f"    v_fma_f32 v{vS+i}, v{vS+i}, s{sC}, -v{vT2}")
    for i in range(16):
        e(f"    v_exp_f32 v{vS+i}, v{vS+i}")
    for i in range(32):
        e(f"    v_pk_mul_f32 v[{vO+2*i}:{vO+2*i+1}], v[{vO+2*i}:{vO+2*i+1}], v[{vAl}:{vAl+1}] op_sel_hi:[1,0]")
    for i in range(8):
        e(f"    v_cvt_pk_bf16_f32 v{vP_+i}, v{vS+2*i}, v{vS+2*i+1}")
    for i in range(4):
        e(f"    v_pk_add_f32 v[{vS+2*i}:{vS+2*i+1}], v[{vS+2*i}:{vS+2*i+1}], v[{vS+8+2*i}:{vS+8+2*i+1}]")
    for i in range(2):
        e(f"    v_pk_add_f32 v[{vS+2*i}:{vS+2*i+1}], v[{vS+2*i}:{vS+2*i+1}], v[{vS+4+2*i}:{vS+4+2*i+1}]")
    e(f"    v_pk_add_f32 v[{vS}:{vS+1}], v[{vS}:{vS+1}], v[{vS+2}:{vS+3}]")
    e(f"    v_fma_f32 v{vLs}, v{vLs}, v{vAl}, v{vS}")
    e(f"    v_add_f32 v{vLs}, v{vLs}, v{vS+1}")
    e(f"    s_cmp_eq_u32 s{sKc}, s{sEk}")
    e("    s_cbranch_scc1 L_early_c")
    e("L_vphase:")
    e("    s_barrier")
    order = [(m, n) for m in range(2) for n in range(4)]
    for (m, n) in order:
        for jj in range(2):
            r = vF + 8 * n + 4 * m + 2 * jj
            e(f"    ds_read_b64_tr_b16 v[{r}:{r+1}], v{vA[n]} offset:{m*4096+jj*2048}")
    for idx, (m, n) in enumerate(order):
        e(f"    s_waitcnt lgkmcnt({14-2*idx})")
        a = vF + 8 * n + 4 * m
        e(f"    v_mfma_f32_32x32x16_bf16 v[{vO+16*n}:{vO+16*n+15}], v[{a}:{a+3}], v[{vP_+4*m}:{vP_+4*m+3}], v[{vO+16*n}:{vO+16*n+15}]")
    e(f"    s_add_u32 s{sKc}, s{sKc}, 1")
    e("    s_branch L_loop")

    e("L_readq:")
    e(f"    v_add_u32 v{vX}, s{sTe}, v{vKrd}")
    for j in range(1, 8):
        e(f"    v_xor_b32 v{vX+j}, {j<<5}, v{vX}")
    for j in range(8):
        e(f"    ds_read_b128 v[{vQ+4*j}:{vQ+4*j+3}], v{vX+j}")
    e(f"    s_mov_b32 s{sTe}, 0")
    e("    s_waitcnt lgkmcnt(0)")
    e("    s_branch L_noq")

    e("L_mask:")
    if strided:
        e(f"    v_lshrrev_b32 v{vT0}, 2, v{vHH4}")
        e(f"    v_sub_u32 v{vT0}, s{sNv}, v{vT0}")
    else:
        e(f"    v_sub_u32 v{vT0}, s{sNv}, v{vHH4}")
    e(f"    v_mov_b32 v{vT1}, {NEG:#x}")
    for v in range(16):
        t = 8 * (v >> 2) + (v & 3)
        if strided:
            t = 16 * (v >> 3) + 2 * ((v >> 2) & 1) + 4 * (v & 3)
        e(f"    v_cmp_lt_i32 vcc, {t}, v{vT0}")
        e("    s_nop 1")
        e(f"    v_cndmask_b32 v{vS+v}, v{vT1}, v{vS+v}, vcc")
    e("    s_branch L_nomask")

    e("L_switch:")
    e("    s_nop 7")
    e("    s_nop 7")
    for i in range(64):
        e(f"    v_accvgpr_write_b32 a{i}, v{vO+i}")
    for i in range(64):
        e(f"    v_mov_b32 v{vO+i}, 0")
    e(f"    v_mov_b32 v{vM1}, v{vM}")
    e(f"    v_mov_b32 v{vL1}, v{vLs}")
    e(f"    v_mov_b32 v{vM}, {NEG:#x}")
    e(f"    v_mov_b32 v{vLs}, 0")
    e(f"    s_mov_b32 s{sC}, s{sC2}")
    e(f"    s_mov_b32 s{sN1}, -1")
    e(f"    s_mov_b32 s{sMk}, s{sMk2}")
    e(f"    s_mov_b32 s{sNv}, s{sNv2}")
    e(f"    s_mov_b32 s{sTe}, {QB+8192}")
    e("    s_branch L_loop_a")

    e("L_early_w:")
    L.extend(write_item(0))
    e("    s_waitcnt lgkmcnt(0)")
    e("    s_branch L_loop_b")
    e("L_early_c:")
    L.extend(combine_item(0, vQ, vS, vS + 8))
    e(f"    s_cmp_lt_u32 s{sKc}, s{sN}")
    e("    s_cbranch_scc1 L_vphase")
    e("    s_branch L_fin_v")

    e("L_fin:")
    e(f"    s_cmp_ge_u32 s{sKc}, s{sG}")
    e("    s_cbranch_scc1 L_epi")
    e("    s_barrier")
    e(f"    s_cmp_eq_u32 s{sKc}, s{sEk}")
    e("    s_cbranch_scc1 L_early_c")
    e("L_fin_v:")
    e("    s_barrier")
    e("L_epi:")
    ts(6)
    if noepi:
        e("    s_nop 7")
        e("    s_nop 7")
        for i in range(8):
            e(f"    v_cvt_pk_bf16_f32 v{vP_+i}, v{vO+2*i}, v{vO+2*i+1}")
        for so in (sQo1, sQo2):
            e(f"    buffer_store_dwordx4 v[{vP_}:{vP_+3}], v{vOo}, s[{OS}:{OS+3}], s{so} offen {opol}")
            e(f"    buffer_store_dwordx4 v[{vP_+4}:{vP_+7}], v{vOo}, s[{OS}:{OS+3}], s{so} offen offset:128 {opol}")
        e("    s_endpgm")
    e(f"    s_cmp_lg_u32 s{sEk}, -1")
    e("    s_cbranch_scc1 L_epi2")
    L.extend(write_item(0))
    e("    s_waitcnt lgkmcnt(0)")
    e("    s_barrier")
    L.extend(combine_item(0, vQ, vS, vS + 8))
    e("L_epi2:")
    e("    s_nop 3")
    L.extend(write_item(1))
    e("    s_waitcnt lgkmcnt(0)")
    e("    s_barrier")
    L.extend(combine_item(1, vQ, vS, vP_))
    if diag:
        ts(4)
        e("    s_waitcnt vmcnt(0)")
        ts(7)
        diag_store()
    if fixt:
        e("    s_waitcnt vmcnt(0)")
        e("L_hold:")
        e("    s_memrealtime s[70:71]")
        e("    s_waitcnt lgkmcnt(0)")
        e("    s_sub_u32 s70, s70, s98")
        e(f"    s_cmp_lt_u32 s70, {fixt}")
        e("    s_cbranch_scc1 L_hold")
    e("L_done:")
    e("    s_endpgm")
    e('.section .rodata,"a"')
    e(".p2align 6")
    e(f".amdhsa_kernel {NAME}_kernel")
    e(f"  .amdhsa_next_free_vgpr {NV+64}")
    e("  .amdhsa_next_free_sgpr 100")
    e(f"  .amdhsa_accum_offset {NV}")
    e("  .amdhsa_group_segment_fixed_size 0")
    e("  .amdhsa_kernarg_size 64")
    e("  .amdhsa_user_sgpr_count 2")
    e("  .amdhsa_user_sgpr_kernarg_segment_ptr 1")
    e("  .amdhsa_system_sgpr_workgroup_id_x 1")
    e("  .amdhsa_float_denorm_mode_32 3")
    e(".end_amdhsa_kernel")
    return "\n".join(L) + "\n"


if __name__ == "__main__":
    ap = argparse.ArgumentParser()
    ap.add_argument("-o", default="/dev/stdout")
    ap.add_argument("--W", type=int, default=21)
    ap.add_argument("--Wtail", type=int, default=None)
    ap.add_argument("--tailg", type=int, default=0)
    ap.add_argument("--pol", default="nt")
    ap.add_argument("--spol", default="")
    ap.add_argument("--wtab", default=None)
    ap.add_argument("--cpre", type=int, default=0)
    ap.add_argument("--noepi", action="store_true")
    ap.add_argument("--std", action="store_true")
    ap.add_argument("--opol", default="")
    ap.add_argument("--mapping", type=int, default=0)
    ap.add_argument("--prio", type=int, default=3)
    ap.add_argument("--diag", action="store_true")
    ap.add_argument("--noearly", action="store_true")
    ap.add_argument("--shortfirst", action="store_true")
    ap.add_argument("--fixt", type=int, default=0)
    a = ap.parse_args()
    open(a.o, "w").write(gen(W=a.W, pol=a.pol, mapping=a.mapping, diag=a.diag, spol=a.spol,
                             opol=a.opol, Wtail=a.Wtail, tailg=a.tailg, prio=a.prio,
                             early=not a.noearly, fixt=a.fixt, shortfirst=a.shortfirst, cpre=a.cpre, noepi=a.noepi, strided=not a.std,
                             wtab=None if a.wtab is None else [float(x) for x in a.wtab.split(",")]))
```

```python
import argparse
import struct
from gen import HEADER, NAME, f2u


def gen(W=21, pol="nt", mapping=0, diag=False, opol="", Wtail=None, tailg=0, prio=3,
        spol="", early=True, fixt=0, shortfirst=False, wtab=None, cpre=0, noepi=False, strided=True, enc=None):
    L = []
    e = L.append
    RING = 32768
    QB = 4 * RING
    MLB = QB + 16384
    LDS = MLB + 2048
    assert 2 <= W <= 32
    if Wtail is None:
        Wtail = W
    CSC = f2u((128 ** -0.5) * 1.4426950408889634)
    NEG = f2u(-1e30)

    sQ, sK, sV, sBT = 4, 6, 8, 10
    sCL, sOUT = 12, 14
    sDBG, sWS = 16, 18
    KS, QS, OS = 20, 28, 32
    sKh, sVh = 36, 38
    sWv, sP, sH = 40, 41, 42
    sB1, sB2, sE1, sE2, sT1, sT2 = 43, 44, 45, 46, 47, 48
    sC1, sC2, sC = 49, 50, 51
    sN1, sN, sKc = 52, 53, 54
    sSlot, sG, sRing0 = 55, 56, 57
    sT0, sTa, sTb, sTc, sTd, sTe = 58, 59, 60, 61, 62, 63
    sM0, sM1 = 64, 66
    sW = 68
    sIdx = 69
    sTS = 70
    sQo1, sQo2 = 86, 87
    sMk, sNv, sMk2, sNv2 = 24, 25, 26, 27
    sEk, sH1, sH2 = 28, 29, 30
    sPg = [24, 25, 26, 27, 32, 33, 34, 35]
    sNr = [90, 91, 92, 93, 94, 95, 96, 97]
    sNt = 49

    vL = 1
    vKo = [2, 3, 4, 5]
    vVo = [6, 7, 8, 9]
    vKrd, vVrd = 10, 11
    vA = list(range(14, 22))
    vM, vLs, vM1, vL1 = 22, 23, 24, 25
    vAl = 26
    vHH4 = 27
    vT0, vT1, vT2, vT3 = 28, 29, 30, 31
    vS = 32
    vP_ = 48
    vX = 56
    vQ = 64
    vF = 96
    vO = 128
    NV = 192
    vPg = [64, 65, 66, 67]
    vNr = [68, 69, 70, 71]
    vQo = [72, 73, 74, 75]
    vEw, vEr, vMw, vMr, vOo = 2, 3, 4, 5, 6

    def ts(i):
        if diag:
            e(f"    s_memrealtime s[{sTS+2*i}:{sTS+2*i+1}]")

    def hold(role):
        if enc[0] != role:
            return
        idx, mult = int(enc[1]), int(enc[2])
        e("    s_waitcnt vmcnt(0) lgkmcnt(0)")
        e(f"    s_sub_u32 s{sT0}, s{sTS+2*idx}, s{sTS}")
        if mult < 0:
            e(f"    s_sub_u32 s{sT0}, 8000, s{sT0}")
        e(f"    s_min_u32 s{sT0}, s{sT0}, 10000")
        e(f"    s_mul_i32 s{sT0}, s{sT0}, {abs(mult)}")
        e(f"    s_add_u32 s{sT0}, s{sT0}, 10000")
        e(f"L_hold{role}:")
        e("    s_sleep 8")
        e("    s_memrealtime s[88:89]")
        e("    s_waitcnt lgkmcnt(0)")
        e(f"    s_sub_u32 s88, s88, s{sTS}")
        e(f"    s_cmp_lt_u32 s88, s{sT0}")
        e(f"    s_cbranch_scc1 L_hold{role}")

    def diag_store(role):
        if enc:
            hold(role)
            return
        e("    s_getreg_b32 s88, hwreg(HW_REG_XCC_ID)")
        e("    s_getreg_b32 s89, hwreg(HW_REG_HW_ID)")
        e("    s_waitcnt lgkmcnt(0)")
        e(f"    s_mul_i32 s{sT0}, s2, 5")
        e(f"    s_add_u32 s{sT0}, s{sT0}, s{sWv}")
        e(f"    s_lshl_b32 s{sT0}, s{sT0}, 7")
        e(f"    v_mov_b32 v{vT0}, s{sT0}")
        for i in range(4):
            for j in range(4):
                e(f"    v_mov_b32 v{vS+j}, s{sTS+4*i+j}")
            e(f"    global_store_dwordx4 v{vT0}, v[{vS}:{vS+3}], s[{sWS}:{sWS+1}] offset:{16*i}")
            e("    s_nop 1")
        e(f"    v_mov_b32 v{vS}, s88")
        e(f"    v_mov_b32 v{vS+1}, s89")
        e(f"    v_mov_b32 v{vS+2}, s{sG}")
        e(f"    v_mov_b32 v{vS+3}, s{sB1}")
        e(f"    global_store_dwordx4 v{vT0}, v[{vS}:{vS+3}], s[{sWS}:{sWS+1}] offset:64")

    e(HEADER.rstrip())
    e(f"; @launch grid=(256,1,1) block=(320,1,1) lds={LDS}")
    e('.amdgcn_target "amdgcn-amd-amdhsa--gfx950"')
    e(".text")
    e(f".globl {NAME}_kernel")
    e(".p2align 8")
    e(f".type {NAME}_kernel,@function")
    e(f"{NAME}_kernel:")
    e("    s_cmp_ge_u32 s2, 256")
    e("    s_cbranch_scc1 L_done")
    if diag:
        for i in range(16):
            e(f"    s_mov_b32 s{sTS+i}, 0")
    ts(0)
    if fixt:
        e("    s_memrealtime s[98:99]")
    e(f"    s_load_dwordx4 s[12:15], s[0:1], 32")
    e(f"    s_load_dwordx8 s[4:11], s[0:1], 0")
    if diag:
        e(f"    s_load_dwordx4 s[16:19], s[0:1], 48")
    e(f"    v_lshrrev_b32 v{vT0}, 6, v0")
    e(f"    v_and_b32 v{vL}, 63, v0")
    e(f"    v_readfirstlane_b32 s{sWv}, v{vT0}")
    if mapping == 0:
        e(f"    s_and_b32 s{sP}, s2, 7")
        e(f"    s_lshr_b32 s{sH}, s2, 3")
    else:
        e(f"    s_lshr_b32 s{sP}, s2, 5")
        e(f"    s_and_b32 s{sH}, s2, 31")
    e(f"    v_and_b32 v{vX+0}, 60, v{vL}")
    e(f"    v_and_b32 v{vX+1}, 3, v{vL}")
    e(f"    v_lshlrev_b32 v{vX+2}, 4, v{vX+1}")
    e(f"    v_lshlrev_b32 v{vX+3}, 7, v{vL}")
    e(f"    v_lshrrev_b32 v{vX+6}, 2, v{vL}")
    e(f"    v_lshlrev_b32 v{vX+7}, 2, v{vX+1}")
    e(f"    s_sub_u32 s{sTe}, 15, s{sP}")
    if shortfirst:
        e(f"    s_mov_b32 s{sT0}, s{sP}")
        e(f"    s_mov_b32 s{sP}, s{sTe}")
        e(f"    s_mov_b32 s{sTe}, s{sT0}")
    e(f"    s_sub_u32 s{sW}, s{sWv}, 1")
    e(f"    s_cmp_lg_u32 s{sWv}, 0")
    e("    s_waitcnt lgkmcnt(0)")
    ts(1)
    e(f"    global_load_dword v{vS}, v{vX+0}, s[{sCL}:{sCL+1}] {spol}")
    e(f"    global_load_dwordx4 v[{vS+4}:{vS+7}], v{vX+2}, s[{sCL}:{sCL+1}] {spol}")
    e("    s_cbranch_scc1 L_cons_pre")
    e(f"    global_load_dword v{vS+8}, v{vX+3}, s[{sBT}:{sBT+1}] {spol}")
    if prio:
        e(f"    s_setprio {prio}")
    e(f"    v_lshrrev_b32 v{vT0}, 4, v{vL}")
    e(f"    v_and_b32 v{vT1}, 15, v{vL}")
    e(f"    v_lshlrev_b32 v{vT2}, 2, v{vT0}")
    e(f"    v_xor_b32 v{vT1}, v{vT1}, v{vT2}")
    e(f"    v_lshlrev_b32 v{vT1}, 4, v{vT1}")
    e(f"    v_lshl_add_u32 v{vVo[0]}, v{vT0}, {15 if strided else 13}, v{vT1}")
    for i in range(1, 4):
        e(f"    v_add_u32 v{vVo[i]}, {i*((8192 if strided else 32768)-1024)}, v{vVo[0]}")
    e(f"    v_mov_b32 v{vKo[0]}, v{vVo[0]}")
    for i in range(1, 4):
        e(f"    v_xor_b32 v{vKo[i]}, {i*16}, v{vVo[i]}")
    e(f"    v_lshl_add_u32 v{vQo[0]}, v{vT0}, 8, v{vT1}")
    for i in range(1, 4):
        e(f"    v_xor_b32 v{vQo[i]}, {i*16}, v{vQo[0]}")
    e(f"    s_lshl_b32 s{sT0}, s{sH}, 8")
    e(f"    s_add_u32 s{sKh}, s{sK}, s{sT0}")
    e(f"    s_addc_u32 s{sKh+1}, s{sK+1}, 0")
    e(f"    s_add_u32 s{sVh}, s{sV}, s{sT0}")
    e(f"    s_addc_u32 s{sVh+1}, s{sV+1}, 0")
    e(f"    s_mov_b32 s{KS+3}, 0x20000")
    e(f"    s_mov_b32 s{QS}, s{sQ}")
    e(f"    s_mov_b32 s{QS+1}, s{sQ+1}")
    e(f"    s_mov_b32 s{QS+2}, 0x400000")
    e(f"    s_mov_b32 s{QS+3}, 0x20000")
    for r in range(4):
        e(f"    v_add_u32 v{vX+r}, {64*r}, v{vL}")
    e("    s_waitcnt vmcnt(1)")
    e("    s_branch L_sort")
    e("L_cons_pre:")
    e(f"    v_and_b32 v{vT0}, 31, v{vL}")
    e(f"    v_lshrrev_b32 v{vT3}, 5, v{vL}")
    e(f"    v_bfe_u32 v{vT2}, v{vL}, 2, 2")
    e(f"    v_lshl_or_b32 v{vT1}, v{vX+1}, 2, v{vT2}")
    e(f"    v_xor_b32 v{vT1}, v{vT1}, v{vT3}")
    e(f"    v_lshlrev_b32 v{vT1}, 4, v{vT1}")
    e(f"    v_lshl_add_u32 v{vKrd}, v{vT0}, 8, v{vT1}")
    e(f"    v_lshlrev_b32 v{vHH4}, 2, v{vT3}")
    e(f"    s_lshl_b32 s{sRing0}, s{sW}, 15")
    e(f"    v_and_b32 v{vX+4}, 7, v{vL}")
    e(f"    v_xor_b32 v{vT1}, v{vX+4}, v{vT3}")
    e(f"    v_lshlrev_b32 v{vT1}, 4, v{vT1}")
    e(f"    v_lshl_add_u32 v{vT1}, v{vT0}, 9, v{vT1}")
    e(f"    v_add_u32 v{vEw}, s{sRing0}, v{vT1}")
    e(f"    s_lshl_b32 s{sT0}, s{sW}, 3")
    e(f"    s_add_u32 s{sTa}, s{sT0}, {MLB}")
    e(f"    v_lshl_add_u32 v{vMw}, v{vT0}, 5, s{sTa}")
    e(f"    v_add_u32 v{vT0}, v{vHH4}, v{vT2}")
    e(f"    v_lshlrev_b32 v{vT0}, 8, v{vT0}")
    e(f"    v_lshl_or_b32 v{vT0}, v{vT2}, 6, v{vT0}")
    e(f"    v_bfe_u32 v{vT1}, v{vL}, 4, 1")
    e(f"    v_lshl_or_b32 v{vT0}, v{vT1}, 5, v{vT0}")
    e(f"    v_lshl_or_b32 v{vVrd}, v{vX+1}, 3, v{vT0}")
    e(f"    v_lshrrev_b32 v{vT0}, 3, v{vL}")
    e(f"    v_add_u32 v{vT2}, s{sT0}, v{vT0}")
    e(f"    v_lshlrev_b32 v{vT3}, 1, v{vX+4}")
    e(f"    v_xor_b32 v{vT3}, v{vT3}, v{vT0}")
    e(f"    v_lshlrev_b32 v{vT3}, 4, v{vT3}")
    e(f"    v_lshl_add_u32 v{vEr}, v{vT2}, 9, v{vT3}")
    e(f"    v_lshlrev_b32 v{vT3}, 5, v{vT2}")
    e(f"    v_add_u32 v{vMr}, {MLB}, v{vT3}")
    e(f"    v_lshlrev_b32 v{vT1}, 4, v{vX+4}")
    e(f"    v_lshl_add_u32 v{vOo}, v{vT2}, 8, v{vT1}")
    e(f"    s_mov_b32 s{OS}, s{sOUT}")
    e(f"    s_mov_b32 s{OS+1}, s{sOUT+1}")
    e(f"    s_mov_b32 s{OS+2}, 0x400000")
    e(f"    s_mov_b32 s{OS+3}, 0x20000")
    e("    s_waitcnt vmcnt(0)")
    e("L_sort:")
    ts(2)
    e(f"    s_movk_i32 s{sT0}, 2047")
    e(f"    v_add_u32 v{vS+1}, -1, v{vS}")
    for j in range(4):
        e(f"    v_add_u32 v{vS+4+j}, -1, v{vS+4+j}")
    e(f"    v_min_u32 v{vS+1}, s{sT0}, v{vS+1}")
    for j in range(4):
        e(f"    v_min_u32 v{vS+4+j}, s{sT0}, v{vS+4+j}")
    e(f"    v_lshl_or_b32 v{vS+1}, v{vS+1}, 4, v{vX+6}")
    for j in range(4):
        e(f"    v_lshl_add_u32 v{vS+4+j}, v{vS+4+j}, 4, v{vX+7}")
    for j in range(1, 4):
        e(f"    v_add_u32 v{vS+4+j}, {j}, v{vS+4+j}")
    for j in range(4):
        e(f"    v_sub_u32 v{vS+4+j}, v{vS+1}, v{vS+4+j}")
    for j in range(4):
        e(f"    v_lshrrev_b32 v{vS+4+j}, 31, v{vS+4+j}")
    e(f"    v_add_u32 v{vS+4}, v{vS+4}, v{vS+5}")
    e(f"    v_add3_u32 v{vS+4}, v{vS+4}, v{vS+6}, v{vS+7}")
    e("    s_nop 1")
    e(f"    v_add_u32_dpp v{vS+5}, v{vS+4}, v{vS+4} quad_perm:[1,0,3,2] row_mask:0xf bank_mask:0xf")
    e("    s_nop 1")
    e(f"    v_add_u32_dpp v{vS+4}, v{vS+5}, v{vS+5} quad_perm:[2,3,0,1] row_mask:0xf bank_mask:0xf")
    e(f"    v_cmp_eq_u32 s[{sM0}:{sM0+1}], s{sP}, v{vS+4}")
    e(f"    v_cmp_eq_u32 s[{sM1}:{sM1+1}], s{sTe}, v{vS+4}")
    e(f"    s_ff1_i32_b64 s{sTa}, s[{sM0}:{sM0+1}]")
    e(f"    s_ff1_i32_b64 s{sTb}, s[{sM1}:{sM1+1}]")
    e(f"    v_readlane_b32 s{sE1}, v{vS+1}, s{sTa}")
    e(f"    v_readlane_b32 s{sE2}, v{vS+1}, s{sTb}")
    e(f"    v_readlane_b32 s{sTc}, v{vS}, s{sTa}")
    e(f"    v_readlane_b32 s{sTd}, v{vS}, s{sTb}")
    e(f"    s_and_b32 s{sB1}, s{sE1}, 15")
    e(f"    s_and_b32 s{sB2}, s{sE2}, 15")
    e(f"    s_lshr_b32 s{sT1}, s{sE1}, 9")
    e(f"    s_lshr_b32 s{sT2}, s{sE2}, 9")
    e(f"    s_lshr_b32 s{sE1}, s{sE1}, 4")
    e(f"    s_lshr_b32 s{sE2}, s{sE2}, 4")
    e(f"    s_add_u32 s{sT1}, s{sT1}, 1")
    e(f"    s_add_u32 s{sT2}, s{sT2}, 1")
    e(f"    s_add_u32 s{sE1}, s{sE1}, 1")
    e(f"    s_add_u32 s{sE2}, s{sE2}, 1")
    e(f"    s_add_u32 s{sG}, s{sT1}, s{sT2}")
    e(f"    s_lshl_b32 s{sQo1}, s{sB1}, 5")
    e(f"    s_add_u32 s{sQo1}, s{sQo1}, s{sH}")
    e(f"    s_lshl_b32 s{sQo1}, s{sQo1}, 13")
    e(f"    s_lshl_b32 s{sQo2}, s{sB2}, 5")
    e(f"    s_add_u32 s{sQo2}, s{sQo2}, s{sH}")
    e(f"    s_lshl_b32 s{sQo2}, s{sQo2}, 13")
    e(f"    s_cmp_lg_u32 s{sWv}, 0")
    e("    s_cbranch_scc1 L_consumer")

    e(f"    s_lshl_b32 s{sTa}, s{sT1}, 1")
    e(f"    s_lshl_b32 s{sTb}, s{sB1}, 7")
    e(f"    s_lshl_b32 s{sTe}, s{sB2}, 7")
    e(f"    s_sub_u32 s{sTe}, s{sTe}, s{sTa}")
    masks = [sM0, sM1, 90, 92]
    for r in range(4):
        e(f"    v_cmp_gt_u32 s[{masks[r]}:{masks[r]+1}], s{sTa}, v{vX+r}")
    e(f"    v_mov_b32 v{vT1}, s{sTe}")
    e(f"    v_mov_b32 v{vT2}, s{sTb}")
    for r in range(4):
        e(f"    v_cndmask_b32 v{vT0}, v{vT1}, v{vT2}, s[{masks[r]}:{masks[r]+1}]")
        e(f"    v_add_u32 v{vT0}, v{vT0}, v{vX+r}")
        e(f"    v_min_u32 v{vT0}, s{sT0}, v{vT0}")
        e(f"    v_lshlrev_b32 v{vT0}, 2, v{vT0}")
        e(f"    global_load_dword v{vPg[r]}, v{vT0}, s[{sBT}:{sBT+1}] {spol}")
    for item in range(2):
        so = sQo1 if item == 0 else sQo2
        for half in range(2):
            e(f"    s_mov_b32 m0, {QB + item*8192 + half*4096}")
            e(f"    s_add_u32 s{sTd}, s{so}, {half*4096}")
            for i in range(4):
                off = f" offset:{i*1024}" if i else ""
                e(f"    buffer_load_dwordx4 v{vQo[i]}, s[{QS}:{QS+3}], s{sTd} offen{off} {pol} lds")
    e(f"    s_lshl_b32 s{sTc}, s{sT1}, 5")
    e(f"    s_add_u32 s{sTc}, s{sTc}, s{sE2}")
    e(f"    v_mov_b32 v{vT1}, s{sTc}")
    e(f"    v_mov_b32 v{vT2}, s{sE1}")
    for r in range(4):
        e(f"    v_cndmask_b32 v{vT0}, v{vT1}, v{vT2}, s[{masks[r]}:{masks[r]+1}]")
        e(f"    v_lshlrev_b32 v{vX+r}, 4, v{vX+r}")
        e(f"    v_sub_u32 v{vT0}, v{vT0}, v{vX+r}")
        e(f"    v_med3_i32 v{vT0}, v{vT0}, 0, 16")
        e(f"    v_lshlrev_b32 v{vNr[r]}, 13, v{vT0}")
    e(f"    s_add_u32 s{sTa}, s{sG}, 3")
    e(f"    s_lshr_b32 s{sN}, s{sTa}, 2")
    e(f"    s_sub_u32 s{sN}, s{sN}, 1")
    e(f"    s_and_b32 s{sN1}, s{sTa}, 3")
    if tailg:
        e(f"    s_sub_i32 s{sNt}, s{sN}, {tailg}")
    sWx, sAcc = 50, 51
    if wtab:
        wx = [int(round(x * 16)) for x in wtab]
        Wlo, Whi = min(wx) // 16, (max(wx) + 15) // 16
        e(f"    s_and_b32 s{sTa}, s2, 7")
        e(f"    s_mov_b32 s{sWx}, {wx[0]}")
        for x in range(1, 8):
            e(f"    s_cmp_eq_u32 s{sTa}, {x}")
            e(f"    s_cselect_b32 s{sWx}, {wx[x]}, s{sWx}")
        e(f"    s_mov_b32 s{sAcc}, 8")
    e(f"    s_mov_b32 s{sKc}, 0")
    e(f"    s_mov_b32 s{sIdx}, 0")
    e(f"    s_mov_b32 s{sSlot}, 0")
    e(f"    s_movk_i32 s{sT0}, 0x803")
    e("    s_waitcnt vmcnt(16)")
    ts(3)
    for r in range(4):
        e(f"    v_min_u32 v{vPg[r]}, s{sT0}, v{vPg[r]}")
        e(f"    v_lshlrev_b32 v{vPg[r]}, 17, v{vPg[r]}")

    def page_setup(isK, j):
        out = []
        if isK:
            out.append(f"    v_readlane_b32 s{sPg[j]}, v{vPg[0]}, s{sIdx}")
            out.append(f"    v_readlane_b32 s{sNr[j]}, v{vNr[0]}, s{sIdx}")
            out.append(f"    s_add_u32 s{sIdx}, s{sIdx}, 1")
        base = sKh if isK else sVh
        c = (j >> 1) * 32768 + (j & 1) * 4096 + (0 if isK else 8192)
        out.append(f"    s_add_u32 m0, s{sSlot}, {c}")
        out.append(f"    s_add_u32 s{KS}, s{base}, s{sPg[j]}")
        out.append(f"    s_addc_u32 s{KS+1}, s{base+1}, 0")
        out.append(f"    s_mov_b32 s{KS+2}, s{sNr[j]}")
        return out

    uid = [0]

    def prev_barrier():
        uid[0] += 1
        return [f"    s_cmp_eq_u32 s{sKc}, 0",
                f"    s_cbranch_scc1 L_nb{uid[0]}",
                "    s_barrier",
                f"L_nb{uid[0]}:"]

    def group_code(nt, Wn, last):
        out = []
        seq = [(True, j, i) for j in range(2 * nt) for i in range(4)] + \
              [(False, j, i) for j in range(2 * nt) for i in range(4)]
        pend = [(0, "prev"), (8 * nt, "K")]
        if last:
            pend.append((16 * nt, "V"))
        for n, (isK, j, i) in enumerate(seq):
            if i == 0:
                out += page_setup(isK, j)
            out.append(f"    s_waitcnt vmcnt({Wn-1})")
            while pend and n - pend[0][0] >= Wn - 1:
                out += prev_barrier() if pend[0][1] == "prev" else ["    s_barrier"]
                pend.pop(0)
            vo = vKo if isK else vVo
            off = f" offset:{i*1024}" if i else ""
            out.append(f"    buffer_load_dwordx4 v{vo[i]}, s[{KS}:{KS+3}], 0 offen{off} {pol} lds")
        if last:
            for (pos, name) in pend:
                out.append(f"    s_waitcnt vmcnt({len(seq)-pos})")
                out += prev_barrier() if name == "prev" else ["    s_barrier"]
        else:
            assert not pend
        return out

    e("    .p2align 6")
    e("L_ld_loop:")
    e(f"    s_cmp_lg_u32 s{sIdx}, 64")
    e("    s_cbranch_scc1 L_ld_noshift")
    for r in range(3):
        e(f"    v_mov_b32 v{vPg[r]}, v{vPg[r+1]}")
        e(f"    v_mov_b32 v{vNr[r]}, v{vNr[r+1]}")
    e(f"    s_mov_b32 s{sIdx}, 0")
    e("L_ld_noshift:")
    e(f"    s_cmp_ge_u32 s{sKc}, s{sN}")
    e("    s_cbranch_scc1 L_ld_last")
    if tailg:
        e(f"    s_cmp_ge_i32 s{sKc}, s{sNt}")
        e("    s_cbranch_scc1 L_ld_tail")
    if wtab:
        e(f"    s_add_u32 s{sAcc}, s{sAcc}, s{sWx}")
        e(f"    s_lshr_b32 s{sTa}, s{sAcc}, 4")
        e(f"    s_and_b32 s{sAcc}, s{sAcc}, 15")
        for w in range(Wlo + 1, Whi + 1):
            e(f"    s_cmp_eq_u32 s{sTa}, {w}")
            e(f"    s_cbranch_scc1 L_ld_w{w}")
        for w in range(Wlo, Whi + 1):
            e(f"L_ld_w{w}:")
            L.extend(group_code(4, w, False))
            e(f"    s_xor_b32 s{sSlot}, s{sSlot}, 16384")
            e(f"    s_add_u32 s{sKc}, s{sKc}, 1")
            e("    s_branch L_ld_loop")
    else:
        L.extend(group_code(4, W, False))
        e(f"    s_xor_b32 s{sSlot}, s{sSlot}, 16384")
        e(f"    s_add_u32 s{sKc}, s{sKc}, 1")
        e("    s_branch L_ld_loop")
    if tailg:
        e("L_ld_tail:")
        L.extend(group_code(4, min(Wtail, 32), False))
        e(f"    s_xor_b32 s{sSlot}, s{sSlot}, 16384")
        e(f"    s_add_u32 s{sKc}, s{sKc}, 1")
        e("    s_branch L_ld_loop")
    e("L_ld_last:")
    for nt in (1, 2, 3):
        e(f"    s_cmp_eq_u32 s{sN1}, {nt-1}")
        e(f"    s_cbranch_scc1 L_ld_last{nt}")
    for nt in (4, 3, 2, 1):
        e(f"L_ld_last{nt}:")
        L.extend(group_code(nt, min(Wtail, 63), True))
        if diag:
            e("    s_branch L_ld_end")
        else:
            e("    s_endpgm")
    if diag:
        e("L_ld_end:")
        ts(6)
        ts(7)
        diag_store("l")
        e("    s_endpgm")

    def write_item(item):
        out = []
        m, l = (vM1, vL1) if item == 0 else (vM, vLs)
        sh = sH1 if item == 0 else sH2
        out.append(f"    v_mov_b32 v{vT0}, v{l}")
        out.append(f"    v_add_u32 v{vX}, s{sh}, v{vEw}")
        for i in range(1, 4):
            out.append(f"    v_xor_b32 v{vX+i}, {i<<5}, v{vX}")
        out.append(f"    v_permlane32_swap_b32 v{vT0}, v{l}")
        out.append(f"    v_add_f32 v{l}, v{l}, v{vT0}")
        for n in range(4):
            for i in range(4):
                r = 16 * n + 4 * i
                src = f"a[{r}:{r+3}]" if item == 0 else f"v[{vO+r}:{vO+r+3}]"
                out.append(f"    ds_write_b128 v{vX+i}, {src} offset:{n*128}")
        out.append(f"    ds_write_b64 v{vMw}, v[{m}:{l}] offset:{item*1024}")
        return out

    def combine_item(item, d, ml, o):
        out = []
        sh = sH1 if item == 0 else sH2
        sc = sC1 if item == 0 else sC2
        so = sQo1 if item == 0 else sQo2
        out.append(f"    ds_read_b128 v[{ml}:{ml+3}], v{vMr} offset:{item*1024}")
        out.append(f"    ds_read_b128 v[{ml+4}:{ml+7}], v{vMr} offset:{item*1024+16}")
        out.append(f"    v_add_u32 v{vX}, s{sh}, v{vEr}")
        out.append(f"    v_xor_b32 v{vX+1}, 16, v{vX}")
        out.append(f"    v_add_u32 v{vX+2}, 0x10000, v{vX}")
        out.append(f"    v_add_u32 v{vX+3}, 0x10000, v{vX+1}")
        nread = 0
        for w in range(4):
            for e1 in range(2):
                for e0 in range(2):
                    r = d + 16 * w + 8 * e1 + 4 * e0
                    a = vX + e0 + 2 * (w >> 1)
                    off = (w & 1) * 32768 + e1 * 256
                    out.append(f"    ds_read_b128 v[{r}:{r+3}], v{a} offset:{off}")
                    nread += 1
            if w == 2:
                out.append(f"    s_waitcnt lgkmcnt({0 if diag else nread})")
                out.append(f"    v_max3_f32 v{vT0}, v{ml}, v{ml+2}, v{ml+4}")
                out.append(f"    v_max_f32 v{vT0}, v{vT0}, v{ml+6}")
        for w in range(4):
            out.append(f"    v_sub_f32 v{ml+2*w}, v{ml+2*w}, v{vT0}")
        for w in range(4):
            out.append(f"    v_mul_f32 v{ml+2*w}, s{sc}, v{ml+2*w}")
        for w in range(4):
            out.append(f"    v_exp_f32 v{ml+2*w}, v{ml+2*w}")
        out.append("    s_nop 0")
        out.append(f"    v_mul_f32 v{vT0}, v{ml}, v{ml+1}")
        for w in range(1, 4):
            out.append(f"    v_fma_f32 v{vT0}, v{ml+2*w}, v{ml+2*w+1}, v{vT0}")
        out.append(f"    v_rcp_f32 v{vT0}, v{vT0}")
        out.append("    s_nop 0")
        for w in range(4):
            out.append(f"    v_mul_f32 v{ml+2*w}, v{ml+2*w}, v{vT0}")
        for w in range(4):
            out.append(f"    s_waitcnt lgkmcnt({12-4*w})")
            for i in range(8):
                s = d + 16 * w + 2 * i
                if w == 0:
                    out.append(f"    v_pk_mul_f32 v[{d+2*i}:{d+2*i+1}], v[{s}:{s+1}], v[{ml}:{ml+1}] op_sel_hi:[1,0]")
                else:
                    out.append(f"    v_pk_fma_f32 v[{d+2*i}:{d+2*i+1}], v[{s}:{s+1}], v[{ml+2*w}:{ml+2*w+1}], v[{d+2*i}:{d+2*i+1}] op_sel_hi:[1,0,1]")
        for i in range(4):
            out.append(f"    v_cvt_pk_bf16_f32 v{o+i}, v{d+2*i}, v{d+2*i+1}")
        out.append(f"    buffer_store_dwordx4 v[{o}:{o+3}], v{vOo}, s[{OS}:{OS+3}], s{so} offen {opol}")
        for i in range(4, 8):
            out.append(f"    v_cvt_pk_bf16_f32 v{o+i}, v{d+2*i}, v{d+2*i+1}")
        out.append(f"    buffer_store_dwordx4 v[{o+4}:{o+7}], v{vOo}, s[{OS}:{OS+3}], s{so} offen offset:128 {opol}")
        return out

    e("L_consumer:")
    if cpre:
        e(f"    s_getpc_b64 s[{sM0}:{sM0+1}]")
        e("L_pc:")
        e(f"    s_add_u32 s{sM0}, s{sM0}, L_ld_loop-L_pc")
        e(f"    s_addc_u32 s{sM0+1}, s{sM0+1}, -1")
        e(f"    s_lshl_b32 s{sT0}, s{sW}, 13")
        e(f"    v_lshl_add_u32 v{vT0}, v{vL}, 7, s{sT0}")
        e(f"    v_min_u32 v{vT0}, L_done-L_ld_loop, v{vT0}")
        e(f"    global_load_dword v12, v{vT0}, s[{sM0}:{sM0+1}]")
    e(f"    s_cmp_gt_i32 s{sTc}, 0")
    e(f"    s_cselect_b32 s{sC1}, {CSC:#x}, 0")
    e(f"    s_cmp_gt_i32 s{sTd}, 0")
    e(f"    s_cselect_b32 s{sC2}, {CSC:#x}, 0")
    e(f"    s_mov_b32 s{sC}, s{sC1}")
    e(f"    s_sub_u32 s{sT0}, 3, s{sW}")
    e(f"    s_add_u32 s{sN1}, s{sT1}, s{sT0}")
    e(f"    s_add_u32 s{sN}, s{sG}, s{sT0}")
    e(f"    s_lshr_b32 s{sN1}, s{sN1}, 2")
    e(f"    s_lshr_b32 s{sN}, s{sN}, 2")
    e(f"    s_sub_u32 s{sTa}, s{sT1}, 1")
    e(f"    s_lshl_b32 s{sTb}, s{sTa}, 5")
    e(f"    s_sub_u32 s{sNv}, s{sE1}, s{sTb}")
    e(f"    s_lshr_b32 s{sMk}, s{sTa}, 2")
    e(f"    s_and_b32 s{sTa}, s{sTa}, 3")
    e(f"    s_cmp_eq_u32 s{sTa}, s{sW}")
    e(f"    s_cselect_b32 s{sMk}, s{sMk}, -1")
    e(f"    s_sub_u32 s{sTa}, s{sT2}, 1")
    e(f"    s_lshl_b32 s{sTb}, s{sTa}, 5")
    e(f"    s_sub_u32 s{sNv2}, s{sE2}, s{sTb}")
    e(f"    s_sub_u32 s{sTa}, s{sG}, 1")
    e(f"    s_lshr_b32 s{sMk2}, s{sTa}, 2")
    e(f"    s_and_b32 s{sH2}, s{sMk2}, 1")
    e(f"    s_lshl_b32 s{sH2}, s{sH2}, 14")
    e(f"    s_xor_b32 s{sH1}, s{sH2}, 16384")
    if early:
        e(f"    s_lshl_b32 s{sTb}, s{sMk2}, 2")
        e(f"    s_cmp_le_u32 s{sT1}, s{sTb}")
        e(f"    s_cselect_b32 s{sEk}, s{sMk2}, -1")
    else:
        e(f"    s_mov_b32 s{sEk}, -1")
    e(f"    s_add_u32 s{sG}, s{sMk2}, 1")
    e(f"    s_and_b32 s{sTa}, s{sTa}, 3")
    e(f"    s_cmp_eq_u32 s{sTa}, s{sW}")
    e(f"    s_cselect_b32 s{sMk2}, s{sMk2}, -1")
    e(f"    s_mov_b32 s{sSlot}, s{sRing0}")
    for i in range(64):
        e(f"    v_mov_b32 v{vO+i}, 0")
    e(f"    v_mov_b32 v{vM}, {NEG:#x}")
    e(f"    v_mov_b32 v{vLs}, 0")
    e(f"    s_mov_b32 s{sKc}, 0")
    e(f"    s_mov_b32 s{sTe}, {QB}")
    ts(3)

    e("    .p2align 6")
    e("L_loop:")
    e(f"    s_cmp_eq_u32 s{sKc}, s{sN1}")
    e("    s_cbranch_scc1 L_switch")
    e("L_loop_a:")
    e(f"    s_cmp_eq_u32 s{sKc}, s{sEk}")
    e("    s_cbranch_scc1 L_early_w")
    e("L_loop_b:")
    e(f"    s_cmp_ge_u32 s{sKc}, s{sN}")
    e("    s_cbranch_scc1 L_fin")
    e(f"    v_add_u32 v{vA[0]}, s{sSlot}, v{vKrd}")
    for j in range(1, 8):
        e(f"    v_xor_b32 v{vA[j]}, {j<<5}, v{vA[0]}")
    e("    s_barrier")
    if diag:
        e(f"    s_cmp_lg_u32 s{sKc}, 0")
        e("    s_cbranch_scc1 L_nots5")
        ts(5)
        e("L_nots5:")
    e(f"    s_cmp_lg_u32 s{sTe}, 0")
    e("    s_cbranch_scc1 L_readq")
    e("L_noq:")
    for j in range(8):
        e(f"    ds_read_b128 v[{vF+4*j}:{vF+4*j+3}], v{vA[j]}")
    for j in range(8):
        e(f"    s_waitcnt lgkmcnt({0 if diag else 7-j})")
        c = "0" if j == 0 else f"v[{vS}:{vS+15}]"
        e(f"    v_mfma_f32_32x32x16_bf16 v[{vS}:{vS+15}], v[{vF+4*j}:{vF+4*j+3}], v[{vQ+4*j}:{vQ+4*j+3}], {c}")
    e(f"    s_add_u32 s{sT0}, s{sSlot}, 8192")
    e(f"    v_add_u32 v{vA[0]}, s{sT0}, v{vVrd}")
    for n in range(1, 4):
        e(f"    v_xor_b32 v{vA[n]}, {n<<6}, v{vA[0]}")
    e(f"    s_xor_b32 s{sSlot}, s{sSlot}, 16384")
    e("    s_nop 3")
    e(f"    s_cmp_eq_u32 s{sKc}, s{sMk}")
    e("    s_cbranch_scc1 L_mask")
    e("L_nomask:")
    e(f"    v_max3_f32 v{vT0}, v{vS}, v{vS+1}, v{vS+2}")
    e(f"    v_max3_f32 v{vT1}, v{vS+3}, v{vS+4}, v{vS+5}")
    e(f"    v_max3_f32 v{vT2}, v{vS+6}, v{vS+7}, v{vS+8}")
    e(f"    v_max3_f32 v{vT3}, v{vS+9}, v{vS+10}, v{vS+11}")
    e(f"    v_max3_f32 v{vT0}, v{vT0}, v{vS+12}, v{vS+13}")
    e(f"    v_max3_f32 v{vT1}, v{vT1}, v{vS+14}, v{vS+15}")
    e(f"    v_max3_f32 v{vT2}, v{vT2}, v{vT3}, v{vM}")
    e(f"    v_max3_f32 v{vT0}, v{vT0}, v{vT1}, v{vT2}")
    e(f"    v_mov_b32 v{vT1}, v{vT0}")
    e("    s_nop 1")
    e(f"    v_permlane32_swap_b32 v{vT0}, v{vT1}")
    e(f"    v_max_f32 v{vT0}, v{vT0}, v{vT1}")
    e(f"    v_sub_f32 v{vT1}, v{vM}, v{vT0}")
    e(f"    v_mul_f32 v{vT2}, s{sC}, v{vT0}")
    e(f"    v_mul_f32 v{vT1}, s{sC}, v{vT1}")
    e(f"    v_mov_b32 v{vM}, v{vT0}")
    e(f"    v_exp_f32 v{vAl}, v{vT1}")
    for i in range(16):
        e(f"    v_fma_f32 v{vS+i}, v{vS+i}, s{sC}, -v{vT2}")
    for i in range(16):
        e(f"    v_exp_f32 v{vS+i}, v{vS+i}")
    for i in range(32):
        e(f"    v_pk_mul_f32 v[{vO+2*i}:{vO+2*i+1}], v[{vO+2*i}:{vO+2*i+1}], v[{vAl}:{vAl+1}] op_sel_hi:[1,0]")
    for i in range(8):
        e(f"    v_cvt_pk_bf16_f32 v{vP_+i}, v{vS+2*i}, v{vS+2*i+1}")
    for i in range(4):
        e(f"    v_pk_add_f32 v[{vS+2*i}:{vS+2*i+1}], v[{vS+2*i}:{vS+2*i+1}], v[{vS+8+2*i}:{vS+8+2*i+1}]")
    for i in range(2):
        e(f"    v_pk_add_f32 v[{vS+2*i}:{vS+2*i+1}], v[{vS+2*i}:{vS+2*i+1}], v[{vS+4+2*i}:{vS+4+2*i+1}]")
    e(f"    v_pk_add_f32 v[{vS}:{vS+1}], v[{vS}:{vS+1}], v[{vS+2}:{vS+3}]")
    e(f"    v_fma_f32 v{vLs}, v{vLs}, v{vAl}, v{vS}")
    e(f"    v_add_f32 v{vLs}, v{vLs}, v{vS+1}")
    e(f"    s_cmp_eq_u32 s{sKc}, s{sEk}")
    e("    s_cbranch_scc1 L_early_c")
    e("L_vphase:")
    e("    s_barrier")
    order = [(m, n) for m in range(2) for n in range(4)]
    for (m, n) in order:
        for jj in range(2):
            r = vF + 8 * n + 4 * m + 2 * jj
            e(f"    ds_read_b64_tr_b16 v[{r}:{r+1}], v{vA[n]} offset:{m*4096+jj*2048}")
    for idx, (m, n) in enumerate(order):
        e(f"    s_waitcnt lgkmcnt({14-2*idx})")
        a = vF + 8 * n + 4 * m
        e(f"    v_mfma_f32_32x32x16_bf16 v[{vO+16*n}:{vO+16*n+15}], v[{a}:{a+3}], v[{vP_+4*m}:{vP_+4*m+3}], v[{vO+16*n}:{vO+16*n+15}]")
    e(f"    s_add_u32 s{sKc}, s{sKc}, 1")
    e("    s_branch L_loop")

    e("L_readq:")
    e(f"    v_add_u32 v{vX}, s{sTe}, v{vKrd}")
    for j in range(1, 8):
        e(f"    v_xor_b32 v{vX+j}, {j<<5}, v{vX}")
    for j in range(8):
        e(f"    ds_read_b128 v[{vQ+4*j}:{vQ+4*j+3}], v{vX+j}")
    e(f"    s_mov_b32 s{sTe}, 0")
    e("    s_waitcnt lgkmcnt(0)")
    e("    s_branch L_noq")

    e("L_mask:")
    if strided:
        e(f"    v_lshrrev_b32 v{vT0}, 2, v{vHH4}")
        e(f"    v_sub_u32 v{vT0}, s{sNv}, v{vT0}")
    else:
        e(f"    v_sub_u32 v{vT0}, s{sNv}, v{vHH4}")
    e(f"    v_mov_b32 v{vT1}, {NEG:#x}")
    for v in range(16):
        t = 8 * (v >> 2) + (v & 3)
        if strided:
            t = 16 * (v >> 3) + 2 * ((v >> 2) & 1) + 4 * (v & 3)
        e(f"    v_cmp_lt_i32 vcc, {t}, v{vT0}")
        e("    s_nop 1")
        e(f"    v_cndmask_b32 v{vS+v}, v{vT1}, v{vS+v}, vcc")
    e("    s_branch L_nomask")

    e("L_switch:")
    e("    s_nop 7")
    e("    s_nop 7")
    for i in range(64):
        e(f"    v_accvgpr_write_b32 a{i}, v{vO+i}")
    for i in range(64):
        e(f"    v_mov_b32 v{vO+i}, 0")
    e(f"    v_mov_b32 v{vM1}, v{vM}")
    e(f"    v_mov_b32 v{vL1}, v{vLs}")
    e(f"    v_mov_b32 v{vM}, {NEG:#x}")
    e(f"    v_mov_b32 v{vLs}, 0")
    e(f"    s_mov_b32 s{sC}, s{sC2}")
    e(f"    s_mov_b32 s{sN1}, -1")
    e(f"    s_mov_b32 s{sMk}, s{sMk2}")
    e(f"    s_mov_b32 s{sNv}, s{sNv2}")
    e(f"    s_mov_b32 s{sTe}, {QB+8192}")
    e("    s_branch L_loop_a")

    e("L_early_w:")
    L.extend(write_item(0))
    e("    s_waitcnt lgkmcnt(0)")
    e("    s_branch L_loop_b")
    e("L_early_c:")
    L.extend(combine_item(0, vQ, vS, vS + 8))
    e(f"    s_cmp_lt_u32 s{sKc}, s{sN}")
    e("    s_cbranch_scc1 L_vphase")
    e("    s_branch L_fin_v")

    e("L_fin:")
    e(f"    s_cmp_ge_u32 s{sKc}, s{sG}")
    e("    s_cbranch_scc1 L_epi")
    e("    s_barrier")
    e(f"    s_cmp_eq_u32 s{sKc}, s{sEk}")
    e("    s_cbranch_scc1 L_early_c")
    e("L_fin_v:")
    e("    s_barrier")
    e("L_epi:")
    ts(6)
    if noepi:
        e("    s_nop 7")
        e("    s_nop 7")
        for i in range(8):
            e(f"    v_cvt_pk_bf16_f32 v{vP_+i}, v{vO+2*i}, v{vO+2*i+1}")
        for so in (sQo1, sQo2):
            e(f"    buffer_store_dwordx4 v[{vP_}:{vP_+3}], v{vOo}, s[{OS}:{OS+3}], s{so} offen {opol}")
            e(f"    buffer_store_dwordx4 v[{vP_+4}:{vP_+7}], v{vOo}, s[{OS}:{OS+3}], s{so} offen offset:128 {opol}")
        e("    s_endpgm")
    e(f"    s_cmp_lg_u32 s{sEk}, -1")
    e("    s_cbranch_scc1 L_epi2")
    L.extend(write_item(0))
    e("    s_waitcnt lgkmcnt(0)")
    e("    s_barrier")
    L.extend(combine_item(0, vQ, vS, vS + 8))
    e("L_epi2:")
    e("    s_nop 3")
    L.extend(write_item(1))
    e("    s_waitcnt lgkmcnt(0)")
    e("    s_barrier")
    L.extend(combine_item(1, vQ, vS, vP_))
    if diag:
        ts(4)
        e("    s_waitcnt vmcnt(0)")
        ts(7)
        diag_store("c")
    if fixt:
        e("    s_waitcnt vmcnt(0)")
        e("L_hold:")
        e("    s_memrealtime s[70:71]")
        e("    s_waitcnt lgkmcnt(0)")
        e("    s_sub_u32 s70, s70, s98")
        e(f"    s_cmp_lt_u32 s70, {fixt}")
        e("    s_cbranch_scc1 L_hold")
    e("L_done:")
    e("    s_endpgm")
    e('.section .rodata,"a"')
    e(".p2align 6")
    e(f".amdhsa_kernel {NAME}_kernel")
    e(f"  .amdhsa_next_free_vgpr {NV+64}")
    e("  .amdhsa_next_free_sgpr 100")
    e(f"  .amdhsa_accum_offset {NV}")
    e("  .amdhsa_group_segment_fixed_size 0")
    e("  .amdhsa_kernarg_size 64")
    e("  .amdhsa_user_sgpr_count 2")
    e("  .amdhsa_user_sgpr_kernarg_segment_ptr 1")
    e("  .amdhsa_system_sgpr_workgroup_id_x 1")
    e("  .amdhsa_float_denorm_mode_32 3")
    e(".end_amdhsa_kernel")
    return "\n".join(L) + "\n"


if __name__ == "__main__":
    ap = argparse.ArgumentParser()
    ap.add_argument("-o", default="/dev/stdout")
    ap.add_argument("--W", type=int, default=21)
    ap.add_argument("--Wtail", type=int, default=None)
    ap.add_argument("--tailg", type=int, default=0)
    ap.add_argument("--pol", default="nt")
    ap.add_argument("--spol", default="")
    ap.add_argument("--wtab", default=None)
    ap.add_argument("--cpre", type=int, default=0)
    ap.add_argument("--noepi", action="store_true")
    ap.add_argument("--std", action="store_true")
    ap.add_argument("--enc", default=None)
    ap.add_argument("--opol", default="")
    ap.add_argument("--mapping", type=int, default=0)
    ap.add_argument("--prio", type=int, default=3)
    ap.add_argument("--diag", action="store_true")
    ap.add_argument("--noearly", action="store_true")
    ap.add_argument("--shortfirst", action="store_true")
    ap.add_argument("--fixt", type=int, default=0)
    a = ap.parse_args()
    open(a.o, "w").write(gen(W=a.W, pol=a.pol, mapping=a.mapping, diag=a.diag, spol=a.spol,
                             opol=a.opol, Wtail=a.Wtail, tailg=a.tailg, prio=a.prio,
                             early=not a.noearly, fixt=a.fixt, shortfirst=a.shortfirst, cpre=a.cpre, noepi=a.noepi, strided=not a.std, enc=None if a.enc is None else a.enc.split(","),
                             wtab=None if a.wtab is None else [float(x) for x in a.wtab.split(",")]))
```

```python
import argparse
from gen import HEADER, NAME, f2u


def gen(W=21, pol="nt", diag=False, opol="", Wtail=32, tailg=0, prio=3, cpre=0, enc=None, spec=True,
        vsplit=False):
    L = []
    e = L.append
    QB = 131072
    PB = QB + 16384
    MX = PB + 8192
    LB = MX + 1024
    LDS = LB + 512
    assert 2 <= W <= 25
    CSC = f2u((128 ** -0.5) * 1.4426950408889634)
    NEG = f2u(-1e30)

    sQ, sK, sV, sBT = 4, 6, 8, 10
    sCL, sOUT = 12, 14
    sDBG, sWS = 16, 18
    KS, OS = 20, 32
    sKh, sVh = 36, 38
    sWv, sP, sH = 40, 41, 42
    sB1, sB2, sKey1, sKey2 = 43, 44, 45, 46
    sT, sG, sBa, sRe, sE = 47, 48, 49, 50, 51
    sBo, sRem, sGl = 52, 53, 54
    sSlot, sGi, sNt = 55, 56, 57
    sT0, sTa, sTb, sTc, sTd, sTe = 58, 59, 60, 61, 62, 63
    sM0, sM1 = 64, 66
    sW, sKc = 68, 69
    sTS = 70
    sQo1, sQo2 = 86, 87
    sItem = 100
    sC, sC2, sNv, sEp, sRing, sLast = 20, 21, 22, 24, 26, 27
    sNx = list(range(24, 32))
    sPg = list(range(88, 96))
    sNr = [64, 65, 66, 67, 96, 97, 98, 99]
    sG1g, sG2g = 32, 33
    LENS = [2048 - ((i * 2654435761) % 1024) for i in range(1, 17)]
    ORDER = sorted(range(16), key=lambda b: (-LENS[b], -b))
    GU1 = sum(ORDER[p] << (4 * p) for p in range(8))
    GU2 = sum(ORDER[15 - p] << (4 * p) for p in range(8))

    vL = 1
    vKo = [2, 3, 4, 5]
    vVo = [6, 7, 8, 9]
    vQo = [12, 13, 14, 15]
    vKrd, vVb, vPr, vPw, vMw, vMr, vLw, vLr, vOo = 2, 3, 4, 5, 6, 7, 8, 9, 10
    vHH = 11
    vA = list(range(12, 20))
    vM, vLs = 20, 21
    vMx = 22
    vAl = 24
    vTw, vTr = 26, 27
    vT0, vT1, vT2, vT3 = 28, 29, 30, 31
    vS = 32
    vP_ = 48
    vX = 56
    vQ = 64
    vF = 96
    vPa = 128
    vO = 160
    NV = 176

    def ts(i):
        if diag:
            e(f"    s_memrealtime s[{sTS+2*i}:{sTS+2*i+1}]")

    def hold(role):
        if enc[0] != role:
            return
        idx, mult = int(enc[1]), int(enc[2])
        e("    s_waitcnt vmcnt(0) lgkmcnt(0)")
        e(f"    s_sub_u32 s{sT0}, s{sTS+2*idx}, s{sTS}")
        if mult < 0:
            e(f"    s_sub_u32 s{sT0}, 8000, s{sT0}")
        e(f"    s_min_u32 s{sT0}, s{sT0}, 10000")
        e(f"    s_mul_i32 s{sT0}, s{sT0}, {abs(mult)}")
        e(f"    s_add_u32 s{sT0}, s{sT0}, 10000")
        e(f"L_hold{role}:")
        e("    s_sleep 8")
        e("    s_memrealtime s[88:89]")
        e("    s_waitcnt lgkmcnt(0)")
        e(f"    s_sub_u32 s88, s88, s{sTS}")
        e(f"    s_cmp_lt_u32 s88, s{sT0}")
        e(f"    s_cbranch_scc1 L_hold{role}")

    def diag_store(role):
        if enc:
            hold(role)
            return
        e("    s_getreg_b32 s88, hwreg(HW_REG_XCC_ID)")
        e("    s_getreg_b32 s89, hwreg(HW_REG_HW_ID)")
        e("    s_waitcnt lgkmcnt(0)")
        e(f"    s_mul_i32 s{sT0}, s2, 5")
        e(f"    s_add_u32 s{sT0}, s{sT0}, s{sWv}")
        e(f"    s_lshl_b32 s{sT0}, s{sT0}, 7")
        e(f"    v_mov_b32 v{vT0}, s{sT0}")
        for i in range(4):
            for j in range(4):
                e(f"    v_mov_b32 v{vS+j}, s{sTS+4*i+j}")
            e(f"    global_store_dwordx4 v{vT0}, v[{vS}:{vS+3}], s[{sWS}:{sWS+1}] offset:{16*i}")
            e("    s_nop 1")
        e(f"    v_mov_b32 v{vS}, s88")
        e(f"    v_mov_b32 v{vS+1}, s89")
        e(f"    v_mov_b32 v{vS+2}, s{sG}")
        e(f"    v_mov_b32 v{vS+3}, s{sB1}")
        e(f"    global_store_dwordx4 v{vT0}, v[{vS}:{vS+3}], s[{sWS}:{sWS+1}] offset:64")

    def q_dma():
        out = []
        for item in range(2):
            so = sQo1 if item == 0 else sQo2
            for half in range(2):
                out.append(f"    s_mov_b32 m0, {QB + item*8192 + half*4096}")
                out.append(f"    s_add_u32 s{sTd}, s{so}, {half*4096}")
                for i in range(4):
                    off = f" offset:{i*1024}" if i else ""
                    out.append(f"    buffer_load_dwordx4 v{vQo[i]}, s[{KS}:{KS+3}], s{sTd} offen{off} {pol} lds")
        return out

    def q_offsets(b1, b2):
        return [f"    s_lshl_b32 s{sTd}, s{sH}, 13",
                f"    s_lshl_b32 s{sQo1}, s{b1}, 18",
                f"    s_lshl_b32 s{sQo2}, s{b2}, 18",
                f"    s_add_u32 s{sQo1}, s{sQo1}, s{sTd}",
                f"    s_add_u32 s{sQo2}, s{sQo2}, s{sTd}"]

    def item_params(key):
        return [f"    s_lshr_b32 s{sG}, s{key}, 11",
                f"    s_lshr_b32 s{sT}, s{key}, 9",
                f"    s_lshr_b32 s{sE}, s{key}, 4",
                f"    s_add_u32 s{sG}, s{sG}, 1",
                f"    s_add_u32 s{sT}, s{sT}, 1",
                f"    s_add_u32 s{sE}, s{sE}, 1",
                f"    s_lshl_b32 s{sRe}, s{sG}, 1",
                f"    s_cmp_ge_u32 s{sT}, s{sRe}",
                f"    s_addc_u32 s{sBa}, 1, 0",
                f"    s_add_u32 s{sRe}, s{sRe}, s{sG}",
                f"    s_cmp_ge_u32 s{sT}, s{sRe}",
                f"    s_addc_u32 s{sBa}, s{sBa}, 0",
                f"    s_add_u32 s{sRe}, s{sRe}, s{sG}",
                f"    s_cmp_ge_u32 s{sT}, s{sRe}",
                f"    s_addc_u32 s{sBa}, s{sBa}, 0",
                f"    s_mul_i32 s{sRe}, s{sBa}, s{sG}",
                f"    s_sub_u32 s{sRe}, s{sT}, s{sRe}"]

    def cl_loads():
        return [f"    global_load_dword v{vS}, v{vX+0}, s[{sCL}:{sCL+1}]",
                f"    global_load_dwordx4 v[{vS+4}:{vS+7}], v{vX+2}, s[{sCL}:{sCL+1}]"]

    def sort_consts():
        return [f"    v_lshrrev_b32 v{vX+6}, 2, v{vL}",
                f"    v_lshlrev_b32 v{vX+7}, 2, v{vX+1}",
                f"    s_sub_u32 s{sTe}, 15, s{sP}",
                f"    s_movk_i32 s{sT0}, 2047"]

    def sort_code():
        out = [f"    v_add_u32 v{vS+1}, -1, v{vS}"]
        for j in range(4):
            out.append(f"    v_add_u32 v{vS+4+j}, -1, v{vS+4+j}")
        out.append(f"    v_min_u32 v{vS+1}, s{sT0}, v{vS+1}")
        for j in range(4):
            out.append(f"    v_min_u32 v{vS+4+j}, s{sT0}, v{vS+4+j}")
        out.append(f"    v_lshl_or_b32 v{vS+1}, v{vS+1}, 4, v{vX+6}")
        out.append(f"    v_sub_u32 v{vS+2}, v{vS+1}, v{vX+7}")
        for j in range(4):
            out.append(f"    v_lshl_or_b32 v{vS+4+j}, v{vS+4+j}, 4, {j}")
        for j in range(4):
            out.append(f"    v_sub_u32 v{vS+4+j}, v{vS+2}, v{vS+4+j}")
        for j in range(4):
            out.append(f"    v_lshrrev_b32 v{vS+4+j}, 31, v{vS+4+j}")
        out += [f"    v_add_u32 v{vS+4}, v{vS+4}, v{vS+5}",
                f"    v_add3_u32 v{vS+4}, v{vS+4}, v{vS+6}, v{vS+7}",
                "    s_nop 1",
                f"    v_add_u32_dpp v{vS+5}, v{vS+4}, v{vS+4} quad_perm:[1,0,3,2] row_mask:0xf bank_mask:0xf",
                "    s_nop 1",
                f"    v_add_u32_dpp v{vS+4}, v{vS+5}, v{vS+5} quad_perm:[2,3,0,1] row_mask:0xf bank_mask:0xf",
                f"    v_cmp_eq_u32 s[{sM0}:{sM0+1}], s{sP}, v{vS+4}",
                f"    v_cmp_eq_u32 s[{sM1}:{sM1+1}], s{sTe}, v{vS+4}",
                f"    s_ff1_i32_b64 s{sTa}, s[{sM0}:{sM0+1}]",
                f"    s_ff1_i32_b64 s{sTb}, s[{sM1}:{sM1+1}]",
                f"    v_readlane_b32 s{sKey1}, v{vS+1}, s{sTa}",
                f"    v_readlane_b32 s{sKey2}, v{vS+1}, s{sTb}",
                f"    s_lshr_b32 s{sB1}, s{sTa}, 2",
                f"    s_lshr_b32 s{sB2}, s{sTb}, 2"]
        return out

    e(HEADER.rstrip())
    e(f"; @launch grid=(256,1,1) block=(320,1,1) lds={LDS}")
    e('.amdgcn_target "amdgcn-amd-amdhsa--gfx950"')
    e(".text")
    e(f".globl {NAME}_kernel")
    e(".p2align 8")
    e(f".type {NAME}_kernel,@function")
    e(f"{NAME}_kernel:")
    e("    s_cmp_ge_u32 s2, 256")
    e("    s_cbranch_scc1 L_done")
    if diag:
        for i in range(16):
            e(f"    s_mov_b32 s{sTS+i}, 0")
    ts(0)
    e(f"    s_load_dwordx4 s[12:15], s[0:1], 32")
    e(f"    s_load_dwordx8 s[4:11], s[0:1], 0")
    if diag:
        e(f"    s_load_dwordx4 s[16:19], s[0:1], 48")
    e(f"    v_lshrrev_b32 v{vT0}, 6, v0")
    e(f"    v_and_b32 v{vL}, 63, v0")
    e(f"    v_readfirstlane_b32 s{sWv}, v{vT0}")
    e(f"    s_and_b32 s{sP}, s2, 7")
    e(f"    s_lshr_b32 s{sH}, s2, 3")
    e(f"    v_and_b32 v{vX+0}, 60, v{vL}")
    e(f"    v_and_b32 v{vX+1}, 3, v{vL}")
    e(f"    v_lshlrev_b32 v{vX+2}, 4, v{vX+1}")
    e(f"    s_cmp_lg_u32 s{sWv}, 0")
    e("    s_cbranch_scc1 L_consumer")

    e(f"    v_lshrrev_b32 v{vT0}, 4, v{vL}")
    e(f"    v_and_b32 v{vT1}, 15, v{vL}")
    e(f"    v_lshlrev_b32 v{vT2}, 2, v{vT0}")
    e(f"    v_xor_b32 v{vT1}, v{vT1}, v{vT2}")
    e(f"    v_lshlrev_b32 v{vT1}, 4, v{vT1}")
    e(f"    v_lshl_add_u32 v{vQo[0]}, v{vT0}, 8, v{vT1}")
    for i in range(1, 4):
        e(f"    v_xor_b32 v{vQo[i]}, {i*16}, v{vQo[0]}")
    e(f"    s_mov_b32 s{KS+2}, 0x400000")
    e(f"    s_mov_b32 s{KS+3}, 0x20000")
    if spec:
        e(f"    s_lshl_b32 s{sT0}, s{sP}, 2")
        e(f"    s_lshr_b32 s{sG1g}, {GU1:#x}, s{sT0}")
        e(f"    s_lshr_b32 s{sG2g}, {GU2:#x}, s{sT0}")
        e(f"    s_and_b32 s{sG1g}, s{sG1g}, 15")
        e(f"    s_and_b32 s{sG2g}, s{sG2g}, 15")
        L.extend(q_offsets(sG1g, sG2g))
        e(f"    s_lshl_b32 s{sBo}, s{sG1g}, 9")
    else:
        e(f"    v_lshlrev_b32 v{vX+3}, 7, v{vL}")
    e("    s_waitcnt lgkmcnt(0)")
    ts(1)
    L.extend(cl_loads())
    e(f"    s_mov_b32 s{KS}, s{sQ}")
    e(f"    s_mov_b32 s{KS+1}, s{sQ+1}")
    if spec:
        e(f"    s_load_dwordx8 s[{sNx[0]}:{sNx[7]}], s[{sBT}:{sBT+1}], s{sBo}")
        L.extend(q_dma())
    else:
        e(f"    global_load_dword v{vS+8}, v{vX+3}, s[{sBT}:{sBT+1}]")
    if prio:
        e(f"    s_setprio {prio}")
    e(f"    v_lshl_add_u32 v{vVo[0]}, v{vT0}, 15, v{vT1}")
    for i in range(1, 4):
        e(f"    v_add_u32 v{vVo[i]}, {i*(8192-1024)}, v{vVo[0]}")
    e(f"    v_mov_b32 v{vKo[0]}, v{vVo[0]}")
    for i in range(1, 4):
        e(f"    v_xor_b32 v{vKo[i]}, {i*16}, v{vVo[i]}")
    e(f"    s_lshl_b32 s{sT0}, s{sH}, 8")
    e(f"    s_add_u32 s{sKh}, s{sK}, s{sT0}")
    e(f"    s_addc_u32 s{sKh+1}, s{sK+1}, 0")
    e(f"    s_add_u32 s{sVh}, s{sV}, s{sT0}")
    e(f"    s_addc_u32 s{sVh+1}, s{sV+1}, 0")
    e(f"    s_mov_b32 s{sKc}, 0")
    e(f"    s_mov_b32 s{sGi}, 0")
    e(f"    s_mov_b32 s{sSlot}, 0")
    e(f"    s_mov_b32 s{sItem}, 0")
    L.extend(sort_consts())
    e(f"    s_waitcnt vmcnt({16 if spec else 1})")
    ts(2)
    L.extend(sort_code())
    if spec:
        e(f"    s_cmp_lg_u32 s{sB1}, s{sG1g}")
        e("    s_cbranch_scc1 L_ld_redo")
        e(f"    s_cmp_lg_u32 s{sB2}, s{sG2g}")
        e("    s_cbranch_scc1 L_ld_redo")
    else:
        e(f"    s_lshl_b32 s{sBo}, s{sB1}, 9")
        e(f"    s_load_dwordx8 s[{sNx[0]}:{sNx[7]}], s[{sBT}:{sBT+1}], s{sBo}")
        L.extend(q_offsets(sB1, sB2))
        L.extend(q_dma())
    e("L_ld_item:")
    L.extend(item_params(sKey1))
    e(f"    s_mov_b32 s{sRem}, s{sE}")
    e(f"    s_mov_b32 s{sGl}, s{sG}")
    if diag:
        e(f"    s_cmp_lg_u32 s{sItem}, 0")
        e("    s_cbranch_scc1 L_ld_go")
        ts(3)
    e("    s_branch L_ld_go")
    if spec:
        e("L_ld_redo:")
        e("    s_waitcnt vmcnt(0) lgkmcnt(0)")
        e(f"    s_lshl_b32 s{sBo}, s{sB1}, 9")
        e(f"    s_load_dwordx8 s[{sNx[0]}:{sNx[7]}], s[{sBT}:{sBT+1}], s{sBo}")
        L.extend(q_offsets(sB1, sB2))
        L.extend(q_dma())
        e("    s_branch L_ld_item")

    def page_setup(isK, j):
        out = []
        if isK:
            out.append(f"    s_min_u32 s{sTa}, s{sNx[j]}, 0x803")
            out.append(f"    s_min_i32 s{sTb}, s{sRem}, 16")
            out.append(f"    s_lshl_b32 s{sPg[j]}, s{sTa}, 17")
            out.append(f"    s_max_i32 s{sTb}, s{sTb}, 0")
            out.append(f"    s_sub_i32 s{sRem}, s{sRem}, 16")
            out.append(f"    s_lshl_b32 s{sNr[j]}, s{sTb}, 13")
        elif j < 4:
            out.append(f"    s_add_u32 s{sTa}, s{sBo}, {8*j}")
            out.append(f"    s_min_u32 s{sTa}, s{sTa}, 8184")
            out.append(f"    s_load_dwordx2 s[{sNx[2*j]}:{sNx[2*j+1]}], s[{sBT}:{sBT+1}], s{sTa}")
        base = sKh if isK else sVh
        c = (j >> 1) * 32768 + (j & 1) * 4096 + (0 if isK else 8192)
        out.append(f"    s_add_u32 m0, s{sSlot}, {c}")
        out.append(f"    s_add_u32 s{KS}, s{base}, s{sPg[j]}")
        out.append(f"    s_addc_u32 s{KS+1}, s{base+1}, 0")
        out.append(f"    s_mov_b32 s{KS+2}, s{sNr[j]}")
        return out

    uid = [0]

    def prev_barrier():
        uid[0] += 1
        return [f"    s_cmp_eq_u32 s{sKc}, 0",
                f"    s_cbranch_scc1 L_nb{uid[0]}",
                "    s_barrier",
                f"L_nb{uid[0]}:"]

    def group_code(nt, Wn, last):
        out = []
        seq = [(True, j, i) for j in range(2 * nt) for i in range(4)] + \
              [(False, j, i) for j in range(2 * nt) for i in range(4)]
        pend = [(0, "prev"), (8 * nt, "K")]
        if last:
            if vsplit:
                pend += [(8 * nt + 8 * (t + 1), "V") for t in range(nt)]
            else:
                pend.append((16 * nt, "V"))
        for n, (isK, j, i) in enumerate(seq):
            if i == 0:
                ps = page_setup(isK, j)
                if last and not isK and j < 4:
                    ps = ps[3:]
                out += ps
            out.append(f"    s_waitcnt vmcnt({Wn-1})")
            while pend and n - pend[0][0] >= Wn - 1:
                out += prev_barrier() if pend[0][1] == "prev" else ["    s_barrier"]
                pend.pop(0)
            vo = vKo if isK else vVo
            off = f" offset:{i*1024}" if i else ""
            out.append(f"    buffer_load_dwordx4 v{vo[i]}, s[{KS}:{KS+3}], 0 offen{off} {pol} lds")
        if not last and nt == 1:
            for j in (2, 3):
                out += page_setup(False, j)[:3]
        for (pos, name) in pend:
            out.append(f"    s_waitcnt vmcnt({len(seq)-pos})")
            out += prev_barrier() if name == "prev" else ["    s_barrier"]
        if last:
            out.append("    s_branch L_ld_end" if diag else "    s_endpgm")
        else:
            out.append("    s_branch L_ld_next")
        return out

    e("L_ld_switch:")
    e(f"    s_mov_b32 s{sItem}, 1")
    e(f"    s_mov_b32 s{sGi}, 0")
    e(f"    s_mov_b32 s{sKey1}, s{sKey2}")
    e("    s_branch L_ld_item")
    e("    .p2align 6")
    e("L_ld_next:")
    e(f"    s_xor_b32 s{sSlot}, s{sSlot}, 16384")
    e(f"    s_add_u32 s{sKc}, s{sKc}, 1")
    e(f"    s_add_u32 s{sGi}, s{sGi}, 1")
    e(f"    s_sub_u32 s{sGl}, s{sGl}, 1")
    e(f"    s_cmp_eq_u32 s{sGl}, 0")
    e("    s_cbranch_scc1 L_ld_switch")
    e("L_ld_go:")
    e(f"    s_cmp_lt_u32 s{sGi}, s{sRe}")
    e(f"    s_addc_u32 s{sNt}, s{sBa}, 0")
    e(f"    s_lshl3_add_u32 s{sBo}, s{sNt}, s{sBo}")
    e(f"    s_lshl_b32 s{sTa}, s{sB2}, 9")
    e(f"    s_cmp_eq_u32 s{sGl}, 1")
    e(f"    s_cselect_b32 s{sBo}, s{sTa}, s{sBo}")
    e(f"    s_cmp_eq_u32 s{sItem}, 0")
    e(f"    s_cselect_b32 s{sTa}, 64, s{sGl}")
    e("    s_waitcnt lgkmcnt(0)")
    e(f"    s_cmp_eq_u32 s{sTa}, 1")
    e("    s_cbranch_scc1 L_ld_last")
    if tailg:
        e(f"    s_cmp_le_u32 s{sTa}, {tailg+1}")
        e("    s_cbranch_scc1 L_ld_tail")
    e(f"    s_cmp_lg_u32 s{sNt}, 4")
    e("    s_cbranch_scc1 L_ld_small")
    L.extend(group_code(4, W, False))
    e("L_ld_small:")
    for nt in (1, 2):
        e(f"    s_cmp_eq_u32 s{sNt}, {nt}")
        e(f"    s_cbranch_scc1 L_ld_mid{nt}")
    for nt in (3, 2, 1):
        e(f"L_ld_mid{nt}:")
        L.extend(group_code(nt, W, False))
    if tailg:
        e("L_ld_tail:")
        e(f"    s_cmp_lt_u32 s{sNt}, 3")
        e("    s_cbranch_scc1 L_ld_small")
        e(f"    s_cmp_eq_u32 s{sNt}, 3")
        e("    s_cbranch_scc1 L_ld_tail3")
        L.extend(group_code(4, min(Wtail, 32), False))
        e("L_ld_tail3:")
        L.extend(group_code(3, min(Wtail, 25), False))
    e("L_ld_last:")
    for nt in (1, 2, 3):
        e(f"    s_cmp_eq_u32 s{sNt}, {nt}")
        e(f"    s_cbranch_scc1 L_ld_last{nt}")
    for nt in (4, 3, 2, 1):
        e(f"L_ld_last{nt}:")
        L.extend(group_code(nt, min(Wtail, 63), True))
    if diag:
        e("L_ld_end:")
        ts(6)
        ts(7)
        diag_store("l")
        e("    s_endpgm")

    e("L_consumer:")
    e(f"    s_sub_u32 s{sW}, s{sWv}, 1")
    e(f"    v_and_b32 v{vT0}, 31, v{vL}")
    e(f"    v_lshrrev_b32 v{vHH}, 5, v{vL}")
    e(f"    v_bfe_u32 v{vT2}, v{vL}, 2, 2")
    L.extend(sort_consts())
    e("    s_waitcnt lgkmcnt(0)")
    ts(1)
    L.extend(cl_loads())
    if cpre:
        e(f"    s_getpc_b64 s[{sM0}:{sM0+1}]")
        e("L_pc:")
        e(f"    s_add_u32 s{sM0}, s{sM0}, L_ld_next-L_pc")
        e(f"    s_addc_u32 s{sM0+1}, s{sM0+1}, -1")
        e(f"    s_lshl_b32 s{sTa}, s{sW}, 13")
        e(f"    v_lshl_add_u32 v{vT1}, v{vL}, 7, s{sTa}")
        e(f"    v_min_u32 v{vT1}, L_done-L_ld_next, v{vT1}")
        e(f"    global_load_dword v25, v{vT1}, s[{sM0}:{sM0+1}]")
    e(f"    v_lshl_or_b32 v{vT1}, v{vX+1}, 2, v{vT2}")
    e(f"    v_xor_b32 v{vT1}, v{vT1}, v{vHH}")
    e(f"    v_lshlrev_b32 v{vT1}, 4, v{vT1}")
    e(f"    v_lshl_add_u32 v{vKrd}, v{vT0}, 8, v{vT1}")
    e(f"    s_lshl_b32 s{sRing}, s{sW}, 15")
    e(f"    v_lshlrev_b32 v{vT1}, 5, v{vT0}")
    e(f"    v_add_u32 v{vMr}, {MX}, v{vT1}")
    e(f"    s_lshl_b32 s{sTa}, s{sW}, 3")
    e(f"    v_add_u32 v{vMw}, s{sTa}, v{vMr}")
    e(f"    v_lshlrev_b32 v{vT1}, 4, v{vT0}")
    e(f"    v_add_u32 v{vLr}, {LB}, v{vT1}")
    e(f"    s_lshl_b32 s{sTa}, s{sW}, 2")
    e(f"    v_add_u32 v{vLw}, s{sTa}, v{vLr}")
    e(f"    v_bfe_u32 v{vT1}, v{vL}, 1, 2")
    e(f"    v_xor_b32 v{vT1}, v{vT1}, v{vHH}")
    e(f"    v_lshlrev_b32 v{vT1}, 4, v{vT1}")
    e(f"    v_lshl_add_u32 v{vTw}, v{vT0}, 6, v{vT1}")
    e(f"    v_bfe_u32 v{vT1}, v{vL}, 3, 2")
    e(f"    v_xor_b32 v{vT1}, v{vT1}, v{vL}")
    e(f"    v_lshlrev_b32 v{vTr}, 4, v{vT1}")
    e(f"    s_lshl_b32 s{sTa}, s{sW}, 6")
    e(f"    v_lshl_add_u32 v{vT1}, v{vX+6}, 8, v{vX+2}")
    e(f"    v_add_u32 v{vOo}, s{sTa}, v{vT1}")
    e(f"    v_lshl_add_u32 v{vT0}, v{vHH}, 2, v{vT2}")
    e(f"    v_lshlrev_b32 v{vT0}, 8, v{vT0}")
    e(f"    v_lshl_or_b32 v{vT0}, v{vT2}, 6, v{vT0}")
    e(f"    v_bfe_u32 v{vT1}, v{vL}, 4, 1")
    e(f"    v_lshl_or_b32 v{vT0}, v{vT1}, 5, v{vT0}")
    e(f"    v_lshl_or_b32 v{vT0}, v{vX+1}, 3, v{vT0}")
    e(f"    v_xor_b32 v{vT0}, s{sTa}, v{vT0}")
    e(f"    v_add_u32 v{vVb}, 8192, v{vT0}")
    e(f"    v_lshlrev_b32 v{vT1}, 4, v{vL}")
    e(f"    v_add_u32 v{vPr}, {PB}, v{vT1}")
    e(f"    s_lshl_b32 s{sTa}, s{sW}, 11")
    e(f"    v_add_u32 v{vPw}, s{sTa}, v{vPr}")
    e(f"    s_mov_b32 s{OS}, s{sOUT}")
    e(f"    s_mov_b32 s{OS+1}, s{sOUT+1}")
    e(f"    s_mov_b32 s{OS+2}, 0x400000")
    e(f"    s_mov_b32 s{OS+3}, 0x20000")
    e(f"    v_mov_b32 v{vMx}, 0")
    e(f"    v_mov_b32 v{vMx+1}, 0")
    e(f"    ds_write_b64 v{vMw}, v[{vMx}:{vMx+1}]")
    e(f"    s_waitcnt vmcnt({1 if cpre else 0})")
    ts(2)
    L.extend(sort_code())
    e(f"    v_readlane_b32 s{sTc}, v{vS}, s{sTa}")
    e(f"    v_readlane_b32 s{sTe}, v{vS}, s{sTb}")
    L.extend(q_offsets(sB1, sB2))
    e(f"    s_cmp_gt_i32 s{sTc}, 0")
    e(f"    s_cselect_b32 s{sC}, {CSC:#x}, 0")
    e(f"    s_cmp_gt_i32 s{sTe}, 0")
    e(f"    s_cselect_b32 s{sC2}, {CSC:#x}, 0")
    e(f"    s_mov_b32 s{sSlot}, 0")
    e(f"    s_mov_b32 s{sEp}, 0")
    e(f"    s_mov_b32 s{sItem}, 0")
    e(f"    s_mov_b32 s{sTe}, {QB}")
    ts(3)
    e("L_item:")
    L.extend(item_params(sKey1))
    e(f"    s_lshl_b32 s{sTb}, s{sT}, 5")
    e(f"    s_sub_u32 s{sNv}, s{sE}, s{sTb}")
    e(f"    s_add_u32 s{sNv}, s{sNv}, 32")
    for i in range(16):
        e(f"    v_mov_b32 v{vO+i}, 0")
    e(f"    v_mov_b32 v{vM}, {NEG:#x}")
    e(f"    v_mov_b32 v{vLs}, 0")
    e(f"    s_mov_b32 s{sGi}, 0")
    e(f"    s_sub_u32 s{sLast}, s{sG}, 1")
    e("    s_waitcnt lgkmcnt(0)")

    e("    .p2align 6")
    e("L_loop:")
    e(f"    s_cmp_lt_u32 s{sGi}, s{sRe}")
    e(f"    s_addc_u32 s{sNt}, s{sBa}, 0")
    e(f"    s_add_u32 s{sEp}, s{sEp}, 1")
    e(f"    s_add_u32 s{sT0}, s{sSlot}, s{sRing}")
    e(f"    v_add_u32 v{vA[0]}, s{sT0}, v{vKrd}")
    for j in range(1, 8):
        e(f"    v_xor_b32 v{vA[j]}, {j<<5}, v{vA[0]}")
    e(f"    v_mov_b32 v{vMx+1}, s{sEp}")
    e(f"    v_mov_b32 v{vMx}, {NEG:#x}")
    e("    s_barrier")
    if diag:
        e(f"    s_cmp_lg_u32 s{sEp}, 1")
        e("    s_cbranch_scc1 L_nots5")
        ts(5)
        e("L_nots5:")
    e(f"    s_cmp_lg_u32 s{sTe}, 0")
    e("    s_cbranch_scc1 L_readq")
    e("L_noq:")
    e(f"    s_cmp_ge_u32 s{sW}, s{sNt}")
    e("    s_cbranch_scc1 L_pubmax")
    for j in range(8):
        e(f"    ds_read_b128 v[{vF+4*j}:{vF+4*j+3}], v{vA[j]}")
    for j in range(8):
        e(f"    s_waitcnt lgkmcnt({0 if diag else 7-j})")
        c = "0" if j == 0 else f"v[{vS}:{vS+15}]"
        e(f"    v_mfma_f32_32x32x16_bf16 v[{vS}:{vS+15}], v[{vF+4*j}:{vF+4*j+3}], v[{vQ+4*j}:{vQ+4*j+3}], {c}")
    e(f"    s_add_u32 s{sTa}, s{sW}, 1")
    e(f"    s_cmp_eq_u32 s{sTa}, s{sNt}")
    e(f"    s_cselect_b32 s{sTa}, s{sLast}, -1")
    e("    s_nop 6")
    e(f"    s_cmp_eq_u32 s{sGi}, s{sTa}")
    e("    s_cbranch_scc1 L_mask")
    e("L_nomask:")
    e(f"    v_max3_f32 v{vT0}, v{vS}, v{vS+1}, v{vS+2}")
    e(f"    v_max3_f32 v{vT1}, v{vS+3}, v{vS+4}, v{vS+5}")
    e(f"    v_max3_f32 v{vT2}, v{vS+6}, v{vS+7}, v{vS+8}")
    e(f"    v_max3_f32 v{vT3}, v{vS+9}, v{vS+10}, v{vS+11}")
    e(f"    v_max3_f32 v{vT0}, v{vT0}, v{vS+12}, v{vS+13}")
    e(f"    v_max3_f32 v{vT1}, v{vT1}, v{vS+14}, v{vS+15}")
    e(f"    v_max3_f32 v{vT0}, v{vT0}, v{vT2}, v{vT3}")
    e(f"    v_max_f32 v{vT0}, v{vT0}, v{vT1}")
    e(f"    v_mov_b32 v{vT1}, v{vT0}")
    e("    s_nop 1")
    e(f"    v_permlane32_swap_b32 v{vT0}, v{vT1}")
    e(f"    v_max_f32 v{vMx}, v{vT0}, v{vT1}")
    e("L_pubmax:")
    e(f"    ds_write_b64 v{vMw}, v[{vMx}:{vMx+1}]")
    e(f"    v_add_u32 v{vA[0]}, s{sSlot}, v{vVb}")
    e(f"    v_add_u32 v{vA[1]}, 0x10000, v{vA[0]}")
    e(f"    s_xor_b32 s{sSlot}, s{sSlot}, 16384")
    e("L_spin:")
    e(f"    ds_read_b128 v[{vX}:{vX+3}], v{vMr}")
    e(f"    ds_read_b128 v[{vX+4}:{vX+7}], v{vMr} offset:16")
    e("    s_waitcnt lgkmcnt(0)")
    e(f"    v_min3_u32 v{vT0}, v{vX+1}, v{vX+3}, v{vX+5}")
    e(f"    v_min_u32 v{vT0}, v{vT0}, v{vX+7}")
    e(f"    v_cmp_ne_u32 vcc, s{sEp}, v{vT0}")
    e(f"    v_max3_f32 v{vT0}, v{vX}, v{vX+2}, v{vM}")
    e("    s_and_b64 vcc, exec, vcc")
    e("    s_cbranch_vccnz L_spin")
    e(f"    v_max3_f32 v{vT0}, v{vT0}, v{vX+4}, v{vX+6}")
    e(f"    v_sub_f32 v{vT1}, v{vM}, v{vT0}")
    e(f"    v_mul_f32 v{vT2}, s{sC}, v{vT0}")
    e(f"    v_mul_f32 v{vT1}, s{sC}, v{vT1}")
    e(f"    v_mov_b32 v{vM}, v{vT0}")
    e(f"    v_exp_f32 v{vAl}, v{vT1}")
    e(f"    s_cmp_ge_u32 s{sW}, s{sNt}")
    e("    s_cbranch_scc1 L_notile")
    for i in range(16):
        e(f"    v_fma_f32 v{vS+i}, v{vS+i}, s{sC}, -v{vT2}")
    for i in range(8):
        e(f"    v_exp_f32 v{vS+i}, v{vS+i}")
    for i in range(8, 16):
        e(f"    v_exp_f32 v{vS+i}, v{vS+i}")
        if i % 2 == 1:
            k = i - 9
            e(f"    v_cvt_pk_bf16_f32 v{vP_+k//2}, v{vS+k}, v{vS+k+1}")
    e(f"    ds_write_b128 v{vPw}, v[{vP_}:{vP_+3}]")
    for i in range(4, 8):
        e(f"    v_cvt_pk_bf16_f32 v{vP_+i}, v{vS+2*i}, v{vS+2*i+1}")
    e(f"    ds_write_b128 v{vPw}, v[{vP_+4}:{vP_+7}] offset:1024")
    for i in range(4):
        e(f"    v_pk_add_f32 v[{vS+2*i}:{vS+2*i+1}], v[{vS+2*i}:{vS+2*i+1}], v[{vS+8+2*i}:{vS+8+2*i+1}]")
    for i in range(2):
        e(f"    v_pk_add_f32 v[{vS+2*i}:{vS+2*i+1}], v[{vS+2*i}:{vS+2*i+1}], v[{vS+4+2*i}:{vS+4+2*i+1}]")
    e(f"    v_pk_add_f32 v[{vS}:{vS+1}], v[{vS}:{vS+1}], v[{vS+2}:{vS+3}]")
    e(f"    v_fma_f32 v{vLs}, v{vLs}, v{vAl}, v{vS}")
    e(f"    v_add_f32 v{vLs}, v{vLs}, v{vS+1}")
    e("L_scale:")
    e(f"    v_mov_b32 v{vT0}, v{vLs}")
    e(f"    v_mov_b32 v{vT1}, v{vLs}")
    for i in range(8):
        e(f"    v_pk_mul_f32 v[{vO+2*i}:{vO+2*i+1}], v[{vO+2*i}:{vO+2*i+1}], v[{vAl}:{vAl+1}] op_sel_hi:[1,0]")
    e(f"    v_permlane32_swap_b32 v{vT0}, v{vT1}")
    e(f"    v_add_f32 v{vT0}, v{vT0}, v{vT1}")
    e(f"    ds_write_b32 v{vLw}, v{vT0}")
    e("    s_waitcnt lgkmcnt(0)")
    e("    s_barrier")
    units = [(t, m) for t in range(4) for m in range(2)]

    def p_read(u):
        t, m = units[u]
        p = vPa + 4 * u
        return f"    ds_read_b128 v[{p}:{p+3}], v{vPr} offset:{t*2048+m*1024}"

    def v_reads(u):
        t, m = units[u]
        a = vF + 4 * u
        off = (t & 1) * 32768 + m * 4096
        return [f"    ds_read_b64_tr_b16 v[{a}:{a+1}], v{vA[t>>1]} offset:{off}",
                f"    ds_read_b64_tr_b16 v[{a+2}:{a+3}], v{vA[t>>1]} offset:{off+2048}"]

    def pv_mfma(u):
        return f"    v_mfma_f32_32x32x16_bf16 v[{vO}:{vO+15}], v[{vF+4*u}:{vF+4*u+3}], v[{vPa+4*u}:{vPa+4*u+3}], v[{vO}:{vO+15}]"

    e(f"    ds_read_b128 v[{vX}:{vX+3}], v{vLr}")
    if vsplit:
        e(f"    s_cmp_eq_u32 s{sGi}, s{sLast}")
        e(f"    s_cselect_b32 s{sTa}, s{sItem}, 0")
        e(f"    s_cmp_lg_u32 s{sTa}, 0")
        e("    s_cbranch_scc1 L_pvlast")
    for u in range(4):
        e(p_read(u))
        L.extend(v_reads(u))
    for u in range(8):
        e(f"    s_waitcnt lgkmcnt({min(9, 3*(7-u))})")
        e(pv_mfma(u))
        if u + 4 < 8:
            e(p_read(u + 4))
            L.extend(v_reads(u + 4))
        if u % 2 == 1 and u < 7:
            e(f"    s_cmp_eq_u32 s{sNt}, {u//2+1}")
            e("    s_cbranch_scc1 L_pvdone")
    e("L_pvdone:")
    e(f"    s_cmp_eq_u32 s{sGi}, s{sLast}")
    e("    s_cbranch_scc1 L_final")
    e(f"    s_add_u32 s{sGi}, s{sGi}, 1")
    e("    s_waitcnt lgkmcnt(0)")
    e("    s_branch L_loop")

    if vsplit:
        e("L_pvlast:")
        L.extend(v_reads(0) + v_reads(1))
        for u in range(8):
            e(p_read(u))
        for t in range(4):
            if t:
                e("    s_barrier")
                L.extend(v_reads(2 * t) + v_reads(2 * t + 1))
                e("    s_waitcnt lgkmcnt(2)")
            else:
                e("    s_waitcnt lgkmcnt(7)")
            e(pv_mfma(2 * t))
            e(f"    s_waitcnt lgkmcnt({6 if t == 0 else 0})")
            e(pv_mfma(2 * t + 1))
            if t < 3:
                e(f"    s_cmp_eq_u32 s{sNt}, {t+1}")
                e("    s_cbranch_scc1 L_final")
        e("    s_nop 0")
        e("    s_branch L_final")

    e("L_notile:")
    e(f"    v_mul_f32 v{vLs}, v{vLs}, v{vAl}")
    e("    s_branch L_scale")

    e("L_readq:")
    e(f"    v_add_u32 v{vX}, s{sTe}, v{vKrd}")
    for j in range(1, 8):
        e(f"    v_xor_b32 v{vX+j}, {j<<5}, v{vX}")
    for j in range(8):
        e(f"    ds_read_b128 v[{vQ+4*j}:{vQ+4*j+3}], v{vX+j}")
    e(f"    s_mov_b32 s{sTe}, 0")
    e("    s_waitcnt lgkmcnt(0)")
    e("    s_branch L_noq")

    e("L_mask:")
    e(f"    v_sub_u32 v{vT0}, s{sNv}, v{vHH}")
    e(f"    v_mov_b32 v{vT1}, {NEG:#x}")
    for v in range(16):
        t = 16 * (v >> 3) + 2 * ((v >> 2) & 1) + 4 * (v & 3)
        e(f"    v_cmp_lt_i32 vcc, {t}, v{vT0}")
        e("    s_nop 1")
        e(f"    v_cndmask_b32 v{vS+v}, v{vT1}, v{vS+v}, vcc")
    e("    s_branch L_nomask")

    e("L_final:")
    if diag:
        e(f"    s_cmp_eq_u32 s{sItem}, 0")
        e("    s_cbranch_scc1 L_nots6")
        ts(6)
        e("L_nots6:")
    e(f"    v_add_f32 v{vT0}, v{vX}, v{vX+1}")
    e(f"    v_add_f32 v{vT1}, v{vX+2}, v{vX+3}")
    e(f"    v_add_f32 v{vT0}, v{vT0}, v{vT1}")
    e(f"    v_rcp_f32 v{vAl}, v{vT0}")
    e(f"    s_xor_b32 s{sTa}, s{sSlot}, 16384")
    e(f"    s_add_u32 s{sTa}, s{sTa}, s{sRing}")
    e(f"    v_add_u32 v{vA[2]}, s{sTa}, v{vTw}")
    e(f"    v_xor_b32 v{vA[3]}, 32, v{vA[2]}")
    e(f"    v_add_u32 v{vA[4]}, s{sTa}, v{vTr}")
    e(f"    s_add_u32 s{sTa}, s{sQo1}, 4096")
    for i in range(8):
        e(f"    v_pk_mul_f32 v[{vO+2*i}:{vO+2*i+1}], v[{vO+2*i}:{vO+2*i+1}], v[{vAl}:{vAl+1}] op_sel_hi:[1,0]")
    for i in range(8):
        e(f"    v_cvt_pk_bf16_f32 v{vP_+i}, v{vO+2*i}, v{vO+2*i+1}")
    e(f"    v_permlane32_swap_b32 v{vP_}, v{vP_+2}")
    e(f"    v_permlane32_swap_b32 v{vP_+1}, v{vP_+3}")
    e(f"    v_permlane32_swap_b32 v{vP_+4}, v{vP_+6}")
    e(f"    v_permlane32_swap_b32 v{vP_+5}, v{vP_+7}")
    e(f"    ds_write_b128 v{vA[2]}, v[{vP_}:{vP_+3}]")
    e(f"    ds_write_b128 v{vA[3]}, v[{vP_+4}:{vP_+7}]")
    e(f"    ds_read_b128 v[{vS}:{vS+3}], v{vA[4]}")
    e(f"    ds_read_b128 v[{vS+4}:{vS+7}], v{vA[4]} offset:1024")
    e(f"    s_waitcnt lgkmcnt({0 if diag else 1})")
    e(f"    buffer_store_dwordx4 v[{vS}:{vS+3}], v{vOo}, s[{OS}:{OS+3}], s{sQo1} offen {opol}")
    e(f"    s_waitcnt lgkmcnt(0)")
    e(f"    buffer_store_dwordx4 v[{vS+4}:{vS+7}], v{vOo}, s[{OS}:{OS+3}], s{sTa} offen {opol}")
    e(f"    s_cmp_lg_u32 s{sItem}, 0")
    e("    s_cbranch_scc1 L_end")
    e(f"    s_mov_b32 s{sItem}, 1")
    e(f"    s_mov_b32 s{sC}, s{sC2}")
    e(f"    s_mov_b32 s{sQo1}, s{sQo2}")
    e(f"    s_mov_b32 s{sKey1}, s{sKey2}")
    e(f"    s_mov_b32 s{sTe}, {QB+8192}")
    e("    s_branch L_item")
    e("L_end:")
    if diag:
        ts(4)
        e("    s_waitcnt vmcnt(0)")
        ts(7)
        diag_store("c")
    e("L_done:")
    e("    s_endpgm")
    e('.section .rodata,"a"')
    e(".p2align 6")
    e(f".amdhsa_kernel {NAME}_kernel")
    e(f"  .amdhsa_next_free_vgpr {NV}")
    e("  .amdhsa_next_free_sgpr 102")
    e(f"  .amdhsa_accum_offset {NV}")
    e("  .amdhsa_group_segment_fixed_size 0")
    e("  .amdhsa_kernarg_size 64")
    e("  .amdhsa_user_sgpr_count 2")
    e("  .amdhsa_user_sgpr_kernarg_segment_ptr 1")
    e("  .amdhsa_system_sgpr_workgroup_id_x 1")
    e("  .amdhsa_float_denorm_mode_32 3")
    e(".end_amdhsa_kernel")
    return "\n".join(L) + "\n"


if __name__ == "__main__":
    ap = argparse.ArgumentParser()
    ap.add_argument("-o", default="/dev/stdout")
    ap.add_argument("--W", type=int, default=21)
    ap.add_argument("--Wtail", type=int, default=32)
    ap.add_argument("--tailg", type=int, default=0)
    ap.add_argument("--pol", default="nt")
    ap.add_argument("--opol", default="")
    ap.add_argument("--prio", type=int, default=3)
    ap.add_argument("--cpre", type=int, default=0)
    ap.add_argument("--enc", default=None)
    ap.add_argument("--nospec", action="store_true")
    ap.add_argument("--vsplit", action="store_true")
    ap.add_argument("--diag", action="store_true")
    a = ap.parse_args()
    open(a.o, "w").write(gen(W=a.W, pol=a.pol, diag=a.diag, opol=a.opol, Wtail=a.Wtail, tailg=a.tailg,
                             prio=a.prio, cpre=a.cpre, enc=None if a.enc is None else a.enc.split(","),
                             spec=not a.nospec, vsplit=a.vsplit))
```

```python
import argparse
from gen import HEADER, NAME, f2u


def gen(W=21, pol="nt", diag=False, opol="", Wtail=32, tailg=0, prio=3, cpre=0, enc=None, spec=True,
        vsplit=False, skip=True, perm=None):
    L = []
    e = L.append
    QB = 131072
    PB = QB + 16384
    MX = PB + 8192
    LB = MX + 1024
    LDS = LB + 512
    assert 2 <= W <= 25
    CSC = f2u((128 ** -0.5) * 1.4426950408889634)
    NEG = f2u(-1e30)

    sQ, sK, sV, sBT = 4, 6, 8, 10
    sCL, sOUT = 12, 14
    sDBG, sWS = 16, 18
    KS, OS = 20, 32
    sKh, sVh = 36, 38
    sWv, sP, sH = 40, 41, 42
    sB1, sB2, sKey1, sKey2 = 43, 44, 45, 46
    sT, sG, sBa, sRe, sE = 47, 48, 49, 50, 51
    sBo, sRem, sGl = 52, 53, 54
    sSlot, sGi, sNt = 55, 56, 57
    sT0, sTa, sTb, sTc, sTd, sTe = 58, 59, 60, 61, 62, 63
    sM0, sM1 = 64, 66
    sW, sKc = 68, 69
    sTS = 70
    sQo1, sQo2 = 86, 87
    sItem = 100
    sC, sC2, sNv, sEp, sRing, sLast, sNu = 20, 21, 22, 24, 26, 27, 23
    sNx = list(range(24, 32))
    sPg = list(range(88, 96))
    sNr = [64, 65, 66, 67, 96, 97, 98, 99]
    sG1g, sG2g = 32, 33
    LENS = [2048 - ((i * 2654435761) % 1024) for i in range(1, 17)]
    ORDER = sorted(range(16), key=lambda b: (-LENS[b], -b))
    GU1 = sum(ORDER[p] << (4 * p) for p in range(8))
    GU2 = sum(ORDER[15 - p] << (4 * p) for p in range(8))

    vL = 1
    vKo = [2, 3, 4, 5]
    vVo = [6, 7, 8, 9]
    vQo = [12, 13, 14, 15]
    vKrd, vVb, vPr, vPw, vMw, vMr, vLw, vLr, vOo = 2, 3, 4, 5, 6, 7, 8, 9, 10
    vHH = 11
    vA = list(range(12, 20))
    vM, vLs = 20, 21
    vMx = 22
    vAl = 24
    vTw, vTr = 26, 27
    vT0, vT1, vT2, vT3 = 28, 29, 30, 31
    vS = 32
    vP_ = 48
    vX = 56
    vQ = 64
    vF = 96
    vPa = 128
    vO = 160
    NV = 176

    def ts(i):
        if diag:
            e(f"    s_memrealtime s[{sTS+2*i}:{sTS+2*i+1}]")

    def hold(role):
        if enc[0] != role:
            return
        idx, mult = int(enc[1]), int(enc[2])
        e("    s_waitcnt vmcnt(0) lgkmcnt(0)")
        e(f"    s_sub_u32 s{sT0}, s{sTS+2*idx}, s{sTS}")
        if mult < 0:
            e(f"    s_sub_u32 s{sT0}, 8000, s{sT0}")
        e(f"    s_min_u32 s{sT0}, s{sT0}, 10000")
        e(f"    s_mul_i32 s{sT0}, s{sT0}, {abs(mult)}")
        e(f"    s_add_u32 s{sT0}, s{sT0}, 10000")
        e(f"L_hold{role}:")
        e("    s_sleep 8")
        e("    s_memrealtime s[88:89]")
        e("    s_waitcnt lgkmcnt(0)")
        e(f"    s_sub_u32 s88, s88, s{sTS}")
        e(f"    s_cmp_lt_u32 s88, s{sT0}")
        e(f"    s_cbranch_scc1 L_hold{role}")

    def diag_store(role):
        if enc:
            hold(role)
            return
        e("    s_getreg_b32 s88, hwreg(HW_REG_XCC_ID)")
        e("    s_getreg_b32 s89, hwreg(HW_REG_HW_ID)")
        e("    s_waitcnt lgkmcnt(0)")
        e(f"    s_mul_i32 s{sT0}, s2, 5")
        e(f"    s_add_u32 s{sT0}, s{sT0}, s{sWv}")
        e(f"    s_lshl_b32 s{sT0}, s{sT0}, 7")
        e(f"    v_mov_b32 v{vT0}, s{sT0}")
        for i in range(4):
            for j in range(4):
                e(f"    v_mov_b32 v{vS+j}, s{sTS+4*i+j}")
            e(f"    global_store_dwordx4 v{vT0}, v[{vS}:{vS+3}], s[{sWS}:{sWS+1}] offset:{16*i}")
            e("    s_nop 1")
        e(f"    v_mov_b32 v{vS}, s88")
        e(f"    v_mov_b32 v{vS+1}, s89")
        e(f"    v_mov_b32 v{vS+2}, s{sG}")
        e(f"    v_mov_b32 v{vS+3}, s{sB1}")
        e(f"    global_store_dwordx4 v{vT0}, v[{vS}:{vS+3}], s[{sWS}:{sWS+1}] offset:64")

    def q_dma():
        out = []
        for item in range(2):
            so = sQo1 if item == 0 else sQo2
            for half in range(2):
                out.append(f"    s_mov_b32 m0, {QB + item*8192 + half*4096}")
                out.append(f"    s_add_u32 s{sTd}, s{so}, {half*4096}")
                for i in range(4):
                    off = f" offset:{i*1024}" if i else ""
                    out.append(f"    buffer_load_dwordx4 v{vQo[i]}, s[{KS}:{KS+3}], s{sTd} offen{off} {pol} lds")
        return out

    def q_offsets(b1, b2):
        return [f"    s_lshl_b32 s{sTd}, s{sH}, 13",
                f"    s_lshl_b32 s{sQo1}, s{b1}, 18",
                f"    s_lshl_b32 s{sQo2}, s{b2}, 18",
                f"    s_add_u32 s{sQo1}, s{sQo1}, s{sTd}",
                f"    s_add_u32 s{sQo2}, s{sQo2}, s{sTd}"]

    def item_params(key):
        return [f"    s_lshr_b32 s{sG}, s{key}, 11",
                f"    s_lshr_b32 s{sT}, s{key}, 9",
                f"    s_lshr_b32 s{sE}, s{key}, 4",
                f"    s_add_u32 s{sG}, s{sG}, 1",
                f"    s_add_u32 s{sT}, s{sT}, 1",
                f"    s_add_u32 s{sE}, s{sE}, 1",
                f"    s_lshl_b32 s{sRe}, s{sG}, 1",
                f"    s_cmp_ge_u32 s{sT}, s{sRe}",
                f"    s_addc_u32 s{sBa}, 1, 0",
                f"    s_add_u32 s{sRe}, s{sRe}, s{sG}",
                f"    s_cmp_ge_u32 s{sT}, s{sRe}",
                f"    s_addc_u32 s{sBa}, s{sBa}, 0",
                f"    s_add_u32 s{sRe}, s{sRe}, s{sG}",
                f"    s_cmp_ge_u32 s{sT}, s{sRe}",
                f"    s_addc_u32 s{sBa}, s{sBa}, 0",
                f"    s_mul_i32 s{sRe}, s{sBa}, s{sG}",
                f"    s_sub_u32 s{sRe}, s{sT}, s{sRe}"]

    def cl_loads():
        return [f"    global_load_dword v{vS}, v{vX+0}, s[{sCL}:{sCL+1}]",
                f"    global_load_dwordx4 v[{vS+4}:{vS+7}], v{vX+2}, s[{sCL}:{sCL+1}]"]

    def sort_consts():
        return [f"    v_lshrrev_b32 v{vX+6}, 2, v{vL}",
                f"    v_lshlrev_b32 v{vX+7}, 2, v{vX+1}",
                f"    s_sub_u32 s{sTe}, 15, s{sP}",
                f"    s_movk_i32 s{sT0}, 2047"]

    def sort_code():
        out = [f"    v_add_u32 v{vS+1}, -1, v{vS}"]
        for j in range(4):
            out.append(f"    v_add_u32 v{vS+4+j}, -1, v{vS+4+j}")
        out.append(f"    v_min_u32 v{vS+1}, s{sT0}, v{vS+1}")
        for j in range(4):
            out.append(f"    v_min_u32 v{vS+4+j}, s{sT0}, v{vS+4+j}")
        out.append(f"    v_lshl_or_b32 v{vS+1}, v{vS+1}, 4, v{vX+6}")
        out.append(f"    v_sub_u32 v{vS+2}, v{vS+1}, v{vX+7}")
        for j in range(4):
            out.append(f"    v_lshl_or_b32 v{vS+4+j}, v{vS+4+j}, 4, {j}")
        for j in range(4):
            out.append(f"    v_sub_u32 v{vS+4+j}, v{vS+2}, v{vS+4+j}")
        for j in range(4):
            out.append(f"    v_lshrrev_b32 v{vS+4+j}, 31, v{vS+4+j}")
        out += [f"    v_add_u32 v{vS+4}, v{vS+4}, v{vS+5}",
                f"    v_add3_u32 v{vS+4}, v{vS+4}, v{vS+6}, v{vS+7}",
                "    s_nop 1",
                f"    v_add_u32_dpp v{vS+5}, v{vS+4}, v{vS+4} quad_perm:[1,0,3,2] row_mask:0xf bank_mask:0xf",
                "    s_nop 1",
                f"    v_add_u32_dpp v{vS+4}, v{vS+5}, v{vS+5} quad_perm:[2,3,0,1] row_mask:0xf bank_mask:0xf",
                f"    v_cmp_eq_u32 s[{sM0}:{sM0+1}], s{sP}, v{vS+4}",
                f"    v_cmp_eq_u32 s[{sM1}:{sM1+1}], s{sTe}, v{vS+4}",
                f"    s_ff1_i32_b64 s{sTa}, s[{sM0}:{sM0+1}]",
                f"    s_ff1_i32_b64 s{sTb}, s[{sM1}:{sM1+1}]",
                f"    v_readlane_b32 s{sKey1}, v{vS+1}, s{sTa}",
                f"    v_readlane_b32 s{sKey2}, v{vS+1}, s{sTb}",
                f"    s_lshr_b32 s{sB1}, s{sTa}, 2",
                f"    s_lshr_b32 s{sB2}, s{sTb}, 2"]
        return out

    e(HEADER.rstrip())
    e(f"; @launch grid=(256,1,1) block=(320,1,1) lds={LDS}")
    e('.amdgcn_target "amdgcn-amd-amdhsa--gfx950"')
    e(".text")
    e(f".globl {NAME}_kernel")
    e(".p2align 8")
    e(f".type {NAME}_kernel,@function")
    e(f"{NAME}_kernel:")
    e("    s_cmp_ge_u32 s2, 256")
    e("    s_cbranch_scc1 L_done")
    if diag:
        for i in range(16):
            e(f"    s_mov_b32 s{sTS+i}, 0")
    ts(0)
    e(f"    s_load_dwordx4 s[12:15], s[0:1], 32")
    e(f"    s_load_dwordx8 s[4:11], s[0:1], 0")
    if diag:
        e(f"    s_load_dwordx4 s[16:19], s[0:1], 48")
    e(f"    v_lshrrev_b32 v{vT0}, 6, v0")
    e(f"    v_and_b32 v{vL}, 63, v0")
    e(f"    v_readfirstlane_b32 s{sWv}, v{vT0}")
    e(f"    s_and_b32 s{sP}, s2, 7")
    if perm:
        assert sorted(perm) == list(range(8))
        PK = sum(perm[x] << (4 * x) for x in range(8))
        e(f"    s_lshl_b32 s{sP}, s{sP}, 2")
        e(f"    s_lshr_b32 s{sP}, {PK:#x}, s{sP}")
        e(f"    s_and_b32 s{sP}, s{sP}, 7")
    e(f"    s_lshr_b32 s{sH}, s2, 3")
    e(f"    v_and_b32 v{vX+0}, 60, v{vL}")
    e(f"    v_and_b32 v{vX+1}, 3, v{vL}")
    e(f"    v_lshlrev_b32 v{vX+2}, 4, v{vX+1}")
    e(f"    s_cmp_lg_u32 s{sWv}, 0")
    e("    s_cbranch_scc1 L_consumer")

    e(f"    v_lshrrev_b32 v{vT0}, 4, v{vL}")
    e(f"    v_and_b32 v{vT1}, 15, v{vL}")
    e(f"    v_lshlrev_b32 v{vT2}, 2, v{vT0}")
    e(f"    v_xor_b32 v{vT1}, v{vT1}, v{vT2}")
    e(f"    v_lshlrev_b32 v{vT1}, 4, v{vT1}")
    e(f"    v_lshl_add_u32 v{vQo[0]}, v{vT0}, 8, v{vT1}")
    for i in range(1, 4):
        e(f"    v_xor_b32 v{vQo[i]}, {i*16}, v{vQo[0]}")
    e(f"    s_mov_b32 s{KS+2}, 0x400000")
    e(f"    s_mov_b32 s{KS+3}, 0x20000")
    if spec:
        e(f"    s_lshl_b32 s{sT0}, s{sP}, 2")
        e(f"    s_lshr_b32 s{sG1g}, {GU1:#x}, s{sT0}")
        e(f"    s_lshr_b32 s{sG2g}, {GU2:#x}, s{sT0}")
        e(f"    s_and_b32 s{sG1g}, s{sG1g}, 15")
        e(f"    s_and_b32 s{sG2g}, s{sG2g}, 15")
        L.extend(q_offsets(sG1g, sG2g))
        e(f"    s_lshl_b32 s{sBo}, s{sG1g}, 9")
    else:
        e(f"    v_lshlrev_b32 v{vX+3}, 7, v{vL}")
    e("    s_waitcnt lgkmcnt(0)")
    ts(1)
    L.extend(cl_loads())
    e(f"    s_mov_b32 s{KS}, s{sQ}")
    e(f"    s_mov_b32 s{KS+1}, s{sQ+1}")
    if spec:
        e(f"    s_load_dwordx8 s[{sNx[0]}:{sNx[7]}], s[{sBT}:{sBT+1}], s{sBo}")
        L.extend(q_dma())
    else:
        e(f"    global_load_dword v{vS+8}, v{vX+3}, s[{sBT}:{sBT+1}]")
    if prio:
        e(f"    s_setprio {prio}")
    e(f"    v_lshl_add_u32 v{vVo[0]}, v{vT0}, 15, v{vT1}")
    for i in range(1, 4):
        e(f"    v_add_u32 v{vVo[i]}, {i*(8192-1024)}, v{vVo[0]}")
    e(f"    v_mov_b32 v{vKo[0]}, v{vVo[0]}")
    for i in range(1, 4):
        e(f"    v_xor_b32 v{vKo[i]}, {i*16}, v{vVo[i]}")
    e(f"    s_lshl_b32 s{sT0}, s{sH}, 8")
    e(f"    s_add_u32 s{sKh}, s{sK}, s{sT0}")
    e(f"    s_addc_u32 s{sKh+1}, s{sK+1}, 0")
    e(f"    s_add_u32 s{sVh}, s{sV}, s{sT0}")
    e(f"    s_addc_u32 s{sVh+1}, s{sV+1}, 0")
    e(f"    s_mov_b32 s{sKc}, 0")
    e(f"    s_mov_b32 s{sGi}, 0")
    e(f"    s_mov_b32 s{sSlot}, 0")
    e(f"    s_mov_b32 s{sItem}, 0")
    L.extend(sort_consts())
    e(f"    s_waitcnt vmcnt({16 if spec else 1})")
    ts(2)
    L.extend(sort_code())
    if spec:
        e(f"    s_cmp_lg_u32 s{sB1}, s{sG1g}")
        e("    s_cbranch_scc1 L_ld_redo")
        e(f"    s_cmp_lg_u32 s{sB2}, s{sG2g}")
        e("    s_cbranch_scc1 L_ld_redo")
    else:
        e(f"    s_lshl_b32 s{sBo}, s{sB1}, 9")
        e(f"    s_load_dwordx8 s[{sNx[0]}:{sNx[7]}], s[{sBT}:{sBT+1}], s{sBo}")
        L.extend(q_offsets(sB1, sB2))
        L.extend(q_dma())
    e("L_ld_item:")
    L.extend(item_params(sKey1))
    e(f"    s_mov_b32 s{sRem}, s{sE}")
    e(f"    s_mov_b32 s{sGl}, s{sG}")
    if diag:
        e(f"    s_cmp_lg_u32 s{sItem}, 0")
        e("    s_cbranch_scc1 L_ld_go")
        ts(3)
    e("    s_branch L_ld_go")
    if spec:
        e("L_ld_redo:")
        e("    s_waitcnt vmcnt(0) lgkmcnt(0)")
        e(f"    s_lshl_b32 s{sBo}, s{sB1}, 9")
        e(f"    s_load_dwordx8 s[{sNx[0]}:{sNx[7]}], s[{sBT}:{sBT+1}], s{sBo}")
        L.extend(q_offsets(sB1, sB2))
        L.extend(q_dma())
        e("    s_branch L_ld_item")

    def page_setup(isK, j):
        out = []
        if isK:
            out.append(f"    s_min_u32 s{sTa}, s{sNx[j]}, 0x803")
            out.append(f"    s_min_i32 s{sTb}, s{sRem}, 16")
            out.append(f"    s_lshl_b32 s{sPg[j]}, s{sTa}, 17")
            out.append(f"    s_max_i32 s{sTb}, s{sTb}, 0")
            out.append(f"    s_sub_i32 s{sRem}, s{sRem}, 16")
            out.append(f"    s_lshl_b32 s{sNr[j]}, s{sTb}, 13")
        elif j < 4:
            out.append(f"    s_add_u32 s{sTa}, s{sBo}, {8*j}")
            out.append(f"    s_min_u32 s{sTa}, s{sTa}, 8184")
            out.append(f"    s_load_dwordx2 s[{sNx[2*j]}:{sNx[2*j+1]}], s[{sBT}:{sBT+1}], s{sTa}")
        base = sKh if isK else sVh
        c = (j >> 1) * 32768 + (j & 1) * 4096 + (0 if isK else 8192)
        out.append(f"    s_add_u32 m0, s{sSlot}, {c}")
        out.append(f"    s_add_u32 s{KS}, s{base}, s{sPg[j]}")
        out.append(f"    s_addc_u32 s{KS+1}, s{base+1}, 0")
        out.append(f"    s_mov_b32 s{KS+2}, s{sNr[j]}")
        return out

    uid = [0]

    def prev_barrier():
        uid[0] += 1
        return [f"    s_cmp_eq_u32 s{sKc}, 0",
                f"    s_cbranch_scc1 L_nb{uid[0]}",
                "    s_barrier",
                f"L_nb{uid[0]}:"]

    def group_code(npg, Wn, last):
        out = []
        seq = [(True, j, i) for j in range(npg) for i in range(4)] + \
              [(False, j, i) for j in range(npg) for i in range(4)]
        pend = [(0, "prev"), (4 * npg, "K")]
        if last:
            if vsplit:
                pend += [(4 * npg + min(8 * (t + 1), 4 * npg), "V") for t in range((npg + 1) // 2)]
            else:
                pend.append((8 * npg, "V"))
        for n, (isK, j, i) in enumerate(seq):
            if i == 0:
                ps = page_setup(isK, j)
                if last and not isK and j < 4:
                    ps = ps[3:]
                out += ps
            fr = Wn - int(Wn)
            wv = int(Wn) - 1 + (int((n + 1) * fr + 1e-9) - int(n * fr + 1e-9))
            out.append(f"    s_waitcnt vmcnt({wv})")
            while pend and n - pend[0][0] >= wv:
                out += prev_barrier() if pend[0][1] == "prev" else ["    s_barrier"]
                pend.pop(0)
            vo = vKo if isK else vVo
            off = f" offset:{i*1024}" if i else ""
            out.append(f"    buffer_load_dwordx4 v{vo[i]}, s[{KS}:{KS+3}], 0 offen{off} {pol} lds")
        if not last:
            for j in range(npg, 4):
                out += page_setup(False, j)[:3]
        for (pos, name) in pend:
            out.append(f"    s_waitcnt vmcnt({len(seq)-pos})")
            out += prev_barrier() if name == "prev" else ["    s_barrier"]
        if last:
            out.append("    s_branch L_ld_end" if diag else "    s_endpgm")
        else:
            out.append("    s_branch L_ld_next")
        return out

    e("L_ld_switch:")
    e(f"    s_mov_b32 s{sItem}, 1")
    e(f"    s_mov_b32 s{sGi}, 0")
    e(f"    s_mov_b32 s{sKey1}, s{sKey2}")
    e("    s_branch L_ld_item")
    e("    .p2align 6")
    e("L_ld_next:")
    e(f"    s_xor_b32 s{sSlot}, s{sSlot}, 16384")
    e(f"    s_add_u32 s{sKc}, s{sKc}, 1")
    e(f"    s_add_u32 s{sGi}, s{sGi}, 1")
    e(f"    s_sub_u32 s{sGl}, s{sGl}, 1")
    e(f"    s_cmp_eq_u32 s{sGl}, 0")
    e("    s_cbranch_scc1 L_ld_switch")
    e("L_ld_go:")
    e(f"    s_cmp_lt_u32 s{sGi}, s{sRe}")
    e(f"    s_addc_u32 s{sNt}, s{sBa}, 0")
    e(f"    s_lshl3_add_u32 s{sBo}, s{sNt}, s{sBo}")
    e(f"    s_lshl_b32 s{sTa}, s{sB2}, 9")
    e(f"    s_cmp_eq_u32 s{sGl}, 1")
    e(f"    s_cselect_b32 s{sBo}, s{sTa}, s{sBo}")
    e(f"    s_cmp_eq_u32 s{sItem}, 0")
    e(f"    s_cselect_b32 s{sTa}, 64, s{sGl}")
    e(f"    s_lshl_b32 s{sNt}, s{sNt}, 1")
    if skip:
        e(f"    s_add_u32 s{sTb}, s{sRem}, 15")
        e(f"    s_lshr_b32 s{sTb}, s{sTb}, 4")
        e(f"    s_min_u32 s{sNt}, s{sNt}, s{sTb}")
    e("    s_waitcnt lgkmcnt(0)")
    e(f"    s_cmp_eq_u32 s{sTa}, 1")
    e("    s_cbranch_scc1 L_ld_last")
    NPS = (7, 6, 5, 4, 3, 2, 1) if skip else (6, 4, 2)
    if tailg:
        e(f"    s_cmp_le_u32 s{sTa}, {tailg+1}")
        e("    s_cbranch_scc1 L_ld_tail")
    e(f"    s_cmp_lg_u32 s{sNt}, 8")
    e("    s_cbranch_scc1 L_ld_small")
    L.extend(group_code(8, W, False))
    e("L_ld_small:")
    for npg in NPS:
        if npg != 6:
            e(f"    s_cmp_eq_u32 s{sNt}, {npg}")
            e(f"    s_cbranch_scc1 L_ld_mid{npg}")
    for npg in sorted(NPS, key=lambda x: (x != 6, -x)):
        e(f"L_ld_mid{npg}:")
        L.extend(group_code(npg, W, False))
    if tailg:
        e("L_ld_tail:")
        e(f"    s_cmp_eq_u32 s{sNt}, 6")
        e("    s_cbranch_scc1 L_ld_tail6")
        e(f"    s_cmp_lg_u32 s{sNt}, 8")
        e("    s_cbranch_scc1 L_ld_small")
        L.extend(group_code(8, min(Wtail, 32), False))
        e("L_ld_tail6:")
        L.extend(group_code(6, min(Wtail, 25), False))
    e("L_ld_last:")
    for npg in NPS:
        e(f"    s_cmp_eq_u32 s{sNt}, {npg}")
        e(f"    s_cbranch_scc1 L_ld_last{npg}")
    for npg in (8,) + NPS:
        e(f"L_ld_last{npg}:")
        L.extend(group_code(npg, min(Wtail, 63), True))
    if diag:
        e("L_ld_end:")
        ts(6)
        ts(7)
        diag_store("l")
        e("    s_endpgm")

    e("L_consumer:")
    e(f"    s_sub_u32 s{sW}, s{sWv}, 1")
    e(f"    v_and_b32 v{vT0}, 31, v{vL}")
    e(f"    v_lshrrev_b32 v{vHH}, 5, v{vL}")
    e(f"    v_bfe_u32 v{vT2}, v{vL}, 2, 2")
    L.extend(sort_consts())
    e("    s_waitcnt lgkmcnt(0)")
    ts(1)
    L.extend(cl_loads())
    e(f"    v_lshl_or_b32 v{vT1}, v{vX+1}, 2, v{vT2}")
    e(f"    v_xor_b32 v{vT1}, v{vT1}, v{vHH}")
    e(f"    v_lshlrev_b32 v{vT1}, 4, v{vT1}")
    e(f"    v_lshl_add_u32 v{vKrd}, v{vT0}, 8, v{vT1}")
    e(f"    s_lshl_b32 s{sRing}, s{sW}, 15")
    e(f"    v_lshlrev_b32 v{vT1}, 5, v{vT0}")
    e(f"    v_add_u32 v{vMr}, {MX}, v{vT1}")
    e(f"    s_lshl_b32 s{sTa}, s{sW}, 3")
    e(f"    v_add_u32 v{vMw}, s{sTa}, v{vMr}")
    e(f"    v_lshlrev_b32 v{vT1}, 4, v{vT0}")
    e(f"    v_add_u32 v{vLr}, {LB}, v{vT1}")
    e(f"    s_lshl_b32 s{sTa}, s{sW}, 2")
    e(f"    v_add_u32 v{vLw}, s{sTa}, v{vLr}")
    e(f"    v_bfe_u32 v{vT1}, v{vL}, 1, 2")
    e(f"    v_xor_b32 v{vT1}, v{vT1}, v{vHH}")
    e(f"    v_lshlrev_b32 v{vT1}, 4, v{vT1}")
    e(f"    v_lshl_add_u32 v{vTw}, v{vT0}, 6, v{vT1}")
    e(f"    v_bfe_u32 v{vT1}, v{vL}, 3, 2")
    e(f"    v_xor_b32 v{vT1}, v{vT1}, v{vL}")
    e(f"    v_lshlrev_b32 v{vTr}, 4, v{vT1}")
    e(f"    s_lshl_b32 s{sTa}, s{sW}, 6")
    e(f"    v_lshl_add_u32 v{vT1}, v{vX+6}, 8, v{vX+2}")
    e(f"    v_add_u32 v{vOo}, s{sTa}, v{vT1}")
    e(f"    v_lshl_add_u32 v{vT0}, v{vHH}, 2, v{vT2}")
    e(f"    v_lshlrev_b32 v{vT0}, 8, v{vT0}")
    e(f"    v_lshl_or_b32 v{vT0}, v{vT2}, 6, v{vT0}")
    e(f"    v_bfe_u32 v{vT1}, v{vL}, 4, 1")
    e(f"    v_lshl_or_b32 v{vT0}, v{vT1}, 5, v{vT0}")
    e(f"    v_lshl_or_b32 v{vT0}, v{vX+1}, 3, v{vT0}")
    e(f"    v_xor_b32 v{vT0}, s{sTa}, v{vT0}")
    e(f"    v_add_u32 v{vVb}, 8192, v{vT0}")
    e(f"    v_lshlrev_b32 v{vT1}, 4, v{vL}")
    e(f"    v_add_u32 v{vPr}, {PB}, v{vT1}")
    e(f"    s_lshl_b32 s{sTa}, s{sW}, 11")
    e(f"    v_add_u32 v{vPw}, s{sTa}, v{vPr}")
    e(f"    s_mov_b32 s{OS}, s{sOUT}")
    e(f"    s_mov_b32 s{OS+1}, s{sOUT+1}")
    e(f"    s_mov_b32 s{OS+2}, 0x400000")
    e(f"    s_mov_b32 s{OS+3}, 0x20000")
    e(f"    v_mov_b32 v{vMx}, 0")
    e(f"    v_mov_b32 v{vMx+1}, 0")
    e(f"    ds_write_b64 v{vMw}, v[{vMx}:{vMx+1}]")
    e(f"    s_waitcnt vmcnt(0)")
    ts(2)
    L.extend(sort_code())
    e(f"    v_readlane_b32 s{sTc}, v{vS}, s{sTa}")
    e(f"    v_readlane_b32 s{sTe}, v{vS}, s{sTb}")
    L.extend(q_offsets(sB1, sB2))
    e(f"    s_cmp_gt_i32 s{sTc}, 0")
    e(f"    s_cselect_b32 s{sC}, {CSC:#x}, 0")
    e(f"    s_cmp_gt_i32 s{sTe}, 0")
    e(f"    s_cselect_b32 s{sC2}, {CSC:#x}, 0")
    e(f"    s_mov_b32 s{sSlot}, 0")
    e(f"    s_mov_b32 s{sEp}, 0")
    e(f"    s_mov_b32 s{sItem}, 0")
    e(f"    s_mov_b32 s{sTe}, {QB}")
    if cpre:
        e(f"    s_getpc_b64 s[{sM0}:{sM0+1}]")
        e("L_pc:")
        e(f"    s_add_u32 s{sM0}, s{sM0}, L_ld_next-L_pc")
        e(f"    s_addc_u32 s{sM0+1}, s{sM0+1}, -1")
        e(f"    s_lshl_b32 s{sTa}, s{sW}, 13")
        e(f"    v_lshl_add_u32 v{vT1}, v{vL}, 7, s{sTa}")
        e(f"    v_min_u32 v{vT1}, L_done-L_ld_next, v{vT1}")
        e(f"    global_load_dword v25, v{vT1}, s[{sM0}:{sM0+1}]")
    ts(3)
    e("L_item:")
    L.extend(item_params(sKey1))
    e(f"    s_lshl_b32 s{sTb}, s{sT}, 5")
    e(f"    s_sub_u32 s{sNv}, s{sE}, s{sTb}")
    e(f"    s_add_u32 s{sNv}, s{sNv}, 32")
    for i in range(16):
        e(f"    v_mov_b32 v{vO+i}, 0")
    e(f"    v_mov_b32 v{vM}, {NEG:#x}")
    e(f"    v_mov_b32 v{vLs}, 0")
    e(f"    s_mov_b32 s{sGi}, 0")
    e(f"    s_sub_u32 s{sLast}, s{sG}, 1")
    e("    s_waitcnt lgkmcnt(0)")

    e("    .p2align 6")
    e("L_loop:")
    e(f"    s_cmp_lt_u32 s{sGi}, s{sRe}")
    e(f"    s_addc_u32 s{sNt}, s{sBa}, 0")
    e(f"    s_lshl_b32 s{sNu}, s{sNt}, 1")
    if skip:
        e(f"    s_cmp_eq_u32 s{sGi}, s{sLast}")
        e(f"    s_cselect_b32 s{sTa}, s{sNv}, 32")
        e(f"    s_cmp_le_u32 s{sTa}, 16")
        e(f"    s_subb_u32 s{sNu}, s{sNu}, 0")
    e(f"    s_add_u32 s{sEp}, s{sEp}, 1")
    e(f"    s_add_u32 s{sT0}, s{sSlot}, s{sRing}")
    e(f"    v_add_u32 v{vA[0]}, s{sT0}, v{vKrd}")
    for j in range(1, 8):
        e(f"    v_xor_b32 v{vA[j]}, {j<<5}, v{vA[0]}")
    e(f"    v_mov_b32 v{vMx+1}, s{sEp}")
    e(f"    v_mov_b32 v{vMx}, {NEG:#x}")
    e("    s_barrier")
    if diag:
        e(f"    s_cmp_lg_u32 s{sEp}, 1")
        e("    s_cbranch_scc1 L_nots5")
        ts(5)
        e("L_nots5:")
    e(f"    s_cmp_lg_u32 s{sTe}, 0")
    e("    s_cbranch_scc1 L_readq")
    e("L_noq:")
    e(f"    s_cmp_ge_u32 s{sW}, s{sNt}")
    e("    s_cbranch_scc1 L_pubmax")
    for j in range(8):
        e(f"    ds_read_b128 v[{vF+4*j}:{vF+4*j+3}], v{vA[j]}")
    for j in range(8):
        e(f"    s_waitcnt lgkmcnt({0 if diag else 7-j})")
        c = "0" if j == 0 else f"v[{vS}:{vS+15}]"
        e(f"    v_mfma_f32_32x32x16_bf16 v[{vS}:{vS+15}], v[{vF+4*j}:{vF+4*j+3}], v[{vQ+4*j}:{vQ+4*j+3}], {c}")
    e(f"    s_add_u32 s{sTa}, s{sW}, 1")
    e(f"    s_cmp_eq_u32 s{sTa}, s{sNt}")
    e(f"    s_cselect_b32 s{sTa}, s{sLast}, -1")
    e("    s_nop 6")
    e(f"    s_cmp_eq_u32 s{sGi}, s{sTa}")
    e("    s_cbranch_scc1 L_mask")
    e("L_nomask:")
    e(f"    v_max3_f32 v{vT0}, v{vS}, v{vS+1}, v{vS+2}")
    e(f"    v_max3_f32 v{vT1}, v{vS+3}, v{vS+4}, v{vS+5}")
    e(f"    v_max3_f32 v{vT2}, v{vS+6}, v{vS+7}, v{vS+8}")
    e(f"    v_max3_f32 v{vT3}, v{vS+9}, v{vS+10}, v{vS+11}")
    e(f"    v_max3_f32 v{vT0}, v{vT0}, v{vS+12}, v{vS+13}")
    e(f"    v_max3_f32 v{vT1}, v{vT1}, v{vS+14}, v{vS+15}")
    e(f"    v_max3_f32 v{vT0}, v{vT0}, v{vT2}, v{vT3}")
    e(f"    v_max_f32 v{vT0}, v{vT0}, v{vT1}")
    e(f"    v_mov_b32 v{vT1}, v{vT0}")
    e("    s_nop 1")
    e(f"    v_permlane32_swap_b32 v{vT0}, v{vT1}")
    e(f"    v_max_f32 v{vMx}, v{vT0}, v{vT1}")
    e("L_pubmax:")
    e(f"    ds_write_b64 v{vMw}, v[{vMx}:{vMx+1}]")
    e(f"    v_add_u32 v{vA[0]}, s{sSlot}, v{vVb}")
    e(f"    v_add_u32 v{vA[1]}, 0x10000, v{vA[0]}")
    e(f"    s_xor_b32 s{sSlot}, s{sSlot}, 16384")
    e("L_spin:")
    e(f"    ds_read_b128 v[{vX}:{vX+3}], v{vMr}")
    e(f"    ds_read_b128 v[{vX+4}:{vX+7}], v{vMr} offset:16")
    e("    s_waitcnt lgkmcnt(0)")
    e(f"    v_min3_u32 v{vT0}, v{vX+1}, v{vX+3}, v{vX+5}")
    e(f"    v_min_u32 v{vT0}, v{vT0}, v{vX+7}")
    e(f"    v_cmp_ne_u32 vcc, s{sEp}, v{vT0}")
    e(f"    v_max3_f32 v{vT0}, v{vX}, v{vX+2}, v{vM}")
    e("    s_and_b64 vcc, exec, vcc")
    e("    s_cbranch_vccnz L_spin")
    e(f"    v_max3_f32 v{vT0}, v{vT0}, v{vX+4}, v{vX+6}")
    e(f"    v_sub_f32 v{vT1}, v{vM}, v{vT0}")
    e(f"    v_mul_f32 v{vT2}, s{sC}, v{vT0}")
    e(f"    v_mul_f32 v{vT1}, s{sC}, v{vT1}")
    e(f"    v_mov_b32 v{vM}, v{vT0}")
    e(f"    v_exp_f32 v{vAl}, v{vT1}")
    e(f"    s_cmp_ge_u32 s{sW}, s{sNt}")
    e("    s_cbranch_scc1 L_notile")
    for i in range(16):
        e(f"    v_fma_f32 v{vS+i}, v{vS+i}, s{sC}, -v{vT2}")
    for i in range(8):
        e(f"    v_exp_f32 v{vS+i}, v{vS+i}")
    for i in range(8, 16):
        e(f"    v_exp_f32 v{vS+i}, v{vS+i}")
        if i % 2 == 1:
            k = i - 9
            e(f"    v_cvt_pk_bf16_f32 v{vP_+k//2}, v{vS+k}, v{vS+k+1}")
    e(f"    ds_write_b128 v{vPw}, v[{vP_}:{vP_+3}]")
    for i in range(4, 8):
        e(f"    v_cvt_pk_bf16_f32 v{vP_+i}, v{vS+2*i}, v{vS+2*i+1}")
    e(f"    ds_write_b128 v{vPw}, v[{vP_+4}:{vP_+7}] offset:1024")
    for i in range(4):
        e(f"    v_pk_add_f32 v[{vS+2*i}:{vS+2*i+1}], v[{vS+2*i}:{vS+2*i+1}], v[{vS+8+2*i}:{vS+8+2*i+1}]")
    for i in range(2):
        e(f"    v_pk_add_f32 v[{vS+2*i}:{vS+2*i+1}], v[{vS+2*i}:{vS+2*i+1}], v[{vS+4+2*i}:{vS+4+2*i+1}]")
    e(f"    v_pk_add_f32 v[{vS}:{vS+1}], v[{vS}:{vS+1}], v[{vS+2}:{vS+3}]")
    e(f"    v_fma_f32 v{vLs}, v{vLs}, v{vAl}, v{vS}")
    e(f"    v_add_f32 v{vLs}, v{vLs}, v{vS+1}")
    e("L_scale:")
    e(f"    v_mov_b32 v{vT0}, v{vLs}")
    e(f"    v_mov_b32 v{vT1}, v{vLs}")
    for i in range(8):
        e(f"    v_pk_mul_f32 v[{vO+2*i}:{vO+2*i+1}], v[{vO+2*i}:{vO+2*i+1}], v[{vAl}:{vAl+1}] op_sel_hi:[1,0]")
    e(f"    v_permlane32_swap_b32 v{vT0}, v{vT1}")
    e(f"    v_add_f32 v{vT0}, v{vT0}, v{vT1}")
    e(f"    ds_write_b32 v{vLw}, v{vT0}")
    e("    s_waitcnt lgkmcnt(0)")
    e("    s_barrier")
    units = [(t, m) for t in range(4) for m in range(2)]

    def p_read(u):
        t, m = units[u]
        p = vPa + 4 * u
        return f"    ds_read_b128 v[{p}:{p+3}], v{vPr} offset:{t*2048+m*1024}"

    def v_reads(u):
        t, m = units[u]
        a = vF + 4 * u
        off = (t & 1) * 32768 + m * 4096
        return [f"    ds_read_b64_tr_b16 v[{a}:{a+1}], v{vA[t>>1]} offset:{off}",
                f"    ds_read_b64_tr_b16 v[{a+2}:{a+3}], v{vA[t>>1]} offset:{off+2048}"]

    def pv_mfma(u):
        return f"    v_mfma_f32_32x32x16_bf16 v[{vO}:{vO+15}], v[{vF+4*u}:{vF+4*u+3}], v[{vPa+4*u}:{vPa+4*u+3}], v[{vO}:{vO+15}]"

    e(f"    ds_read_b128 v[{vX}:{vX+3}], v{vLr}")
    if vsplit:
        e(f"    s_cmp_eq_u32 s{sGi}, s{sLast}")
        e(f"    s_cselect_b32 s{sTa}, s{sItem}, 0")
        e(f"    s_cmp_lg_u32 s{sTa}, 0")
        e("    s_cbranch_scc1 L_pvlast")
    for u in range(4):
        e(p_read(u))
        L.extend(v_reads(u))
    for u in range(8):
        e(f"    s_waitcnt lgkmcnt({min(9, 3*(7-u))})")
        e(pv_mfma(u))
        if u + 4 < 8:
            e(p_read(u + 4))
            L.extend(v_reads(u + 4))
        if (skip or u % 2 == 1) and u < 7:
            e(f"    s_cmp_eq_u32 s{sNu}, {u+1}")
            e("    s_cbranch_scc1 L_pvdone")
    e("L_pvdone:")
    e(f"    s_cmp_eq_u32 s{sGi}, s{sLast}")
    e("    s_cbranch_scc1 L_final")
    e(f"    s_add_u32 s{sGi}, s{sGi}, 1")
    e("    s_waitcnt lgkmcnt(0)")
    e("    s_branch L_loop")

    if vsplit:
        e("L_pvlast:")
        L.extend(v_reads(0) + v_reads(1))
        for u in range(8):
            e(p_read(u))
        for t in range(4):
            if t:
                e("    s_barrier")
                L.extend(v_reads(2 * t) + v_reads(2 * t + 1))
                e("    s_waitcnt lgkmcnt(2)")
            else:
                e("    s_waitcnt lgkmcnt(7)")
            e(pv_mfma(2 * t))
            if skip:
                e(f"    s_cmp_eq_u32 s{sNu}, {2*t+1}")
                e("    s_cbranch_scc1 L_final")
            e(f"    s_waitcnt lgkmcnt({6 if t == 0 else 0})")
            e(pv_mfma(2 * t + 1))
            if t < 3:
                e(f"    s_cmp_eq_u32 s{sNt}, {t+1}")
                e("    s_cbranch_scc1 L_final")
        e("    s_nop 0")
        e("    s_branch L_final")

    e("L_notile:")
    e(f"    v_mul_f32 v{vLs}, v{vLs}, v{vAl}")
    e("    s_branch L_scale")

    e("L_readq:")
    e(f"    v_add_u32 v{vX}, s{sTe}, v{vKrd}")
    for j in range(1, 8):
        e(f"    v_xor_b32 v{vX+j}, {j<<5}, v{vX}")
    for j in range(8):
        e(f"    ds_read_b128 v[{vQ+4*j}:{vQ+4*j+3}], v{vX+j}")
    e(f"    s_mov_b32 s{sTe}, 0")
    e("    s_waitcnt lgkmcnt(0)")
    e("    s_branch L_noq")

    e("L_mask:")
    e(f"    v_sub_u32 v{vT0}, s{sNv}, v{vHH}")
    e(f"    v_mov_b32 v{vT1}, {NEG:#x}")
    for v in range(16):
        t = 16 * (v >> 3) + 2 * ((v >> 2) & 1) + 4 * (v & 3)
        e(f"    v_cmp_lt_i32 vcc, {t}, v{vT0}")
        e("    s_nop 1")
        e(f"    v_cndmask_b32 v{vS+v}, v{vT1}, v{vS+v}, vcc")
    e("    s_branch L_nomask")

    e("L_final:")
    if diag:
        e(f"    s_cmp_eq_u32 s{sItem}, 0")
        e("    s_cbranch_scc1 L_nots6")
        ts(6)
        e("L_nots6:")
    e(f"    v_add_f32 v{vT0}, v{vX}, v{vX+1}")
    e(f"    v_add_f32 v{vT1}, v{vX+2}, v{vX+3}")
    e(f"    v_add_f32 v{vT0}, v{vT0}, v{vT1}")
    e(f"    v_rcp_f32 v{vAl}, v{vT0}")
    e(f"    s_xor_b32 s{sTa}, s{sSlot}, 16384")
    e(f"    s_add_u32 s{sTa}, s{sTa}, s{sRing}")
    e(f"    v_add_u32 v{vA[2]}, s{sTa}, v{vTw}")
    e(f"    v_xor_b32 v{vA[3]}, 32, v{vA[2]}")
    e(f"    v_add_u32 v{vA[4]}, s{sTa}, v{vTr}")
    e(f"    s_add_u32 s{sTa}, s{sQo1}, 4096")
    for i in range(8):
        e(f"    v_pk_mul_f32 v[{vO+2*i}:{vO+2*i+1}], v[{vO+2*i}:{vO+2*i+1}], v[{vAl}:{vAl+1}] op_sel_hi:[1,0]")
    for i in range(8):
        e(f"    v_cvt_pk_bf16_f32 v{vP_+i}, v{vO+2*i}, v{vO+2*i+1}")
    e(f"    v_permlane32_swap_b32 v{vP_}, v{vP_+2}")
    e(f"    v_permlane32_swap_b32 v{vP_+1}, v{vP_+3}")
    e(f"    v_permlane32_swap_b32 v{vP_+4}, v{vP_+6}")
    e(f"    v_permlane32_swap_b32 v{vP_+5}, v{vP_+7}")
    e(f"    ds_write_b128 v{vA[2]}, v[{vP_}:{vP_+3}]")
    e(f"    ds_write_b128 v{vA[3]}, v[{vP_+4}:{vP_+7}]")
    e(f"    ds_read_b128 v[{vS}:{vS+3}], v{vA[4]}")
    e(f"    ds_read_b128 v[{vS+4}:{vS+7}], v{vA[4]} offset:1024")
    e(f"    s_waitcnt lgkmcnt({0 if diag else 1})")
    e(f"    buffer_store_dwordx4 v[{vS}:{vS+3}], v{vOo}, s[{OS}:{OS+3}], s{sQo1} offen {opol}")
    e(f"    s_waitcnt lgkmcnt(0)")
    e(f"    buffer_store_dwordx4 v[{vS+4}:{vS+7}], v{vOo}, s[{OS}:{OS+3}], s{sTa} offen {opol}")
    e(f"    s_cmp_lg_u32 s{sItem}, 0")
    e("    s_cbranch_scc1 L_end")
    e(f"    s_mov_b32 s{sItem}, 1")
    e(f"    s_mov_b32 s{sC}, s{sC2}")
    e(f"    s_mov_b32 s{sQo1}, s{sQo2}")
    e(f"    s_mov_b32 s{sKey1}, s{sKey2}")
    e(f"    s_mov_b32 s{sTe}, {QB+8192}")
    e("    s_branch L_item")
    e("L_end:")
    if diag:
        ts(4)
        e("    s_waitcnt vmcnt(0)")
        ts(7)
        diag_store("c")
    e("L_done:")
    e("    s_endpgm")
    e('.section .rodata,"a"')
    e(".p2align 6")
    e(f".amdhsa_kernel {NAME}_kernel")
    e(f"  .amdhsa_next_free_vgpr {NV}")
    e("  .amdhsa_next_free_sgpr 102")
    e(f"  .amdhsa_accum_offset {NV}")
    e("  .amdhsa_group_segment_fixed_size 0")
    e("  .amdhsa_kernarg_size 64")
    e("  .amdhsa_user_sgpr_count 2")
    e("  .amdhsa_user_sgpr_kernarg_segment_ptr 1")
    e("  .amdhsa_system_sgpr_workgroup_id_x 1")
    e("  .amdhsa_float_denorm_mode_32 3")
    e(".end_amdhsa_kernel")
    return "\n".join(L) + "\n"


if __name__ == "__main__":
    ap = argparse.ArgumentParser()
    ap.add_argument("-o", default="/dev/stdout")
    ap.add_argument("--W", type=float, default=21)
    ap.add_argument("--Wtail", type=int, default=32)
    ap.add_argument("--tailg", type=int, default=0)
    ap.add_argument("--pol", default="nt")
    ap.add_argument("--opol", default="")
    ap.add_argument("--prio", type=int, default=3)
    ap.add_argument("--cpre", type=int, default=0)
    ap.add_argument("--enc", default=None)
    ap.add_argument("--nospec", action="store_true")
    ap.add_argument("--vsplit", action="store_true")
    ap.add_argument("--noskip", action="store_true")
    ap.add_argument("--perm", default=None)
    ap.add_argument("--diag", action="store_true")
    a = ap.parse_args()
    open(a.o, "w").write(gen(W=a.W, pol=a.pol, diag=a.diag, opol=a.opol, Wtail=a.Wtail, tailg=a.tailg,
                             prio=a.prio, cpre=a.cpre, enc=None if a.enc is None else a.enc.split(","),
                             spec=not a.nospec, vsplit=a.vsplit, skip=not a.noskip,
                             perm=None if a.perm is None else [int(x) for x in a.perm.split(',')]))
```

```python
import argparse
from gen import HEADER, NAME, f2u


def gen(W=21, pol="nt", diag=False, opol="", Wtail=32, tailg=0, prio=3, cpre=0, enc=None, spec=True,
        vsplit=False, skip=True, perm=None):
    L = []
    e = L.append
    QB = 131072
    PB = QB + 16384
    MX = PB + 8192
    LB = MX + 1024
    LDS = LB + 512
    assert 2 <= W <= 25
    CSC = f2u((128 ** -0.5) * 1.4426950408889634)
    NEG = f2u(-1e30)

    sQ, sK, sV, sBT = 4, 6, 8, 10
    sCL, sOUT = 12, 14
    sDBG, sWS = 16, 18
    KS, OS = 20, 32
    sKh, sVh = 36, 38
    sWv, sP, sH = 40, 41, 42
    sB1, sB2, sKey1, sKey2 = 43, 44, 45, 46
    sT, sG, sBa, sRe, sE = 47, 48, 49, 50, 51
    sBo, sRem, sGl = 52, 53, 54
    sSlot, sGi, sNt = 55, 56, 57
    sT0, sTa, sTb, sTc, sTd, sTe = 58, 59, 60, 61, 62, 63
    sM0, sM1 = 64, 66
    sW, sKc = 68, 69
    sTS = 70
    sQo1, sQo2 = 86, 87
    sItem = 100
    sC, sC2, sNv, sEp, sRing, sLast, sNu = 20, 21, 22, 24, 26, 27, 23
    sNx = list(range(24, 32))
    sPg = list(range(88, 96))
    sNr = [64, 65, 66, 67, 96, 97, 98, 99]
    sG1g, sG2g = 32, 33
    LENS = [2048 - ((i * 2654435761) % 1024) for i in range(1, 17)]
    ORDER = sorted(range(16), key=lambda b: (-LENS[b], -b))
    GU1 = sum(ORDER[p] << (4 * p) for p in range(8))
    GU2 = sum(ORDER[15 - p] << (4 * p) for p in range(8))

    vL = 1
    vKo = [2, 3, 4, 5]
    vVo = [6, 7, 8, 9]
    vQo = [12, 13, 14, 15]
    vKrd, vVb, vPr, vPw, vMw, vMr, vLw, vLr, vOo = 2, 3, 4, 5, 6, 7, 8, 9, 10
    vHH = 11
    vA = list(range(12, 20))
    vM, vLs = 20, 21
    vMx = 22
    vAl = 24
    vTw, vTr = 26, 27
    vT0, vT1, vT2, vT3 = 28, 29, 30, 31
    vS = 32
    vP_ = 48
    vX = 56
    vQ = 64
    vF = 96
    vPa = 128
    vO = 160
    NV = 176

    def ts(i):
        if diag:
            e(f"    s_memrealtime s[{sTS+2*i}:{sTS+2*i+1}]")

    def hold(role):
        if enc[0] != role:
            return
        idx, mult = int(enc[1]), int(enc[2])
        if len(enc) > 3:
            e(f"    s_and_b32 s{sT0}, s2, {int(enc[3])}")
            e(f"    s_cmp_lg_u32 s{sT0}, {int(enc[4])}")
            e("    s_cbranch_scc1 L_done")
        e("    s_waitcnt vmcnt(0) lgkmcnt(0)")
        e(f"    s_sub_u32 s{sT0}, s{sTS+2*idx}, s{sTS}")
        if mult < 0:
            e(f"    s_sub_u32 s{sT0}, 8000, s{sT0}")
        e(f"    s_min_u32 s{sT0}, s{sT0}, 10000")
        e(f"    s_mul_i32 s{sT0}, s{sT0}, {abs(mult)}")
        e(f"    s_add_u32 s{sT0}, s{sT0}, 10000")
        e(f"L_hold{role}:")
        e("    s_sleep 8")
        e("    s_memrealtime s[88:89]")
        e("    s_waitcnt lgkmcnt(0)")
        e(f"    s_sub_u32 s88, s88, s{sTS}")
        e(f"    s_cmp_lt_u32 s88, s{sT0}")
        e(f"    s_cbranch_scc1 L_hold{role}")

    def diag_store(role):
        if enc:
            hold(role)
            return
        e("    s_getreg_b32 s88, hwreg(HW_REG_XCC_ID)")
        e("    s_getreg_b32 s89, hwreg(HW_REG_HW_ID)")
        e("    s_waitcnt lgkmcnt(0)")
        e(f"    s_mul_i32 s{sT0}, s2, 5")
        e(f"    s_add_u32 s{sT0}, s{sT0}, s{sWv}")
        e(f"    s_lshl_b32 s{sT0}, s{sT0}, 7")
        e(f"    v_mov_b32 v{vT0}, s{sT0}")
        for i in range(4):
            for j in range(4):
                e(f"    v_mov_b32 v{vS+j}, s{sTS+4*i+j}")
            e(f"    global_store_dwordx4 v{vT0}, v[{vS}:{vS+3}], s[{sWS}:{sWS+1}] offset:{16*i}")
            e("    s_nop 1")
        e(f"    v_mov_b32 v{vS}, s88")
        e(f"    v_mov_b32 v{vS+1}, s89")
        e(f"    v_mov_b32 v{vS+2}, s{sG}")
        e(f"    v_mov_b32 v{vS+3}, s{sB1}")
        e(f"    global_store_dwordx4 v{vT0}, v[{vS}:{vS+3}], s[{sWS}:{sWS+1}] offset:64")

    def q_dma():
        out = []
        for item in range(2):
            so = sQo1 if item == 0 else sQo2
            for half in range(2):
                out.append(f"    s_mov_b32 m0, {QB + item*8192 + half*4096}")
                out.append(f"    s_add_u32 s{sTd}, s{so}, {half*4096}")
                for i in range(4):
                    off = f" offset:{i*1024}" if i else ""
                    out.append(f"    buffer_load_dwordx4 v{vQo[i]}, s[{KS}:{KS+3}], s{sTd} offen{off} {pol} lds")
        return out

    def q_offsets(b1, b2):
        return [f"    s_lshl_b32 s{sTd}, s{sH}, 13",
                f"    s_lshl_b32 s{sQo1}, s{b1}, 18",
                f"    s_lshl_b32 s{sQo2}, s{b2}, 18",
                f"    s_add_u32 s{sQo1}, s{sQo1}, s{sTd}",
                f"    s_add_u32 s{sQo2}, s{sQo2}, s{sTd}"]

    def item_params(key):
        return [f"    s_lshr_b32 s{sG}, s{key}, 11",
                f"    s_lshr_b32 s{sT}, s{key}, 9",
                f"    s_lshr_b32 s{sE}, s{key}, 4",
                f"    s_add_u32 s{sG}, s{sG}, 1",
                f"    s_add_u32 s{sT}, s{sT}, 1",
                f"    s_add_u32 s{sE}, s{sE}, 1",
                f"    s_lshl_b32 s{sRe}, s{sG}, 1",
                f"    s_cmp_ge_u32 s{sT}, s{sRe}",
                f"    s_addc_u32 s{sBa}, 1, 0",
                f"    s_add_u32 s{sRe}, s{sRe}, s{sG}",
                f"    s_cmp_ge_u32 s{sT}, s{sRe}",
                f"    s_addc_u32 s{sBa}, s{sBa}, 0",
                f"    s_add_u32 s{sRe}, s{sRe}, s{sG}",
                f"    s_cmp_ge_u32 s{sT}, s{sRe}",
                f"    s_addc_u32 s{sBa}, s{sBa}, 0",
                f"    s_mul_i32 s{sRe}, s{sBa}, s{sG}",
                f"    s_sub_u32 s{sRe}, s{sT}, s{sRe}"]

    def cl_loads():
        return [f"    global_load_dword v{vS}, v{vX+0}, s[{sCL}:{sCL+1}]",
                f"    global_load_dwordx4 v[{vS+4}:{vS+7}], v{vX+2}, s[{sCL}:{sCL+1}]"]

    def sort_consts():
        return [f"    v_lshrrev_b32 v{vX+6}, 2, v{vL}",
                f"    v_lshlrev_b32 v{vX+7}, 2, v{vX+1}",
                f"    s_sub_u32 s{sTe}, 15, s{sP}",
                f"    s_movk_i32 s{sT0}, 2047"]

    def sort_code():
        out = [f"    v_add_u32 v{vS+1}, -1, v{vS}"]
        for j in range(4):
            out.append(f"    v_add_u32 v{vS+4+j}, -1, v{vS+4+j}")
        out.append(f"    v_min_u32 v{vS+1}, s{sT0}, v{vS+1}")
        for j in range(4):
            out.append(f"    v_min_u32 v{vS+4+j}, s{sT0}, v{vS+4+j}")
        out.append(f"    v_lshl_or_b32 v{vS+1}, v{vS+1}, 4, v{vX+6}")
        out.append(f"    v_sub_u32 v{vS+2}, v{vS+1}, v{vX+7}")
        for j in range(4):
            out.append(f"    v_lshl_or_b32 v{vS+4+j}, v{vS+4+j}, 4, {j}")
        for j in range(4):
            out.append(f"    v_sub_u32 v{vS+4+j}, v{vS+2}, v{vS+4+j}")
        for j in range(4):
            out.append(f"    v_lshrrev_b32 v{vS+4+j}, 31, v{vS+4+j}")
        out += [f"    v_add_u32 v{vS+4}, v{vS+4}, v{vS+5}",
                f"    v_add3_u32 v{vS+4}, v{vS+4}, v{vS+6}, v{vS+7}",
                "    s_nop 1",
                f"    v_add_u32_dpp v{vS+5}, v{vS+4}, v{vS+4} quad_perm:[1,0,3,2] row_mask:0xf bank_mask:0xf",
                "    s_nop 1",
                f"    v_add_u32_dpp v{vS+4}, v{vS+5}, v{vS+5} quad_perm:[2,3,0,1] row_mask:0xf bank_mask:0xf",
                f"    v_cmp_eq_u32 s[{sM0}:{sM0+1}], s{sP}, v{vS+4}",
                f"    v_cmp_eq_u32 s[{sM1}:{sM1+1}], s{sTe}, v{vS+4}",
                f"    s_ff1_i32_b64 s{sTa}, s[{sM0}:{sM0+1}]",
                f"    s_ff1_i32_b64 s{sTb}, s[{sM1}:{sM1+1}]",
                f"    v_readlane_b32 s{sKey1}, v{vS+1}, s{sTa}",
                f"    v_readlane_b32 s{sKey2}, v{vS+1}, s{sTb}",
                f"    s_lshr_b32 s{sB1}, s{sTa}, 2",
                f"    s_lshr_b32 s{sB2}, s{sTb}, 2"]
        return out

    e(HEADER.rstrip())
    e(f"; @launch grid=(256,1,1) block=(320,1,1) lds={LDS}")
    e('.amdgcn_target "amdgcn-amd-amdhsa--gfx950"')
    e(".text")
    e(f".globl {NAME}_kernel")
    e(".p2align 8")
    e(f".type {NAME}_kernel,@function")
    e(f"{NAME}_kernel:")
    e("    s_cmp_ge_u32 s2, 256")
    e("    s_cbranch_scc1 L_done")
    if diag:
        for i in range(16):
            e(f"    s_mov_b32 s{sTS+i}, 0")
    ts(0)
    e(f"    s_load_dwordx4 s[12:15], s[0:1], 32")
    e(f"    s_load_dwordx8 s[4:11], s[0:1], 0")
    if diag:
        e(f"    s_load_dwordx4 s[16:19], s[0:1], 48")
    e(f"    v_lshrrev_b32 v{vT0}, 6, v0")
    e(f"    v_and_b32 v{vL}, 63, v0")
    e(f"    v_readfirstlane_b32 s{sWv}, v{vT0}")
    e(f"    s_and_b32 s{sP}, s2, 7")
    if perm:
        assert sorted(perm) == list(range(8))
        PK = sum(perm[x] << (4 * x) for x in range(8))
        e(f"    s_lshl_b32 s{sP}, s{sP}, 2")
        e(f"    s_lshr_b32 s{sP}, {PK:#x}, s{sP}")
        e(f"    s_and_b32 s{sP}, s{sP}, 7")
    e(f"    s_lshr_b32 s{sH}, s2, 3")
    e(f"    v_and_b32 v{vX+0}, 60, v{vL}")
    e(f"    v_and_b32 v{vX+1}, 3, v{vL}")
    e(f"    v_lshlrev_b32 v{vX+2}, 4, v{vX+1}")
    e(f"    s_cmp_lg_u32 s{sWv}, 0")
    e("    s_cbranch_scc1 L_consumer")

    e(f"    v_lshrrev_b32 v{vT0}, 4, v{vL}")
    e(f"    v_and_b32 v{vT1}, 15, v{vL}")
    e(f"    v_lshlrev_b32 v{vT2}, 2, v{vT0}")
    e(f"    v_xor_b32 v{vT1}, v{vT1}, v{vT2}")
    e(f"    v_lshlrev_b32 v{vT1}, 4, v{vT1}")
    e(f"    v_lshl_add_u32 v{vQo[0]}, v{vT0}, 8, v{vT1}")
    for i in range(1, 4):
        e(f"    v_xor_b32 v{vQo[i]}, {i*16}, v{vQo[0]}")
    e(f"    s_mov_b32 s{KS+2}, 0x400000")
    e(f"    s_mov_b32 s{KS+3}, 0x20000")
    if spec:
        e(f"    s_lshl_b32 s{sT0}, s{sP}, 2")
        e(f"    s_lshr_b32 s{sG1g}, {GU1:#x}, s{sT0}")
        e(f"    s_lshr_b32 s{sG2g}, {GU2:#x}, s{sT0}")
        e(f"    s_and_b32 s{sG1g}, s{sG1g}, 15")
        e(f"    s_and_b32 s{sG2g}, s{sG2g}, 15")
        L.extend(q_offsets(sG1g, sG2g))
        e(f"    s_lshl_b32 s{sBo}, s{sG1g}, 9")
    else:
        e(f"    v_lshlrev_b32 v{vX+3}, 7, v{vL}")
    e("    s_waitcnt lgkmcnt(0)")
    ts(1)
    L.extend(cl_loads())
    e(f"    s_mov_b32 s{KS}, s{sQ}")
    e(f"    s_mov_b32 s{KS+1}, s{sQ+1}")
    if spec:
        e(f"    s_load_dwordx8 s[{sNx[0]}:{sNx[7]}], s[{sBT}:{sBT+1}], s{sBo}")
        L.extend(q_dma())
    else:
        e(f"    global_load_dword v{vS+8}, v{vX+3}, s[{sBT}:{sBT+1}]")
    if prio:
        e(f"    s_setprio {prio}")
    e(f"    v_lshl_add_u32 v{vVo[0]}, v{vT0}, 15, v{vT1}")
    for i in range(1, 4):
        e(f"    v_add_u32 v{vVo[i]}, {i*(8192-1024)}, v{vVo[0]}")
    e(f"    v_mov_b32 v{vKo[0]}, v{vVo[0]}")
    for i in range(1, 4):
        e(f"    v_xor_b32 v{vKo[i]}, {i*16}, v{vVo[i]}")
    e(f"    s_lshl_b32 s{sT0}, s{sH}, 8")
    e(f"    s_add_u32 s{sKh}, s{sK}, s{sT0}")
    e(f"    s_addc_u32 s{sKh+1}, s{sK+1}, 0")
    e(f"    s_add_u32 s{sVh}, s{sV}, s{sT0}")
    e(f"    s_addc_u32 s{sVh+1}, s{sV+1}, 0")
    e(f"    s_mov_b32 s{sKc}, 0")
    e(f"    s_mov_b32 s{sGi}, 0")
    e(f"    s_mov_b32 s{sSlot}, 0")
    e(f"    s_mov_b32 s{sItem}, 0")
    L.extend(sort_consts())
    e(f"    s_waitcnt vmcnt({16 if spec else 1})")
    ts(2)
    L.extend(sort_code())
    if spec:
        e(f"    s_cmp_lg_u32 s{sB1}, s{sG1g}")
        e("    s_cbranch_scc1 L_ld_redo")
        e(f"    s_cmp_lg_u32 s{sB2}, s{sG2g}")
        e("    s_cbranch_scc1 L_ld_redo")
    else:
        e(f"    s_lshl_b32 s{sBo}, s{sB1}, 9")
        e(f"    s_load_dwordx8 s[{sNx[0]}:{sNx[7]}], s[{sBT}:{sBT+1}], s{sBo}")
        L.extend(q_offsets(sB1, sB2))
        L.extend(q_dma())
    e("L_ld_item:")
    L.extend(item_params(sKey1))
    e(f"    s_mov_b32 s{sRem}, s{sE}")
    e(f"    s_mov_b32 s{sGl}, s{sG}")
    if diag:
        e(f"    s_cmp_lg_u32 s{sItem}, 0")
        e("    s_cbranch_scc1 L_ld_go")
        ts(3)
    e("    s_branch L_ld_go")
    if spec:
        e("L_ld_redo:")
        e("    s_waitcnt vmcnt(0) lgkmcnt(0)")
        e(f"    s_lshl_b32 s{sBo}, s{sB1}, 9")
        e(f"    s_load_dwordx8 s[{sNx[0]}:{sNx[7]}], s[{sBT}:{sBT+1}], s{sBo}")
        L.extend(q_offsets(sB1, sB2))
        L.extend(q_dma())
        e("    s_branch L_ld_item")

    def page_setup(isK, j):
        out = []
        if isK:
            out.append(f"    s_min_u32 s{sTa}, s{sNx[j]}, 0x803")
            out.append(f"    s_min_i32 s{sTb}, s{sRem}, 16")
            out.append(f"    s_lshl_b32 s{sPg[j]}, s{sTa}, 17")
            out.append(f"    s_max_i32 s{sTb}, s{sTb}, 0")
            out.append(f"    s_sub_i32 s{sRem}, s{sRem}, 16")
            out.append(f"    s_lshl_b32 s{sNr[j]}, s{sTb}, 13")
        elif j < 4:
            out.append(f"    s_add_u32 s{sTa}, s{sBo}, {8*j}")
            out.append(f"    s_min_u32 s{sTa}, s{sTa}, 8184")
            out.append(f"    s_load_dwordx2 s[{sNx[2*j]}:{sNx[2*j+1]}], s[{sBT}:{sBT+1}], s{sTa}")
        base = sKh if isK else sVh
        c = (j >> 1) * 32768 + (j & 1) * 4096 + (0 if isK else 8192)
        out.append(f"    s_add_u32 m0, s{sSlot}, {c}")
        out.append(f"    s_add_u32 s{KS}, s{base}, s{sPg[j]}")
        out.append(f"    s_addc_u32 s{KS+1}, s{base+1}, 0")
        out.append(f"    s_mov_b32 s{KS+2}, s{sNr[j]}")
        return out

    uid = [0]

    def prev_barrier():
        uid[0] += 1
        return [f"    s_cmp_eq_u32 s{sKc}, 0",
                f"    s_cbranch_scc1 L_nb{uid[0]}",
                "    s_barrier",
                f"L_nb{uid[0]}:"]

    def group_code(npg, Wn, last):
        out = []
        seq = [(True, j, i) for j in range(npg) for i in range(4)] + \
              [(False, j, i) for j in range(npg) for i in range(4)]
        pend = [(0, "prev"), (4 * npg, "K")]
        if last:
            if vsplit:
                pend += [(4 * npg + min(8 * (t + 1), 4 * npg), "V") for t in range((npg + 1) // 2)]
            else:
                pend.append((8 * npg, "V"))
        for n, (isK, j, i) in enumerate(seq):
            if i == 0:
                ps = page_setup(isK, j)
                if last and not isK and j < 4:
                    ps = ps[3:]
                out += ps
            fr = Wn - int(Wn)
            wv = int(Wn) - 1 + (int((n + 1) * fr + 1e-9) - int(n * fr + 1e-9))
            out.append(f"    s_waitcnt vmcnt({wv})")
            while pend and n - pend[0][0] >= wv:
                out += prev_barrier() if pend[0][1] == "prev" else ["    s_barrier"]
                pend.pop(0)
            vo = vKo if isK else vVo
            off = f" offset:{i*1024}" if i else ""
            out.append(f"    buffer_load_dwordx4 v{vo[i]}, s[{KS}:{KS+3}], 0 offen{off} {pol} lds")
        if not last:
            for j in range(npg, 4):
                out += page_setup(False, j)[:3]
        for (pos, name) in pend:
            out.append(f"    s_waitcnt vmcnt({len(seq)-pos})")
            out += prev_barrier() if name == "prev" else ["    s_barrier"]
        if last:
            out.append("    s_branch L_ld_end" if diag else "    s_endpgm")
        else:
            out.append("    s_branch L_ld_next")
        return out

    e("L_ld_switch:")
    e(f"    s_mov_b32 s{sItem}, 1")
    e(f"    s_mov_b32 s{sGi}, 0")
    e(f"    s_mov_b32 s{sKey1}, s{sKey2}")
    e("    s_branch L_ld_item")
    e("    .p2align 6")
    e("L_ld_next:")
    e(f"    s_xor_b32 s{sSlot}, s{sSlot}, 16384")
    e(f"    s_add_u32 s{sKc}, s{sKc}, 1")
    e(f"    s_add_u32 s{sGi}, s{sGi}, 1")
    e(f"    s_sub_u32 s{sGl}, s{sGl}, 1")
    e(f"    s_cmp_eq_u32 s{sGl}, 0")
    e("    s_cbranch_scc1 L_ld_switch")
    e("L_ld_go:")
    e(f"    s_cmp_lt_u32 s{sGi}, s{sRe}")
    e(f"    s_addc_u32 s{sNt}, s{sBa}, 0")
    e(f"    s_lshl3_add_u32 s{sBo}, s{sNt}, s{sBo}")
    e(f"    s_lshl_b32 s{sTa}, s{sB2}, 9")
    e(f"    s_cmp_eq_u32 s{sGl}, 1")
    e(f"    s_cselect_b32 s{sBo}, s{sTa}, s{sBo}")
    e(f"    s_cmp_eq_u32 s{sItem}, 0")
    e(f"    s_cselect_b32 s{sTa}, 64, s{sGl}")
    e(f"    s_lshl_b32 s{sNt}, s{sNt}, 1")
    if skip:
        e(f"    s_add_u32 s{sTb}, s{sRem}, 15")
        e(f"    s_lshr_b32 s{sTb}, s{sTb}, 4")
        e(f"    s_min_u32 s{sNt}, s{sNt}, s{sTb}")
    e("    s_waitcnt lgkmcnt(0)")
    e(f"    s_cmp_eq_u32 s{sTa}, 1")
    e("    s_cbranch_scc1 L_ld_last")
    NPS = (7, 6, 5, 4, 3, 2, 1) if skip else (6, 4, 2)
    if tailg:
        e(f"    s_cmp_le_u32 s{sTa}, {tailg+1}")
        e("    s_cbranch_scc1 L_ld_tail")
    e(f"    s_cmp_lg_u32 s{sNt}, 8")
    e("    s_cbranch_scc1 L_ld_small")
    L.extend(group_code(8, W, False))
    e("L_ld_small:")
    for npg in NPS:
        if npg != 6:
            e(f"    s_cmp_eq_u32 s{sNt}, {npg}")
            e(f"    s_cbranch_scc1 L_ld_mid{npg}")
    for npg in sorted(NPS, key=lambda x: (x != 6, -x)):
        e(f"L_ld_mid{npg}:")
        L.extend(group_code(npg, W, False))
    if tailg:
        e("L_ld_tail:")
        e(f"    s_cmp_eq_u32 s{sNt}, 6")
        e("    s_cbranch_scc1 L_ld_tail6")
        e(f"    s_cmp_lg_u32 s{sNt}, 8")
        e("    s_cbranch_scc1 L_ld_small")
        L.extend(group_code(8, min(Wtail, 32), False))
        e("L_ld_tail6:")
        L.extend(group_code(6, min(Wtail, 25), False))
    e("L_ld_last:")
    for npg in NPS:
        e(f"    s_cmp_eq_u32 s{sNt}, {npg}")
        e(f"    s_cbranch_scc1 L_ld_last{npg}")
    for npg in (8,) + NPS:
        e(f"L_ld_last{npg}:")
        L.extend(group_code(npg, min(Wtail, 63), True))
    if diag:
        e("L_ld_end:")
        ts(6)
        ts(7)
        diag_store("l")
        e("    s_endpgm")

    e("L_consumer:")
    e(f"    s_sub_u32 s{sW}, s{sWv}, 1")
    e(f"    v_and_b32 v{vT0}, 31, v{vL}")
    e(f"    v_lshrrev_b32 v{vHH}, 5, v{vL}")
    e(f"    v_bfe_u32 v{vT2}, v{vL}, 2, 2")
    L.extend(sort_consts())
    e("    s_waitcnt lgkmcnt(0)")
    ts(1)
    L.extend(cl_loads())
    e(f"    v_lshl_or_b32 v{vT1}, v{vX+1}, 2, v{vT2}")
    e(f"    v_xor_b32 v{vT1}, v{vT1}, v{vHH}")
    e(f"    v_lshlrev_b32 v{vT1}, 4, v{vT1}")
    e(f"    v_lshl_add_u32 v{vKrd}, v{vT0}, 8, v{vT1}")
    e(f"    s_lshl_b32 s{sRing}, s{sW}, 15")
    e(f"    v_lshlrev_b32 v{vT1}, 5, v{vT0}")
    e(f"    v_add_u32 v{vMr}, {MX}, v{vT1}")
    e(f"    s_lshl_b32 s{sTa}, s{sW}, 3")
    e(f"    v_add_u32 v{vMw}, s{sTa}, v{vMr}")
    e(f"    v_lshlrev_b32 v{vT1}, 4, v{vT0}")
    e(f"    v_add_u32 v{vLr}, {LB}, v{vT1}")
    e(f"    s_lshl_b32 s{sTa}, s{sW}, 2")
    e(f"    v_add_u32 v{vLw}, s{sTa}, v{vLr}")
    e(f"    v_bfe_u32 v{vT1}, v{vL}, 1, 2")
    e(f"    v_xor_b32 v{vT1}, v{vT1}, v{vHH}")
    e(f"    v_lshlrev_b32 v{vT1}, 4, v{vT1}")
    e(f"    v_lshl_add_u32 v{vTw}, v{vT0}, 6, v{vT1}")
    e(f"    v_bfe_u32 v{vT1}, v{vL}, 3, 2")
    e(f"    v_xor_b32 v{vT1}, v{vT1}, v{vL}")
    e(f"    v_lshlrev_b32 v{vTr}, 4, v{vT1}")
    e(f"    s_lshl_b32 s{sTa}, s{sW}, 6")
    e(f"    v_lshl_add_u32 v{vT1}, v{vX+6}, 8, v{vX+2}")
    e(f"    v_add_u32 v{vOo}, s{sTa}, v{vT1}")
    e(f"    v_lshl_add_u32 v{vT0}, v{vHH}, 2, v{vT2}")
    e(f"    v_lshlrev_b32 v{vT0}, 8, v{vT0}")
    e(f"    v_lshl_or_b32 v{vT0}, v{vT2}, 6, v{vT0}")
    e(f"    v_bfe_u32 v{vT1}, v{vL}, 4, 1")
    e(f"    v_lshl_or_b32 v{vT0}, v{vT1}, 5, v{vT0}")
    e(f"    v_lshl_or_b32 v{vT0}, v{vX+1}, 3, v{vT0}")
    e(f"    v_xor_b32 v{vT0}, s{sTa}, v{vT0}")
    e(f"    v_add_u32 v{vVb}, 8192, v{vT0}")
    e(f"    v_lshlrev_b32 v{vT1}, 4, v{vL}")
    e(f"    v_add_u32 v{vPr}, {PB}, v{vT1}")
    e(f"    s_lshl_b32 s{sTa}, s{sW}, 11")
    e(f"    v_add_u32 v{vPw}, s{sTa}, v{vPr}")
    e(f"    s_mov_b32 s{OS}, s{sOUT}")
    e(f"    s_mov_b32 s{OS+1}, s{sOUT+1}")
    e(f"    s_mov_b32 s{OS+2}, 0x400000")
    e(f"    s_mov_b32 s{OS+3}, 0x20000")
    e(f"    v_mov_b32 v{vMx}, 0")
    e(f"    v_mov_b32 v{vMx+1}, 0")
    e(f"    ds_write_b64 v{vMw}, v[{vMx}:{vMx+1}]")
    e(f"    s_waitcnt vmcnt(0)")
    ts(2)
    L.extend(sort_code())
    e(f"    v_readlane_b32 s{sTc}, v{vS}, s{sTa}")
    e(f"    v_readlane_b32 s{sTe}, v{vS}, s{sTb}")
    L.extend(q_offsets(sB1, sB2))
    e(f"    s_cmp_gt_i32 s{sTc}, 0")
    e(f"    s_cselect_b32 s{sC}, {CSC:#x}, 0")
    e(f"    s_cmp_gt_i32 s{sTe}, 0")
    e(f"    s_cselect_b32 s{sC2}, {CSC:#x}, 0")
    e(f"    s_mov_b32 s{sSlot}, 0")
    e(f"    s_mov_b32 s{sEp}, 0")
    e(f"    s_mov_b32 s{sItem}, 0")
    e(f"    s_mov_b32 s{sTe}, {QB}")
    if cpre:
        e(f"    s_getpc_b64 s[{sM0}:{sM0+1}]")
        e("L_pc:")
        e(f"    s_add_u32 s{sM0}, s{sM0}, L_ld_next-L_pc")
        e(f"    s_addc_u32 s{sM0+1}, s{sM0+1}, -1")
        e(f"    s_lshl_b32 s{sTa}, s{sW}, 13")
        e(f"    v_lshl_add_u32 v{vT1}, v{vL}, 7, s{sTa}")
        e(f"    v_min_u32 v{vT1}, L_done-L_ld_next, v{vT1}")
        e(f"    global_load_dword v25, v{vT1}, s[{sM0}:{sM0+1}]")
    ts(3)
    e("L_item:")
    L.extend(item_params(sKey1))
    e(f"    s_lshl_b32 s{sTb}, s{sT}, 5")
    e(f"    s_sub_u32 s{sNv}, s{sE}, s{sTb}")
    e(f"    s_add_u32 s{sNv}, s{sNv}, 32")
    for i in range(16):
        e(f"    v_mov_b32 v{vO+i}, 0")
    e(f"    v_mov_b32 v{vM}, {NEG:#x}")
    e(f"    v_mov_b32 v{vLs}, 0")
    e(f"    s_mov_b32 s{sGi}, 0")
    e(f"    s_sub_u32 s{sLast}, s{sG}, 1")
    e("    s_waitcnt lgkmcnt(0)")

    e("    .p2align 6")
    e("L_loop:")
    e(f"    s_cmp_lt_u32 s{sGi}, s{sRe}")
    e(f"    s_addc_u32 s{sNt}, s{sBa}, 0")
    e(f"    s_lshl_b32 s{sNu}, s{sNt}, 1")
    if skip:
        e(f"    s_cmp_eq_u32 s{sGi}, s{sLast}")
        e(f"    s_cselect_b32 s{sTa}, s{sNv}, 32")
        e(f"    s_cmp_le_u32 s{sTa}, 16")
        e(f"    s_subb_u32 s{sNu}, s{sNu}, 0")
    e(f"    s_add_u32 s{sEp}, s{sEp}, 1")
    e(f"    s_add_u32 s{sT0}, s{sSlot}, s{sRing}")
    e(f"    v_add_u32 v{vA[0]}, s{sT0}, v{vKrd}")
    for j in range(1, 8):
        e(f"    v_xor_b32 v{vA[j]}, {j<<5}, v{vA[0]}")
    e(f"    v_mov_b32 v{vMx+1}, s{sEp}")
    e(f"    v_mov_b32 v{vMx}, {NEG:#x}")
    e("    s_barrier")
    if diag:
        e(f"    s_cmp_lg_u32 s{sEp}, 1")
        e("    s_cbranch_scc1 L_nots5")
        ts(5)
        e("L_nots5:")
    e(f"    s_cmp_lg_u32 s{sTe}, 0")
    e("    s_cbranch_scc1 L_readq")
    e("L_noq:")
    e(f"    s_cmp_ge_u32 s{sW}, s{sNt}")
    e("    s_cbranch_scc1 L_pubmax")
    for j in range(8):
        e(f"    ds_read_b128 v[{vF+4*j}:{vF+4*j+3}], v{vA[j]}")
    for j in range(8):
        e(f"    s_waitcnt lgkmcnt({0 if diag else 7-j})")
        c = "0" if j == 0 else f"v[{vS}:{vS+15}]"
        e(f"    v_mfma_f32_32x32x16_bf16 v[{vS}:{vS+15}], v[{vF+4*j}:{vF+4*j+3}], v[{vQ+4*j}:{vQ+4*j+3}], {c}")
    e(f"    s_add_u32 s{sTa}, s{sW}, 1")
    e(f"    s_cmp_eq_u32 s{sTa}, s{sNt}")
    e(f"    s_cselect_b32 s{sTa}, s{sLast}, -1")
    e("    s_nop 6")
    e(f"    s_cmp_eq_u32 s{sGi}, s{sTa}")
    e("    s_cbranch_scc1 L_mask")
    e("L_nomask:")
    e(f"    v_max3_f32 v{vT0}, v{vS}, v{vS+1}, v{vS+2}")
    e(f"    v_max3_f32 v{vT1}, v{vS+3}, v{vS+4}, v{vS+5}")
    e(f"    v_max3_f32 v{vT2}, v{vS+6}, v{vS+7}, v{vS+8}")
    e(f"    v_max3_f32 v{vT3}, v{vS+9}, v{vS+10}, v{vS+11}")
    e(f"    v_max3_f32 v{vT0}, v{vT0}, v{vS+12}, v{vS+13}")
    e(f"    v_max3_f32 v{vT1}, v{vT1}, v{vS+14}, v{vS+15}")
    e(f"    v_max3_f32 v{vT0}, v{vT0}, v{vT2}, v{vT3}")
    e(f"    v_max_f32 v{vT0}, v{vT0}, v{vT1}")
    e(f"    v_mov_b32 v{vT1}, v{vT0}")
    e("    s_nop 1")
    e(f"    v_permlane32_swap_b32 v{vT0}, v{vT1}")
    e(f"    v_max_f32 v{vMx}, v{vT0}, v{vT1}")
    e("L_pubmax:")
    e(f"    ds_write_b64 v{vMw}, v[{vMx}:{vMx+1}]")
    e(f"    v_add_u32 v{vA[0]}, s{sSlot}, v{vVb}")
    e(f"    v_add_u32 v{vA[1]}, 0x10000, v{vA[0]}")
    e(f"    s_xor_b32 s{sSlot}, s{sSlot}, 16384")
    e("L_spin:")
    e(f"    ds_read_b128 v[{vX}:{vX+3}], v{vMr}")
    e(f"    ds_read_b128 v[{vX+4}:{vX+7}], v{vMr} offset:16")
    e("    s_waitcnt lgkmcnt(0)")
    e(f"    v_min3_u32 v{vT0}, v{vX+1}, v{vX+3}, v{vX+5}")
    e(f"    v_min_u32 v{vT0}, v{vT0}, v{vX+7}")
    e(f"    v_cmp_ne_u32 vcc, s{sEp}, v{vT0}")
    e(f"    v_max3_f32 v{vT0}, v{vX}, v{vX+2}, v{vM}")
    e("    s_and_b64 vcc, exec, vcc")
    e("    s_cbranch_vccnz L_spin")
    e(f"    v_max3_f32 v{vT0}, v{vT0}, v{vX+4}, v{vX+6}")
    e(f"    v_sub_f32 v{vT1}, v{vM}, v{vT0}")
    e(f"    v_mul_f32 v{vT2}, s{sC}, v{vT0}")
    e(f"    v_mul_f32 v{vT1}, s{sC}, v{vT1}")
    e(f"    v_mov_b32 v{vM}, v{vT0}")
    e(f"    v_exp_f32 v{vAl}, v{vT1}")
    e(f"    s_cmp_ge_u32 s{sW}, s{sNt}")
    e("    s_cbranch_scc1 L_notile")
    for i in range(16):
        e(f"    v_fma_f32 v{vS+i}, v{vS+i}, s{sC}, -v{vT2}")
    for i in range(8):
        e(f"    v_exp_f32 v{vS+i}, v{vS+i}")
    for i in range(8, 16):
        e(f"    v_exp_f32 v{vS+i}, v{vS+i}")
        if i % 2 == 1:
            k = i - 9
            e(f"    v_cvt_pk_bf16_f32 v{vP_+k//2}, v{vS+k}, v{vS+k+1}")
    e(f"    ds_write_b128 v{vPw}, v[{vP_}:{vP_+3}]")
    for i in range(4, 8):
        e(f"    v_cvt_pk_bf16_f32 v{vP_+i}, v{vS+2*i}, v{vS+2*i+1}")
    e(f"    ds_write_b128 v{vPw}, v[{vP_+4}:{vP_+7}] offset:1024")
    for i in range(4):
        e(f"    v_pk_add_f32 v[{vS+2*i}:{vS+2*i+1}], v[{vS+2*i}:{vS+2*i+1}], v[{vS+8+2*i}:{vS+8+2*i+1}]")
    for i in range(2):
        e(f"    v_pk_add_f32 v[{vS+2*i}:{vS+2*i+1}], v[{vS+2*i}:{vS+2*i+1}], v[{vS+4+2*i}:{vS+4+2*i+1}]")
    e(f"    v_pk_add_f32 v[{vS}:{vS+1}], v[{vS}:{vS+1}], v[{vS+2}:{vS+3}]")
    e(f"    v_fma_f32 v{vLs}, v{vLs}, v{vAl}, v{vS}")
    e(f"    v_add_f32 v{vLs}, v{vLs}, v{vS+1}")
    e("L_scale:")
    e(f"    v_mov_b32 v{vT0}, v{vLs}")
    e(f"    v_mov_b32 v{vT1}, v{vLs}")
    for i in range(8):
        e(f"    v_pk_mul_f32 v[{vO+2*i}:{vO+2*i+1}], v[{vO+2*i}:{vO+2*i+1}], v[{vAl}:{vAl+1}] op_sel_hi:[1,0]")
    e(f"    v_permlane32_swap_b32 v{vT0}, v{vT1}")
    e(f"    v_add_f32 v{vT0}, v{vT0}, v{vT1}")
    e(f"    ds_write_b32 v{vLw}, v{vT0}")
    e("    s_waitcnt lgkmcnt(0)")
    e("    s_barrier")
    units = [(t, m) for t in range(4) for m in range(2)]

    def p_read(u):
        t, m = units[u]
        p = vPa + 4 * u
        return f"    ds_read_b128 v[{p}:{p+3}], v{vPr} offset:{t*2048+m*1024}"

    def v_reads(u):
        t, m = units[u]
        a = vF + 4 * u
        off = (t & 1) * 32768 + m * 4096
        return [f"    ds_read_b64_tr_b16 v[{a}:{a+1}], v{vA[t>>1]} offset:{off}",
                f"    ds_read_b64_tr_b16 v[{a+2}:{a+3}], v{vA[t>>1]} offset:{off+2048}"]

    def pv_mfma(u):
        return f"    v_mfma_f32_32x32x16_bf16 v[{vO}:{vO+15}], v[{vF+4*u}:{vF+4*u+3}], v[{vPa+4*u}:{vPa+4*u+3}], v[{vO}:{vO+15}]"

    e(f"    ds_read_b128 v[{vX}:{vX+3}], v{vLr}")
    if vsplit:
        e(f"    s_cmp_eq_u32 s{sGi}, s{sLast}")
        e(f"    s_cselect_b32 s{sTa}, s{sItem}, 0")
        e(f"    s_cmp_lg_u32 s{sTa}, 0")
        e("    s_cbranch_scc1 L_pvlast")
    for u in range(4):
        e(p_read(u))
        L.extend(v_reads(u))
    for u in range(8):
        e(f"    s_waitcnt lgkmcnt({min(9, 3*(7-u))})")
        e(pv_mfma(u))
        if u + 4 < 8:
            e(p_read(u + 4))
            L.extend(v_reads(u + 4))
        if (skip or u % 2 == 1) and u < 7:
            e(f"    s_cmp_eq_u32 s{sNu}, {u+1}")
            e("    s_cbranch_scc1 L_pvdone")
    e("L_pvdone:")
    e(f"    s_cmp_eq_u32 s{sGi}, s{sLast}")
    e("    s_cbranch_scc1 L_final")
    e(f"    s_add_u32 s{sGi}, s{sGi}, 1")
    e("    s_waitcnt lgkmcnt(0)")
    e("    s_branch L_loop")

    if vsplit:
        e("L_pvlast:")
        L.extend(v_reads(0) + v_reads(1))
        for u in range(8):
            e(p_read(u))
        for t in range(4):
            if t:
                e("    s_barrier")
                L.extend(v_reads(2 * t) + v_reads(2 * t + 1))
                e("    s_waitcnt lgkmcnt(2)")
            else:
                e("    s_waitcnt lgkmcnt(7)")
            e(pv_mfma(2 * t))
            if skip:
                e(f"    s_cmp_eq_u32 s{sNu}, {2*t+1}")
                e("    s_cbranch_scc1 L_final")
            e(f"    s_waitcnt lgkmcnt({6 if t == 0 else 0})")
            e(pv_mfma(2 * t + 1))
            if t < 3:
                e(f"    s_cmp_eq_u32 s{sNt}, {t+1}")
                e("    s_cbranch_scc1 L_final")
        e("    s_nop 0")
        e("    s_branch L_final")

    e("L_notile:")
    e(f"    v_mul_f32 v{vLs}, v{vLs}, v{vAl}")
    e("    s_branch L_scale")

    e("L_readq:")
    e(f"    v_add_u32 v{vX}, s{sTe}, v{vKrd}")
    for j in range(1, 8):
        e(f"    v_xor_b32 v{vX+j}, {j<<5}, v{vX}")
    for j in range(8):
        e(f"    ds_read_b128 v[{vQ+4*j}:{vQ+4*j+3}], v{vX+j}")
    e(f"    s_mov_b32 s{sTe}, 0")
    e("    s_waitcnt lgkmcnt(0)")
    e("    s_branch L_noq")

    e("L_mask:")
    e(f"    v_sub_u32 v{vT0}, s{sNv}, v{vHH}")
    e(f"    v_mov_b32 v{vT1}, {NEG:#x}")
    for v in range(16):
        t = 16 * (v >> 3) + 2 * ((v >> 2) & 1) + 4 * (v & 3)
        e(f"    v_cmp_lt_i32 vcc, {t}, v{vT0}")
        e("    s_nop 1")
        e(f"    v_cndmask_b32 v{vS+v}, v{vT1}, v{vS+v}, vcc")
    e("    s_branch L_nomask")

    e("L_final:")
    if diag:
        e(f"    s_cmp_eq_u32 s{sItem}, 0")
        e("    s_cbranch_scc1 L_nots6")
        ts(6)
        e("L_nots6:")
    e(f"    v_add_f32 v{vT0}, v{vX}, v{vX+1}")
    e(f"    v_add_f32 v{vT1}, v{vX+2}, v{vX+3}")
    e(f"    v_add_f32 v{vT0}, v{vT0}, v{vT1}")
    e(f"    v_rcp_f32 v{vAl}, v{vT0}")
    e(f"    s_xor_b32 s{sTa}, s{sSlot}, 16384")
    e(f"    s_add_u32 s{sTa}, s{sTa}, s{sRing}")
    e(f"    v_add_u32 v{vA[2]}, s{sTa}, v{vTw}")
    e(f"    v_xor_b32 v{vA[3]}, 32, v{vA[2]}")
    e(f"    v_add_u32 v{vA[4]}, s{sTa}, v{vTr}")
    e(f"    s_add_u32 s{sTa}, s{sQo1}, 4096")
    for i in range(8):
        e(f"    v_pk_mul_f32 v[{vO+2*i}:{vO+2*i+1}], v[{vO+2*i}:{vO+2*i+1}], v[{vAl}:{vAl+1}] op_sel_hi:[1,0]")
    for i in range(8):
        e(f"    v_cvt_pk_bf16_f32 v{vP_+i}, v{vO+2*i}, v{vO+2*i+1}")
    e(f"    v_permlane32_swap_b32 v{vP_}, v{vP_+2}")
    e(f"    v_permlane32_swap_b32 v{vP_+1}, v{vP_+3}")
    e(f"    v_permlane32_swap_b32 v{vP_+4}, v{vP_+6}")
    e(f"    v_permlane32_swap_b32 v{vP_+5}, v{vP_+7}")
    e(f"    ds_write_b128 v{vA[2]}, v[{vP_}:{vP_+3}]")
    e(f"    ds_write_b128 v{vA[3]}, v[{vP_+4}:{vP_+7}]")
    e(f"    ds_read_b128 v[{vS}:{vS+3}], v{vA[4]}")
    e(f"    ds_read_b128 v[{vS+4}:{vS+7}], v{vA[4]} offset:1024")
    e(f"    s_waitcnt lgkmcnt({0 if diag else 1})")
    e(f"    buffer_store_dwordx4 v[{vS}:{vS+3}], v{vOo}, s[{OS}:{OS+3}], s{sQo1} offen {opol}")
    e(f"    s_waitcnt lgkmcnt(0)")
    e(f"    buffer_store_dwordx4 v[{vS+4}:{vS+7}], v{vOo}, s[{OS}:{OS+3}], s{sTa} offen {opol}")
    e(f"    s_cmp_lg_u32 s{sItem}, 0")
    e("    s_cbranch_scc1 L_end")
    e(f"    s_mov_b32 s{sItem}, 1")
    e(f"    s_mov_b32 s{sC}, s{sC2}")
    e(f"    s_mov_b32 s{sQo1}, s{sQo2}")
    e(f"    s_mov_b32 s{sKey1}, s{sKey2}")
    e(f"    s_mov_b32 s{sTe}, {QB+8192}")
    e("    s_branch L_item")
    e("L_end:")
    if diag:
        ts(4)
        e("    s_waitcnt vmcnt(0)")
        ts(7)
        diag_store("c")
    e("L_done:")
    e("    s_endpgm")
    e('.section .rodata,"a"')
    e(".p2align 6")
    e(f".amdhsa_kernel {NAME}_kernel")
    e(f"  .amdhsa_next_free_vgpr {NV}")
    e("  .amdhsa_next_free_sgpr 102")
    e(f"  .amdhsa_accum_offset {NV}")
    e("  .amdhsa_group_segment_fixed_size 0")
    e("  .amdhsa_kernarg_size 64")
    e("  .amdhsa_user_sgpr_count 2")
    e("  .amdhsa_user_sgpr_kernarg_segment_ptr 1")
    e("  .amdhsa_system_sgpr_workgroup_id_x 1")
    e("  .amdhsa_float_denorm_mode_32 3")
    e(".end_amdhsa_kernel")
    return "\n".join(L) + "\n"


if __name__ == "__main__":
    ap = argparse.ArgumentParser()
    ap.add_argument("-o", default="/dev/stdout")
    ap.add_argument("--W", type=float, default=21)
    ap.add_argument("--Wtail", type=int, default=32)
    ap.add_argument("--tailg", type=int, default=0)
    ap.add_argument("--pol", default="nt")
    ap.add_argument("--opol", default="")
    ap.add_argument("--prio", type=int, default=3)
    ap.add_argument("--cpre", type=int, default=0)
    ap.add_argument("--enc", default=None)
    ap.add_argument("--nospec", action="store_true")
    ap.add_argument("--vsplit", action="store_true")
    ap.add_argument("--noskip", action="store_true")
    ap.add_argument("--perm", default=None)
    ap.add_argument("--diag", action="store_true")
    a = ap.parse_args()
    open(a.o, "w").write(gen(W=a.W, pol=a.pol, diag=a.diag, opol=a.opol, Wtail=a.Wtail, tailg=a.tailg,
                             prio=a.prio, cpre=a.cpre, enc=None if a.enc is None else a.enc.split(","),
                             spec=not a.nospec, vsplit=a.vsplit, skip=not a.noskip,
                             perm=None if a.perm is None else [int(x) for x in a.perm.split(',')]))
```

```python
import argparse
from gen import HEADER, NAME, f2u


def gen(W=21, pol="nt", diag=False, opol="", Wtail=32, tailg=0, prio=3, cpre=0, enc=None, spec=True,
        vsplit=False, skip=True, perm=None):
    L = []
    e = L.append
    QB = 131072
    PB = QB + 16384
    MX = PB + 8192
    LB = MX + 1024
    LDS = LB + 512
    assert 2 <= W <= 25
    CSC = f2u((128 ** -0.5) * 1.4426950408889634)
    NEG = f2u(-1e30)

    sQ, sK, sV, sBT = 4, 6, 8, 10
    sCL, sOUT = 12, 14
    sDBG, sWS = 16, 18
    KS, OS = 20, 32
    sKh, sVh = 36, 38
    sWv, sP, sH = 40, 41, 42
    sB1, sB2, sKey1, sKey2 = 43, 44, 45, 46
    sT, sG, sBa, sRe, sE = 47, 48, 49, 50, 51
    sBo, sRem, sGl = 52, 53, 54
    sSlot, sGi, sNt = 55, 56, 57
    sT0, sTa, sTb, sTc, sTd, sTe = 58, 59, 60, 61, 62, 63
    sM0, sM1 = 64, 66
    sW, sKc = 68, 69
    sTS = 70
    sQo1, sQo2 = 86, 87
    sItem = 100
    sC, sC2, sNv, sEp, sRing, sLast, sNu = 20, 21, 22, 24, 26, 27, 23
    sNx = list(range(24, 32))
    sPg = list(range(88, 96))
    sNr = [64, 65, 66, 67, 96, 97, 98, 99]
    sG1g, sG2g = 32, 33
    LENS = [2048 - ((i * 2654435761) % 1024) for i in range(1, 17)]
    ORDER = sorted(range(16), key=lambda b: (-LENS[b], -b))
    GU1 = sum(ORDER[p] << (4 * p) for p in range(8))
    GU2 = sum(ORDER[15 - p] << (4 * p) for p in range(8))

    vL = 1
    vKo = [2, 3, 4, 5]
    vVo = [6, 7, 8, 9]
    vQo = [12, 13, 14, 15]
    vKrd, vVb, vPr, vPw, vMw, vMr, vLw, vLr, vOo = 2, 3, 4, 5, 6, 7, 8, 9, 10
    vHH = 11
    vA = list(range(12, 20))
    vM, vLs = 20, 21
    vMx = 22
    vAl = 24
    vTw, vTr = 26, 27
    vT0, vT1, vT2, vT3 = 28, 29, 30, 31
    vS = 32
    vP_ = 48
    vX = 56
    vQ = 64
    vF = 96
    vPa = 128
    vO = 160
    NV = 176

    def ts(i):
        if diag:
            e(f"    s_memrealtime s[{sTS+2*i}:{sTS+2*i+1}]")

    def hold(role):
        if enc[0] != role:
            return
        idx, mult = int(enc[1]), int(enc[2])
        if len(enc) > 3:
            e(f"    s_and_b32 s{sT0}, s2, {int(enc[3])}")
            e(f"    s_cmp_lg_u32 s{sT0}, {int(enc[4])}")
            e("    s_cbranch_scc1 L_done")
        e("    s_waitcnt vmcnt(0) lgkmcnt(0)")
        e(f"    s_sub_u32 s{sT0}, s{sTS+2*idx}, s{sTS}")
        if mult < 0:
            e(f"    s_sub_u32 s{sT0}, 8000, s{sT0}")
        e(f"    s_min_u32 s{sT0}, s{sT0}, 10000")
        e(f"    s_mul_i32 s{sT0}, s{sT0}, {abs(mult)}")
        e(f"    s_add_u32 s{sT0}, s{sT0}, 10000")
        e(f"L_hold{role}:")
        e("    s_sleep 8")
        e("    s_memrealtime s[88:89]")
        e("    s_waitcnt lgkmcnt(0)")
        e(f"    s_sub_u32 s88, s88, s{sTS}")
        e(f"    s_cmp_lt_u32 s88, s{sT0}")
        e(f"    s_cbranch_scc1 L_hold{role}")

    def diag_store(role):
        if enc and role == "c":
            for i in range(12):
                e(f"    v_mov_b32 v{vS+i}, s{4+i}")
            e(f"    v_mov_b32 v{vT0}, 0")
            for i in range(3):
                e(f"    global_store_dwordx4 v{vT0}, v[{vS+4*i}:{vS+4*i+3}], s[{sDBG}:{sDBG+1}] offset:{16*i}")
        if enc:
            hold(role)
            return
        e("    s_getreg_b32 s88, hwreg(HW_REG_XCC_ID)")
        e("    s_getreg_b32 s89, hwreg(HW_REG_HW_ID)")
        e("    s_waitcnt lgkmcnt(0)")
        e(f"    s_mul_i32 s{sT0}, s2, 5")
        e(f"    s_add_u32 s{sT0}, s{sT0}, s{sWv}")
        e(f"    s_lshl_b32 s{sT0}, s{sT0}, 7")
        e(f"    v_mov_b32 v{vT0}, s{sT0}")
        for i in range(4):
            for j in range(4):
                e(f"    v_mov_b32 v{vS+j}, s{sTS+4*i+j}")
            e(f"    global_store_dwordx4 v{vT0}, v[{vS}:{vS+3}], s[{sWS}:{sWS+1}] offset:{16*i}")
            e("    s_nop 1")
        e(f"    v_mov_b32 v{vS}, s88")
        e(f"    v_mov_b32 v{vS+1}, s89")
        e(f"    v_mov_b32 v{vS+2}, s{sG}")
        e(f"    v_mov_b32 v{vS+3}, s{sB1}")
        e(f"    global_store_dwordx4 v{vT0}, v[{vS}:{vS+3}], s[{sWS}:{sWS+1}] offset:64")

    def q_dma():
        out = []
        for item in range(2):
            so = sQo1 if item == 0 else sQo2
            for half in range(2):
                out.append(f"    s_mov_b32 m0, {QB + item*8192 + half*4096}")
                out.append(f"    s_add_u32 s{sTd}, s{so}, {half*4096}")
                for i in range(4):
                    off = f" offset:{i*1024}" if i else ""
                    out.append(f"    buffer_load_dwordx4 v{vQo[i]}, s[{KS}:{KS+3}], s{sTd} offen{off} {pol} lds")
        return out

    def q_offsets(b1, b2):
        return [f"    s_lshl_b32 s{sTd}, s{sH}, 13",
                f"    s_lshl_b32 s{sQo1}, s{b1}, 18",
                f"    s_lshl_b32 s{sQo2}, s{b2}, 18",
                f"    s_add_u32 s{sQo1}, s{sQo1}, s{sTd}",
                f"    s_add_u32 s{sQo2}, s{sQo2}, s{sTd}"]

    def item_params(key):
        return [f"    s_lshr_b32 s{sG}, s{key}, 11",
                f"    s_lshr_b32 s{sT}, s{key}, 9",
                f"    s_lshr_b32 s{sE}, s{key}, 4",
                f"    s_add_u32 s{sG}, s{sG}, 1",
                f"    s_add_u32 s{sT}, s{sT}, 1",
                f"    s_add_u32 s{sE}, s{sE}, 1",
                f"    s_lshl_b32 s{sRe}, s{sG}, 1",
                f"    s_cmp_ge_u32 s{sT}, s{sRe}",
                f"    s_addc_u32 s{sBa}, 1, 0",
                f"    s_add_u32 s{sRe}, s{sRe}, s{sG}",
                f"    s_cmp_ge_u32 s{sT}, s{sRe}",
                f"    s_addc_u32 s{sBa}, s{sBa}, 0",
                f"    s_add_u32 s{sRe}, s{sRe}, s{sG}",
                f"    s_cmp_ge_u32 s{sT}, s{sRe}",
                f"    s_addc_u32 s{sBa}, s{sBa}, 0",
                f"    s_mul_i32 s{sRe}, s{sBa}, s{sG}",
                f"    s_sub_u32 s{sRe}, s{sT}, s{sRe}"]

    def cl_loads():
        return [f"    global_load_dword v{vS}, v{vX+0}, s[{sCL}:{sCL+1}]",
                f"    global_load_dwordx4 v[{vS+4}:{vS+7}], v{vX+2}, s[{sCL}:{sCL+1}]"]

    def sort_consts():
        return [f"    v_lshrrev_b32 v{vX+6}, 2, v{vL}",
                f"    v_lshlrev_b32 v{vX+7}, 2, v{vX+1}",
                f"    s_sub_u32 s{sTe}, 15, s{sP}",
                f"    s_movk_i32 s{sT0}, 2047"]

    def sort_code():
        out = [f"    v_add_u32 v{vS+1}, -1, v{vS}"]
        for j in range(4):
            out.append(f"    v_add_u32 v{vS+4+j}, -1, v{vS+4+j}")
        out.append(f"    v_min_u32 v{vS+1}, s{sT0}, v{vS+1}")
        for j in range(4):
            out.append(f"    v_min_u32 v{vS+4+j}, s{sT0}, v{vS+4+j}")
        out.append(f"    v_lshl_or_b32 v{vS+1}, v{vS+1}, 4, v{vX+6}")
        out.append(f"    v_sub_u32 v{vS+2}, v{vS+1}, v{vX+7}")
        for j in range(4):
            out.append(f"    v_lshl_or_b32 v{vS+4+j}, v{vS+4+j}, 4, {j}")
        for j in range(4):
            out.append(f"    v_sub_u32 v{vS+4+j}, v{vS+2}, v{vS+4+j}")
        for j in range(4):
            out.append(f"    v_lshrrev_b32 v{vS+4+j}, 31, v{vS+4+j}")
        out += [f"    v_add_u32 v{vS+4}, v{vS+4}, v{vS+5}",
                f"    v_add3_u32 v{vS+4}, v{vS+4}, v{vS+6}, v{vS+7}",
                "    s_nop 1",
                f"    v_add_u32_dpp v{vS+5}, v{vS+4}, v{vS+4} quad_perm:[1,0,3,2] row_mask:0xf bank_mask:0xf",
                "    s_nop 1",
                f"    v_add_u32_dpp v{vS+4}, v{vS+5}, v{vS+5} quad_perm:[2,3,0,1] row_mask:0xf bank_mask:0xf",
                f"    v_cmp_eq_u32 s[{sM0}:{sM0+1}], s{sP}, v{vS+4}",
                f"    v_cmp_eq_u32 s[{sM1}:{sM1+1}], s{sTe}, v{vS+4}",
                f"    s_ff1_i32_b64 s{sTa}, s[{sM0}:{sM0+1}]",
                f"    s_ff1_i32_b64 s{sTb}, s[{sM1}:{sM1+1}]",
                f"    v_readlane_b32 s{sKey1}, v{vS+1}, s{sTa}",
                f"    v_readlane_b32 s{sKey2}, v{vS+1}, s{sTb}",
                f"    s_lshr_b32 s{sB1}, s{sTa}, 2",
                f"    s_lshr_b32 s{sB2}, s{sTb}, 2"]
        return out

    e(HEADER.rstrip())
    e(f"; @launch grid=(256,1,1) block=(320,1,1) lds={LDS}")
    e('.amdgcn_target "amdgcn-amd-amdhsa--gfx950"')
    e(".text")
    e(f".globl {NAME}_kernel")
    e(".p2align 8")
    e(f".type {NAME}_kernel,@function")
    e(f"{NAME}_kernel:")
    e("    s_cmp_ge_u32 s2, 256")
    e("    s_cbranch_scc1 L_done")
    if diag:
        for i in range(16):
            e(f"    s_mov_b32 s{sTS+i}, 0")
    ts(0)
    e(f"    s_load_dwordx4 s[12:15], s[0:1], 32")
    e(f"    s_load_dwordx8 s[4:11], s[0:1], 0")
    if diag:
        e(f"    s_load_dwordx4 s[16:19], s[0:1], 48")
    e(f"    v_lshrrev_b32 v{vT0}, 6, v0")
    e(f"    v_and_b32 v{vL}, 63, v0")
    e(f"    v_readfirstlane_b32 s{sWv}, v{vT0}")
    e(f"    s_and_b32 s{sP}, s2, 7")
    if perm:
        assert sorted(perm) == list(range(8))
        PK = sum(perm[x] << (4 * x) for x in range(8))
        e(f"    s_lshl_b32 s{sP}, s{sP}, 2")
        e(f"    s_lshr_b32 s{sP}, {PK:#x}, s{sP}")
        e(f"    s_and_b32 s{sP}, s{sP}, 7")
    e(f"    s_lshr_b32 s{sH}, s2, 3")
    e(f"    v_and_b32 v{vX+0}, 60, v{vL}")
    e(f"    v_and_b32 v{vX+1}, 3, v{vL}")
    e(f"    v_lshlrev_b32 v{vX+2}, 4, v{vX+1}")
    e(f"    s_cmp_lg_u32 s{sWv}, 0")
    e("    s_cbranch_scc1 L_consumer")

    e(f"    v_lshrrev_b32 v{vT0}, 4, v{vL}")
    e(f"    v_and_b32 v{vT1}, 15, v{vL}")
    e(f"    v_lshlrev_b32 v{vT2}, 2, v{vT0}")
    e(f"    v_xor_b32 v{vT1}, v{vT1}, v{vT2}")
    e(f"    v_lshlrev_b32 v{vT1}, 4, v{vT1}")
    e(f"    v_lshl_add_u32 v{vQo[0]}, v{vT0}, 8, v{vT1}")
    for i in range(1, 4):
        e(f"    v_xor_b32 v{vQo[i]}, {i*16}, v{vQo[0]}")
    e(f"    s_mov_b32 s{KS+2}, 0x400000")
    e(f"    s_mov_b32 s{KS+3}, 0x20000")
    if spec:
        e(f"    s_lshl_b32 s{sT0}, s{sP}, 2")
        e(f"    s_lshr_b32 s{sG1g}, {GU1:#x}, s{sT0}")
        e(f"    s_lshr_b32 s{sG2g}, {GU2:#x}, s{sT0}")
        e(f"    s_and_b32 s{sG1g}, s{sG1g}, 15")
        e(f"    s_and_b32 s{sG2g}, s{sG2g}, 15")
        L.extend(q_offsets(sG1g, sG2g))
        e(f"    s_lshl_b32 s{sBo}, s{sG1g}, 9")
    else:
        e(f"    v_lshlrev_b32 v{vX+3}, 7, v{vL}")
    e("    s_waitcnt lgkmcnt(0)")
    ts(1)
    L.extend(cl_loads())
    e(f"    s_mov_b32 s{KS}, s{sQ}")
    e(f"    s_mov_b32 s{KS+1}, s{sQ+1}")
    if spec:
        e(f"    s_load_dwordx8 s[{sNx[0]}:{sNx[7]}], s[{sBT}:{sBT+1}], s{sBo}")
        L.extend(q_dma())
    else:
        e(f"    global_load_dword v{vS+8}, v{vX+3}, s[{sBT}:{sBT+1}]")
    if prio:
        e(f"    s_setprio {prio}")
    e(f"    v_lshl_add_u32 v{vVo[0]}, v{vT0}, 15, v{vT1}")
    for i in range(1, 4):
        e(f"    v_add_u32 v{vVo[i]}, {i*(8192-1024)}, v{vVo[0]}")
    e(f"    v_mov_b32 v{vKo[0]}, v{vVo[0]}")
    for i in range(1, 4):
        e(f"    v_xor_b32 v{vKo[i]}, {i*16}, v{vVo[i]}")
    e(f"    s_lshl_b32 s{sT0}, s{sH}, 8")
    e(f"    s_add_u32 s{sKh}, s{sK}, s{sT0}")
    e(f"    s_addc_u32 s{sKh+1}, s{sK+1}, 0")
    e(f"    s_add_u32 s{sVh}, s{sV}, s{sT0}")
    e(f"    s_addc_u32 s{sVh+1}, s{sV+1}, 0")
    e(f"    s_mov_b32 s{sKc}, 0")
    e(f"    s_mov_b32 s{sGi}, 0")
    e(f"    s_mov_b32 s{sSlot}, 0")
    e(f"    s_mov_b32 s{sItem}, 0")
    L.extend(sort_consts())
    e(f"    s_waitcnt vmcnt({16 if spec else 1})")
    ts(2)
    L.extend(sort_code())
    if spec:
        e(f"    s_cmp_lg_u32 s{sB1}, s{sG1g}")
        e("    s_cbranch_scc1 L_ld_redo")
        e(f"    s_cmp_lg_u32 s{sB2}, s{sG2g}")
        e("    s_cbranch_scc1 L_ld_redo")
    else:
        e(f"    s_lshl_b32 s{sBo}, s{sB1}, 9")
        e(f"    s_load_dwordx8 s[{sNx[0]}:{sNx[7]}], s[{sBT}:{sBT+1}], s{sBo}")
        L.extend(q_offsets(sB1, sB2))
        L.extend(q_dma())
    e("L_ld_item:")
    L.extend(item_params(sKey1))
    e(f"    s_mov_b32 s{sRem}, s{sE}")
    e(f"    s_mov_b32 s{sGl}, s{sG}")
    if diag:
        e(f"    s_cmp_lg_u32 s{sItem}, 0")
        e("    s_cbranch_scc1 L_ld_go")
        ts(3)
    e("    s_branch L_ld_go")
    if spec:
        e("L_ld_redo:")
        e("    s_waitcnt vmcnt(0) lgkmcnt(0)")
        e(f"    s_lshl_b32 s{sBo}, s{sB1}, 9")
        e(f"    s_load_dwordx8 s[{sNx[0]}:{sNx[7]}], s[{sBT}:{sBT+1}], s{sBo}")
        L.extend(q_offsets(sB1, sB2))
        L.extend(q_dma())
        e("    s_branch L_ld_item")

    def page_setup(isK, j):
        out = []
        if isK:
            out.append(f"    s_min_u32 s{sTa}, s{sNx[j]}, 0x803")
            out.append(f"    s_min_i32 s{sTb}, s{sRem}, 16")
            out.append(f"    s_lshl_b32 s{sPg[j]}, s{sTa}, 17")
            out.append(f"    s_max_i32 s{sTb}, s{sTb}, 0")
            out.append(f"    s_sub_i32 s{sRem}, s{sRem}, 16")
            out.append(f"    s_lshl_b32 s{sNr[j]}, s{sTb}, 13")
        elif j < 4:
            out.append(f"    s_add_u32 s{sTa}, s{sBo}, {8*j}")
            out.append(f"    s_min_u32 s{sTa}, s{sTa}, 8184")
            out.append(f"    s_load_dwordx2 s[{sNx[2*j]}:{sNx[2*j+1]}], s[{sBT}:{sBT+1}], s{sTa}")
        base = sKh if isK else sVh
        c = (j >> 1) * 32768 + (j & 1) * 4096 + (0 if isK else 8192)
        out.append(f"    s_add_u32 m0, s{sSlot}, {c}")
        out.append(f"    s_add_u32 s{KS}, s{base}, s{sPg[j]}")
        out.append(f"    s_addc_u32 s{KS+1}, s{base+1}, 0")
        out.append(f"    s_mov_b32 s{KS+2}, s{sNr[j]}")
        return out

    uid = [0]

    def prev_barrier():
        uid[0] += 1
        return [f"    s_cmp_eq_u32 s{sKc}, 0",
                f"    s_cbranch_scc1 L_nb{uid[0]}",
                "    s_barrier",
                f"L_nb{uid[0]}:"]

    def group_code(npg, Wn, last):
        out = []
        seq = [(True, j, i) for j in range(npg) for i in range(4)] + \
              [(False, j, i) for j in range(npg) for i in range(4)]
        pend = [(0, "prev"), (4 * npg, "K")]
        if last:
            if vsplit:
                pend += [(4 * npg + min(8 * (t + 1), 4 * npg), "V") for t in range((npg + 1) // 2)]
            else:
                pend.append((8 * npg, "V"))
        for n, (isK, j, i) in enumerate(seq):
            if i == 0:
                ps = page_setup(isK, j)
                if last and not isK and j < 4:
                    ps = ps[3:]
                out += ps
            fr = Wn - int(Wn)
            wv = int(Wn) - 1 + (int((n + 1) * fr + 1e-9) - int(n * fr + 1e-9))
            out.append(f"    s_waitcnt vmcnt({wv})")
            while pend and n - pend[0][0] >= wv:
                out += prev_barrier() if pend[0][1] == "prev" else ["    s_barrier"]
                pend.pop(0)
            vo = vKo if isK else vVo
            off = f" offset:{i*1024}" if i else ""
            out.append(f"    buffer_load_dwordx4 v{vo[i]}, s[{KS}:{KS+3}], 0 offen{off} {pol} lds")
        if not last:
            for j in range(npg, 4):
                out += page_setup(False, j)[:3]
        for (pos, name) in pend:
            out.append(f"    s_waitcnt vmcnt({len(seq)-pos})")
            out += prev_barrier() if name == "prev" else ["    s_barrier"]
        if last:
            out.append("    s_branch L_ld_end" if diag else "    s_endpgm")
        else:
            out.append("    s_branch L_ld_next")
        return out

    e("L_ld_switch:")
    e(f"    s_mov_b32 s{sItem}, 1")
    e(f"    s_mov_b32 s{sGi}, 0")
    e(f"    s_mov_b32 s{sKey1}, s{sKey2}")
    e("    s_branch L_ld_item")
    e("    .p2align 6")
    e("L_ld_next:")
    e(f"    s_xor_b32 s{sSlot}, s{sSlot}, 16384")
    e(f"    s_add_u32 s{sKc}, s{sKc}, 1")
    e(f"    s_add_u32 s{sGi}, s{sGi}, 1")
    e(f"    s_sub_u32 s{sGl}, s{sGl}, 1")
    e(f"    s_cmp_eq_u32 s{sGl}, 0")
    e("    s_cbranch_scc1 L_ld_switch")
    e("L_ld_go:")
    e(f"    s_cmp_lt_u32 s{sGi}, s{sRe}")
    e(f"    s_addc_u32 s{sNt}, s{sBa}, 0")
    e(f"    s_lshl3_add_u32 s{sBo}, s{sNt}, s{sBo}")
    e(f"    s_lshl_b32 s{sTa}, s{sB2}, 9")
    e(f"    s_cmp_eq_u32 s{sGl}, 1")
    e(f"    s_cselect_b32 s{sBo}, s{sTa}, s{sBo}")
    e(f"    s_cmp_eq_u32 s{sItem}, 0")
    e(f"    s_cselect_b32 s{sTa}, 64, s{sGl}")
    e(f"    s_lshl_b32 s{sNt}, s{sNt}, 1")
    if skip:
        e(f"    s_add_u32 s{sTb}, s{sRem}, 15")
        e(f"    s_lshr_b32 s{sTb}, s{sTb}, 4")
        e(f"    s_min_u32 s{sNt}, s{sNt}, s{sTb}")
    e("    s_waitcnt lgkmcnt(0)")
    e(f"    s_cmp_eq_u32 s{sTa}, 1")
    e("    s_cbranch_scc1 L_ld_last")
    NPS = (7, 6, 5, 4, 3, 2, 1) if skip else (6, 4, 2)
    if tailg:
        e(f"    s_cmp_le_u32 s{sTa}, {tailg+1}")
        e("    s_cbranch_scc1 L_ld_tail")
    e(f"    s_cmp_lg_u32 s{sNt}, 8")
    e("    s_cbranch_scc1 L_ld_small")
    L.extend(group_code(8, W, False))
    e("L_ld_small:")
    for npg in NPS:
        if npg != 6:
            e(f"    s_cmp_eq_u32 s{sNt}, {npg}")
            e(f"    s_cbranch_scc1 L_ld_mid{npg}")
    for npg in sorted(NPS, key=lambda x: (x != 6, -x)):
        e(f"L_ld_mid{npg}:")
        L.extend(group_code(npg, W, False))
    if tailg:
        e("L_ld_tail:")
        e(f"    s_cmp_eq_u32 s{sNt}, 6")
        e("    s_cbranch_scc1 L_ld_tail6")
        e(f"    s_cmp_lg_u32 s{sNt}, 8")
        e("    s_cbranch_scc1 L_ld_small")
        L.extend(group_code(8, min(Wtail, 32), False))
        e("L_ld_tail6:")
        L.extend(group_code(6, min(Wtail, 25), False))
    e("L_ld_last:")
    for npg in NPS:
        e(f"    s_cmp_eq_u32 s{sNt}, {npg}")
        e(f"    s_cbranch_scc1 L_ld_last{npg}")
    for npg in (8,) + NPS:
        e(f"L_ld_last{npg}:")
        L.extend(group_code(npg, min(Wtail, 63), True))
    if diag:
        e("L_ld_end:")
        ts(6)
        ts(7)
        diag_store("l")
        e("    s_endpgm")

    e("L_consumer:")
    e(f"    s_sub_u32 s{sW}, s{sWv}, 1")
    e(f"    v_and_b32 v{vT0}, 31, v{vL}")
    e(f"    v_lshrrev_b32 v{vHH}, 5, v{vL}")
    e(f"    v_bfe_u32 v{vT2}, v{vL}, 2, 2")
    L.extend(sort_consts())
    e("    s_waitcnt lgkmcnt(0)")
    ts(1)
    L.extend(cl_loads())
    e(f"    v_lshl_or_b32 v{vT1}, v{vX+1}, 2, v{vT2}")
    e(f"    v_xor_b32 v{vT1}, v{vT1}, v{vHH}")
    e(f"    v_lshlrev_b32 v{vT1}, 4, v{vT1}")
    e(f"    v_lshl_add_u32 v{vKrd}, v{vT0}, 8, v{vT1}")
    e(f"    s_lshl_b32 s{sRing}, s{sW}, 15")
    e(f"    v_lshlrev_b32 v{vT1}, 5, v{vT0}")
    e(f"    v_add_u32 v{vMr}, {MX}, v{vT1}")
    e(f"    s_lshl_b32 s{sTa}, s{sW}, 3")
    e(f"    v_add_u32 v{vMw}, s{sTa}, v{vMr}")
    e(f"    v_lshlrev_b32 v{vT1}, 4, v{vT0}")
    e(f"    v_add_u32 v{vLr}, {LB}, v{vT1}")
    e(f"    s_lshl_b32 s{sTa}, s{sW}, 2")
    e(f"    v_add_u32 v{vLw}, s{sTa}, v{vLr}")
    e(f"    v_bfe_u32 v{vT1}, v{vL}, 1, 2")
    e(f"    v_xor_b32 v{vT1}, v{vT1}, v{vHH}")
    e(f"    v_lshlrev_b32 v{vT1}, 4, v{vT1}")
    e(f"    v_lshl_add_u32 v{vTw}, v{vT0}, 6, v{vT1}")
    e(f"    v_bfe_u32 v{vT1}, v{vL}, 3, 2")
    e(f"    v_xor_b32 v{vT1}, v{vT1}, v{vL}")
    e(f"    v_lshlrev_b32 v{vTr}, 4, v{vT1}")
    e(f"    s_lshl_b32 s{sTa}, s{sW}, 6")
    e(f"    v_lshl_add_u32 v{vT1}, v{vX+6}, 8, v{vX+2}")
    e(f"    v_add_u32 v{vOo}, s{sTa}, v{vT1}")
    e(f"    v_lshl_add_u32 v{vT0}, v{vHH}, 2, v{vT2}")
    e(f"    v_lshlrev_b32 v{vT0}, 8, v{vT0}")
    e(f"    v_lshl_or_b32 v{vT0}, v{vT2}, 6, v{vT0}")
    e(f"    v_bfe_u32 v{vT1}, v{vL}, 4, 1")
    e(f"    v_lshl_or_b32 v{vT0}, v{vT1}, 5, v{vT0}")
    e(f"    v_lshl_or_b32 v{vT0}, v{vX+1}, 3, v{vT0}")
    e(f"    v_xor_b32 v{vT0}, s{sTa}, v{vT0}")
    e(f"    v_add_u32 v{vVb}, 8192, v{vT0}")
    e(f"    v_lshlrev_b32 v{vT1}, 4, v{vL}")
    e(f"    v_add_u32 v{vPr}, {PB}, v{vT1}")
    e(f"    s_lshl_b32 s{sTa}, s{sW}, 11")
    e(f"    v_add_u32 v{vPw}, s{sTa}, v{vPr}")
    e(f"    s_mov_b32 s{OS}, s{sOUT}")
    e(f"    s_mov_b32 s{OS+1}, s{sOUT+1}")
    e(f"    s_mov_b32 s{OS+2}, 0x400000")
    e(f"    s_mov_b32 s{OS+3}, 0x20000")
    e(f"    v_mov_b32 v{vMx}, 0")
    e(f"    v_mov_b32 v{vMx+1}, 0")
    e(f"    ds_write_b64 v{vMw}, v[{vMx}:{vMx+1}]")
    e(f"    s_waitcnt vmcnt(0)")
    ts(2)
    L.extend(sort_code())
    e(f"    v_readlane_b32 s{sTc}, v{vS}, s{sTa}")
    e(f"    v_readlane_b32 s{sTe}, v{vS}, s{sTb}")
    L.extend(q_offsets(sB1, sB2))
    e(f"    s_cmp_gt_i32 s{sTc}, 0")
    e(f"    s_cselect_b32 s{sC}, {CSC:#x}, 0")
    e(f"    s_cmp_gt_i32 s{sTe}, 0")
    e(f"    s_cselect_b32 s{sC2}, {CSC:#x}, 0")
    e(f"    s_mov_b32 s{sSlot}, 0")
    e(f"    s_mov_b32 s{sEp}, 0")
    e(f"    s_mov_b32 s{sItem}, 0")
    e(f"    s_mov_b32 s{sTe}, {QB}")
    if cpre:
        e(f"    s_getpc_b64 s[{sM0}:{sM0+1}]")
        e("L_pc:")
        e(f"    s_add_u32 s{sM0}, s{sM0}, L_ld_next-L_pc")
        e(f"    s_addc_u32 s{sM0+1}, s{sM0+1}, -1")
        e(f"    s_lshl_b32 s{sTa}, s{sW}, 13")
        e(f"    v_lshl_add_u32 v{vT1}, v{vL}, 7, s{sTa}")
        e(f"    v_min_u32 v{vT1}, L_done-L_ld_next, v{vT1}")
        e(f"    global_load_dword v25, v{vT1}, s[{sM0}:{sM0+1}]")
    ts(3)
    e("L_item:")
    L.extend(item_params(sKey1))
    e(f"    s_lshl_b32 s{sTb}, s{sT}, 5")
    e(f"    s_sub_u32 s{sNv}, s{sE}, s{sTb}")
    e(f"    s_add_u32 s{sNv}, s{sNv}, 32")
    for i in range(16):
        e(f"    v_mov_b32 v{vO+i}, 0")
    e(f"    v_mov_b32 v{vM}, {NEG:#x}")
    e(f"    v_mov_b32 v{vLs}, 0")
    e(f"    s_mov_b32 s{sGi}, 0")
    e(f"    s_sub_u32 s{sLast}, s{sG}, 1")
    e("    s_waitcnt lgkmcnt(0)")

    e("    .p2align 6")
    e("L_loop:")
    e(f"    s_cmp_lt_u32 s{sGi}, s{sRe}")
    e(f"    s_addc_u32 s{sNt}, s{sBa}, 0")
    e(f"    s_lshl_b32 s{sNu}, s{sNt}, 1")
    if skip:
        e(f"    s_cmp_eq_u32 s{sGi}, s{sLast}")
        e(f"    s_cselect_b32 s{sTa}, s{sNv}, 32")
        e(f"    s_cmp_le_u32 s{sTa}, 16")
        e(f"    s_subb_u32 s{sNu}, s{sNu}, 0")
    e(f"    s_add_u32 s{sEp}, s{sEp}, 1")
    e(f"    s_add_u32 s{sT0}, s{sSlot}, s{sRing}")
    e(f"    v_add_u32 v{vA[0]}, s{sT0}, v{vKrd}")
    for j in range(1, 8):
        e(f"    v_xor_b32 v{vA[j]}, {j<<5}, v{vA[0]}")
    e(f"    v_mov_b32 v{vMx+1}, s{sEp}")
    e(f"    v_mov_b32 v{vMx}, {NEG:#x}")
    e("    s_barrier")
    if diag:
        e(f"    s_cmp_lg_u32 s{sEp}, 1")
        e("    s_cbranch_scc1 L_nots5")
        ts(5)
        e("L_nots5:")
    e(f"    s_cmp_lg_u32 s{sTe}, 0")
    e("    s_cbranch_scc1 L_readq")
    e("L_noq:")
    e(f"    s_cmp_ge_u32 s{sW}, s{sNt}")
    e("    s_cbranch_scc1 L_pubmax")
    for j in range(8):
        e(f"    ds_read_b128 v[{vF+4*j}:{vF+4*j+3}], v{vA[j]}")
    for j in range(8):
        e(f"    s_waitcnt lgkmcnt({0 if diag else 7-j})")
        c = "0" if j == 0 else f"v[{vS}:{vS+15}]"
        e(f"    v_mfma_f32_32x32x16_bf16 v[{vS}:{vS+15}], v[{vF+4*j}:{vF+4*j+3}], v[{vQ+4*j}:{vQ+4*j+3}], {c}")
    e(f"    s_add_u32 s{sTa}, s{sW}, 1")
    e(f"    s_cmp_eq_u32 s{sTa}, s{sNt}")
    e(f"    s_cselect_b32 s{sTa}, s{sLast}, -1")
    e("    s_nop 6")
    e(f"    s_cmp_eq_u32 s{sGi}, s{sTa}")
    e("    s_cbranch_scc1 L_mask")
    e("L_nomask:")
    e(f"    v_max3_f32 v{vT0}, v{vS}, v{vS+1}, v{vS+2}")
    e(f"    v_max3_f32 v{vT1}, v{vS+3}, v{vS+4}, v{vS+5}")
    e(f"    v_max3_f32 v{vT2}, v{vS+6}, v{vS+7}, v{vS+8}")
    e(f"    v_max3_f32 v{vT3}, v{vS+9}, v{vS+10}, v{vS+11}")
    e(f"    v_max3_f32 v{vT0}, v{vT0}, v{vS+12}, v{vS+13}")
    e(f"    v_max3_f32 v{vT1}, v{vT1}, v{vS+14}, v{vS+15}")
    e(f"    v_max3_f32 v{vT0}, v{vT0}, v{vT2}, v{vT3}")
    e(f"    v_max_f32 v{vT0}, v{vT0}, v{vT1}")
    e(f"    v_mov_b32 v{vT1}, v{vT0}")
    e("    s_nop 1")
    e(f"    v_permlane32_swap_b32 v{vT0}, v{vT1}")
    e(f"    v_max_f32 v{vMx}, v{vT0}, v{vT1}")
    e("L_pubmax:")
    e(f"    ds_write_b64 v{vMw}, v[{vMx}:{vMx+1}]")
    e(f"    v_add_u32 v{vA[0]}, s{sSlot}, v{vVb}")
    e(f"    v_add_u32 v{vA[1]}, 0x10000, v{vA[0]}")
    e(f"    s_xor_b32 s{sSlot}, s{sSlot}, 16384")
    e("L_spin:")
    e(f"    ds_read_b128 v[{vX}:{vX+3}], v{vMr}")
    e(f"    ds_read_b128 v[{vX+4}:{vX+7}], v{vMr} offset:16")
    e("    s_waitcnt lgkmcnt(0)")
    e(f"    v_min3_u32 v{vT0}, v{vX+1}, v{vX+3}, v{vX+5}")
    e(f"    v_min_u32 v{vT0}, v{vT0}, v{vX+7}")
    e(f"    v_cmp_ne_u32 vcc, s{sEp}, v{vT0}")
    e(f"    v_max3_f32 v{vT0}, v{vX}, v{vX+2}, v{vM}")
    e("    s_and_b64 vcc, exec, vcc")
    e("    s_cbranch_vccnz L_spin")
    e(f"    v_max3_f32 v{vT0}, v{vT0}, v{vX+4}, v{vX+6}")
    e(f"    v_sub_f32 v{vT1}, v{vM}, v{vT0}")
    e(f"    v_mul_f32 v{vT2}, s{sC}, v{vT0}")
    e(f"    v_mul_f32 v{vT1}, s{sC}, v{vT1}")
    e(f"    v_mov_b32 v{vM}, v{vT0}")
    e(f"    v_exp_f32 v{vAl}, v{vT1}")
    e(f"    s_cmp_ge_u32 s{sW}, s{sNt}")
    e("    s_cbranch_scc1 L_notile")
    for i in range(16):
        e(f"    v_fma_f32 v{vS+i}, v{vS+i}, s{sC}, -v{vT2}")
    for i in range(8):
        e(f"    v_exp_f32 v{vS+i}, v{vS+i}")
    for i in range(8, 16):
        e(f"    v_exp_f32 v{vS+i}, v{vS+i}")
        if i % 2 == 1:
            k = i - 9
            e(f"    v_cvt_pk_bf16_f32 v{vP_+k//2}, v{vS+k}, v{vS+k+1}")
    e(f"    ds_write_b128 v{vPw}, v[{vP_}:{vP_+3}]")
    for i in range(4, 8):
        e(f"    v_cvt_pk_bf16_f32 v{vP_+i}, v{vS+2*i}, v{vS+2*i+1}")
    e(f"    ds_write_b128 v{vPw}, v[{vP_+4}:{vP_+7}] offset:1024")
    for i in range(4):
        e(f"    v_pk_add_f32 v[{vS+2*i}:{vS+2*i+1}], v[{vS+2*i}:{vS+2*i+1}], v[{vS+8+2*i}:{vS+8+2*i+1}]")
    for i in range(2):
        e(f"    v_pk_add_f32 v[{vS+2*i}:{vS+2*i+1}], v[{vS+2*i}:{vS+2*i+1}], v[{vS+4+2*i}:{vS+4+2*i+1}]")
    e(f"    v_pk_add_f32 v[{vS}:{vS+1}], v[{vS}:{vS+1}], v[{vS+2}:{vS+3}]")
    e(f"    v_fma_f32 v{vLs}, v{vLs}, v{vAl}, v{vS}")
    e(f"    v_add_f32 v{vLs}, v{vLs}, v{vS+1}")
    e("L_scale:")
    e(f"    v_mov_b32 v{vT0}, v{vLs}")
    e(f"    v_mov_b32 v{vT1}, v{vLs}")
    for i in range(8):
        e(f"    v_pk_mul_f32 v[{vO+2*i}:{vO+2*i+1}], v[{vO+2*i}:{vO+2*i+1}], v[{vAl}:{vAl+1}] op_sel_hi:[1,0]")
    e(f"    v_permlane32_swap_b32 v{vT0}, v{vT1}")
    e(f"    v_add_f32 v{vT0}, v{vT0}, v{vT1}")
    e(f"    ds_write_b32 v{vLw}, v{vT0}")
    e("    s_waitcnt lgkmcnt(0)")
    e("    s_barrier")
    units = [(t, m) for t in range(4) for m in range(2)]

    def p_read(u):
        t, m = units[u]
        p = vPa + 4 * u
        return f"    ds_read_b128 v[{p}:{p+3}], v{vPr} offset:{t*2048+m*1024}"

    def v_reads(u):
        t, m = units[u]
        a = vF + 4 * u
        off = (t & 1) * 32768 + m * 4096
        return [f"    ds_read_b64_tr_b16 v[{a}:{a+1}], v{vA[t>>1]} offset:{off}",
                f"    ds_read_b64_tr_b16 v[{a+2}:{a+3}], v{vA[t>>1]} offset:{off+2048}"]

    def pv_mfma(u):
        return f"    v_mfma_f32_32x32x16_bf16 v[{vO}:{vO+15}], v[{vF+4*u}:{vF+4*u+3}], v[{vPa+4*u}:{vPa+4*u+3}], v[{vO}:{vO+15}]"

    e(f"    ds_read_b128 v[{vX}:{vX+3}], v{vLr}")
    if vsplit:
        e(f"    s_cmp_eq_u32 s{sGi}, s{sLast}")
        e(f"    s_cselect_b32 s{sTa}, s{sItem}, 0")
        e(f"    s_cmp_lg_u32 s{sTa}, 0")
        e("    s_cbranch_scc1 L_pvlast")
    for u in range(4):
        e(p_read(u))
        L.extend(v_reads(u))
    for u in range(8):
        e(f"    s_waitcnt lgkmcnt({min(9, 3*(7-u))})")
        e(pv_mfma(u))
        if u + 4 < 8:
            e(p_read(u + 4))
            L.extend(v_reads(u + 4))
        if (skip or u % 2 == 1) and u < 7:
            e(f"    s_cmp_eq_u32 s{sNu}, {u+1}")
            e("    s_cbranch_scc1 L_pvdone")
    e("L_pvdone:")
    e(f"    s_cmp_eq_u32 s{sGi}, s{sLast}")
    e("    s_cbranch_scc1 L_final")
    e(f"    s_add_u32 s{sGi}, s{sGi}, 1")
    e("    s_waitcnt lgkmcnt(0)")
    e("    s_branch L_loop")

    if vsplit:
        e("L_pvlast:")
        L.extend(v_reads(0) + v_reads(1))
        for u in range(8):
            e(p_read(u))
        for t in range(4):
            if t:
                e("    s_barrier")
                L.extend(v_reads(2 * t) + v_reads(2 * t + 1))
                e("    s_waitcnt lgkmcnt(2)")
            else:
                e("    s_waitcnt lgkmcnt(7)")
            e(pv_mfma(2 * t))
            if skip:
                e(f"    s_cmp_eq_u32 s{sNu}, {2*t+1}")
                e("    s_cbranch_scc1 L_final")
            e(f"    s_waitcnt lgkmcnt({6 if t == 0 else 0})")
            e(pv_mfma(2 * t + 1))
            if t < 3:
                e(f"    s_cmp_eq_u32 s{sNt}, {t+1}")
                e("    s_cbranch_scc1 L_final")
        e("    s_nop 0")
        e("    s_branch L_final")

    e("L_notile:")
    e(f"    v_mul_f32 v{vLs}, v{vLs}, v{vAl}")
    e("    s_branch L_scale")

    e("L_readq:")
    e(f"    v_add_u32 v{vX}, s{sTe}, v{vKrd}")
    for j in range(1, 8):
        e(f"    v_xor_b32 v{vX+j}, {j<<5}, v{vX}")
    for j in range(8):
        e(f"    ds_read_b128 v[{vQ+4*j}:{vQ+4*j+3}], v{vX+j}")
    e(f"    s_mov_b32 s{sTe}, 0")
    e("    s_waitcnt lgkmcnt(0)")
    e("    s_branch L_noq")

    e("L_mask:")
    e(f"    v_sub_u32 v{vT0}, s{sNv}, v{vHH}")
    e(f"    v_mov_b32 v{vT1}, {NEG:#x}")
    for v in range(16):
        t = 16 * (v >> 3) + 2 * ((v >> 2) & 1) + 4 * (v & 3)
        e(f"    v_cmp_lt_i32 vcc, {t}, v{vT0}")
        e("    s_nop 1")
        e(f"    v_cndmask_b32 v{vS+v}, v{vT1}, v{vS+v}, vcc")
    e("    s_branch L_nomask")

    e("L_final:")
    if diag:
        e(f"    s_cmp_eq_u32 s{sItem}, 0")
        e("    s_cbranch_scc1 L_nots6")
        ts(6)
        e("L_nots6:")
    e(f"    v_add_f32 v{vT0}, v{vX}, v{vX+1}")
    e(f"    v_add_f32 v{vT1}, v{vX+2}, v{vX+3}")
    e(f"    v_add_f32 v{vT0}, v{vT0}, v{vT1}")
    e(f"    v_rcp_f32 v{vAl}, v{vT0}")
    e(f"    s_xor_b32 s{sTa}, s{sSlot}, 16384")
    e(f"    s_add_u32 s{sTa}, s{sTa}, s{sRing}")
    e(f"    v_add_u32 v{vA[2]}, s{sTa}, v{vTw}")
    e(f"    v_xor_b32 v{vA[3]}, 32, v{vA[2]}")
    e(f"    v_add_u32 v{vA[4]}, s{sTa}, v{vTr}")
    e(f"    s_add_u32 s{sTa}, s{sQo1}, 4096")
    for i in range(8):
        e(f"    v_pk_mul_f32 v[{vO+2*i}:{vO+2*i+1}], v[{vO+2*i}:{vO+2*i+1}], v[{vAl}:{vAl+1}] op_sel_hi:[1,0]")
    for i in range(8):
        e(f"    v_cvt_pk_bf16_f32 v{vP_+i}, v{vO+2*i}, v{vO+2*i+1}")
    e(f"    v_permlane32_swap_b32 v{vP_}, v{vP_+2}")
    e(f"    v_permlane32_swap_b32 v{vP_+1}, v{vP_+3}")
    e(f"    v_permlane32_swap_b32 v{vP_+4}, v{vP_+6}")
    e(f"    v_permlane32_swap_b32 v{vP_+5}, v{vP_+7}")
    e(f"    ds_write_b128 v{vA[2]}, v[{vP_}:{vP_+3}]")
    e(f"    ds_write_b128 v{vA[3]}, v[{vP_+4}:{vP_+7}]")
    e(f"    ds_read_b128 v[{vS}:{vS+3}], v{vA[4]}")
    e(f"    ds_read_b128 v[{vS+4}:{vS+7}], v{vA[4]} offset:1024")
    e(f"    s_waitcnt lgkmcnt({0 if diag else 1})")
    e(f"    buffer_store_dwordx4 v[{vS}:{vS+3}], v{vOo}, s[{OS}:{OS+3}], s{sQo1} offen {opol}")
    e(f"    s_waitcnt lgkmcnt(0)")
    e(f"    buffer_store_dwordx4 v[{vS+4}:{vS+7}], v{vOo}, s[{OS}:{OS+3}], s{sTa} offen {opol}")
    e(f"    s_cmp_lg_u32 s{sItem}, 0")
    e("    s_cbranch_scc1 L_end")
    e(f"    s_mov_b32 s{sItem}, 1")
    e(f"    s_mov_b32 s{sC}, s{sC2}")
    e(f"    s_mov_b32 s{sQo1}, s{sQo2}")
    e(f"    s_mov_b32 s{sKey1}, s{sKey2}")
    e(f"    s_mov_b32 s{sTe}, {QB+8192}")
    e("    s_branch L_item")
    e("L_end:")
    if diag:
        ts(4)
        e("    s_waitcnt vmcnt(0)")
        ts(7)
        diag_store("c")
    e("L_done:")
    e("    s_endpgm")
    e('.section .rodata,"a"')
    e(".p2align 6")
    e(f".amdhsa_kernel {NAME}_kernel")
    e(f"  .amdhsa_next_free_vgpr {NV}")
    e("  .amdhsa_next_free_sgpr 102")
    e(f"  .amdhsa_accum_offset {NV}")
    e("  .amdhsa_group_segment_fixed_size 0")
    e("  .amdhsa_kernarg_size 64")
    e("  .amdhsa_user_sgpr_count 2")
    e("  .amdhsa_user_sgpr_kernarg_segment_ptr 1")
    e("  .amdhsa_system_sgpr_workgroup_id_x 1")
    e("  .amdhsa_float_denorm_mode_32 3")
    e(".end_amdhsa_kernel")
    return "\n".join(L) + "\n"


if __name__ == "__main__":
    ap = argparse.ArgumentParser()
    ap.add_argument("-o", default="/dev/stdout")
    ap.add_argument("--W", type=float, default=21)
    ap.add_argument("--Wtail", type=int, default=32)
    ap.add_argument("--tailg", type=int, default=0)
    ap.add_argument("--pol", default="nt")
    ap.add_argument("--opol", default="")
    ap.add_argument("--prio", type=int, default=3)
    ap.add_argument("--cpre", type=int, default=0)
    ap.add_argument("--enc", default=None)
    ap.add_argument("--nospec", action="store_true")
    ap.add_argument("--vsplit", action="store_true")
    ap.add_argument("--noskip", action="store_true")
    ap.add_argument("--perm", default=None)
    ap.add_argument("--diag", action="store_true")
    a = ap.parse_args()
    open(a.o, "w").write(gen(W=a.W, pol=a.pol, diag=a.diag, opol=a.opol, Wtail=a.Wtail, tailg=a.tailg,
                             prio=a.prio, cpre=a.cpre, enc=None if a.enc is None else a.enc.split(","),
                             spec=not a.nospec, vsplit=a.vsplit, skip=not a.noskip,
                             perm=None if a.perm is None else [int(x) for x in a.perm.split(',')]))
```

```python
import argparse
from gen import HEADER, NAME, f2u


def gen(W=21, pol="nt", diag=False, opol="", Wtail=32, tailg=0, prio=3, cpre=0, enc=None, spec=True,
        vsplit=False, skip=True, perm=None, late1=None, lateg=0, fb=None, th=None, soff=None, fb6=False):
    L = []
    e = L.append
    QB = 131072
    PB = QB + 16384
    MX = PB + 8192
    LB = MX + 1024
    LDS = LB + 512
    assert 2 <= W <= 25
    CSC = f2u((128 ** -0.5) * 1.4426950408889634)
    NEG = f2u(-1e30)

    sQ, sK, sV, sBT = 4, 6, 8, 10
    sCL, sOUT = 12, 14
    sDBG, sWS = 16, 18
    KS, OS = 20, 32
    sKh, sVh = 36, 38
    sWv, sP, sH = 40, 41, 42
    sB1, sB2, sKey1, sKey2 = 43, 44, 45, 46
    sT, sG, sBa, sRe, sE = 47, 48, 49, 50, 51
    sBo, sRem, sGl = 52, 53, 54
    sSlot, sGi, sNt = 55, 56, 57
    sT0, sTa, sTb, sTc, sTd, sTe = 58, 59, 60, 61, 62, 63
    sM0, sM1 = 64, 66
    sW, sKc = 68, 69
    sTS = 70
    sQo1, sQo2 = 86, 87
    sItem = 100
    sC, sC2, sNv, sEp, sRing, sLast, sNu = 20, 21, 22, 24, 26, 27, 23
    sNx = list(range(24, 32))
    sPg = list(range(88, 96))
    sNr = [64, 65, 66, 67, 96, 97, 98, 99]
    sG1g, sG2g = 32, 33
    LENS = [2048 - ((i * 2654435761) % 1024) for i in range(1, 17)]
    ORDER = sorted(range(16), key=lambda b: (-LENS[b], -b))
    GU1 = sum(ORDER[p] << (4 * p) for p in range(8))
    GU2 = sum(ORDER[15 - p] << (4 * p) for p in range(8))

    vL = 1
    vKo = [2, 3, 4, 5]
    vVo = [6, 7, 8, 9]
    vQo = [12, 13, 14, 15]
    vFw, vFr, vFv, vFd = 16, 17, 18, 19
    sOff, sLvl = 34, 35
    vKrd, vVb, vPr, vPw, vMw, vMr, vLw, vLr, vOo = 2, 3, 4, 5, 6, 7, 8, 9, 10
    vHH = 11
    vA = list(range(12, 20))
    vM, vLs = 20, 21
    vMx = 22
    vAl = 24
    vTw, vTr = 26, 27
    vT0, vT1, vT2, vT3 = 28, 29, 30, 31
    vS = 32
    vP_ = 48
    vX = 56
    vQ = 64
    vF = 96
    vPa = 128
    vO = 160
    NV = 176
    vR = 176
    if late1 is not None:
        NV = 184
    sQoA, sLg = 28, 29

    def ts(i):
        if diag:
            e(f"    s_memrealtime s[{sTS+2*i}:{sTS+2*i+1}]")

    def hold(role):
        if enc[0] != role:
            return
        idx, mult = int(enc[1]), int(enc[2])
        if len(enc) > 3:
            e(f"    s_and_b32 s{sT0}, s2, {int(enc[3])}")
            e(f"    s_cmp_lg_u32 s{sT0}, {int(enc[4])}")
            e("    s_cbranch_scc1 L_done")
        e("    s_waitcnt vmcnt(0) lgkmcnt(0)")
        e(f"    s_sub_u32 s{sT0}, s{sTS+2*idx}, s{sTS}")
        if mult < 0:
            e(f"    s_sub_u32 s{sT0}, 8000, s{sT0}")
        e(f"    s_min_u32 s{sT0}, s{sT0}, 10000")
        e(f"    s_mul_i32 s{sT0}, s{sT0}, {abs(mult)}")
        e(f"    s_add_u32 s{sT0}, s{sT0}, 10000")
        e(f"L_hold{role}:")
        e("    s_sleep 8")
        e("    s_memrealtime s[88:89]")
        e("    s_waitcnt lgkmcnt(0)")
        e(f"    s_sub_u32 s88, s88, s{sTS}")
        e(f"    s_cmp_lt_u32 s88, s{sT0}")
        e(f"    s_cbranch_scc1 L_hold{role}")

    def diag_store(role):
        if enc and role == "c" and not fb:
            for i in range(12):
                e(f"    v_mov_b32 v{vS+i}, s{4+i}")
            e(f"    v_mov_b32 v{vT0}, 0")
            for i in range(3):
                e(f"    global_store_dwordx4 v{vT0}, v[{vS+4*i}:{vS+4*i+3}], s[{sDBG}:{sDBG+1}] offset:{16*i}")
        if enc:
            hold(role)
            return
        e("    s_getreg_b32 s88, hwreg(HW_REG_XCC_ID)")
        e("    s_getreg_b32 s89, hwreg(HW_REG_HW_ID)")
        e("    s_waitcnt lgkmcnt(0)")
        e(f"    s_mul_i32 s{sT0}, s2, 5")
        e(f"    s_add_u32 s{sT0}, s{sT0}, s{sWv}")
        e(f"    s_lshl_b32 s{sT0}, s{sT0}, 7")
        e(f"    v_mov_b32 v{vT0}, s{sT0}")
        for i in range(4):
            for j in range(4):
                e(f"    v_mov_b32 v{vS+j}, s{sTS+4*i+j}")
            e(f"    global_store_dwordx4 v{vT0}, v[{vS}:{vS+3}], s[{sWS}:{sWS+1}] offset:{16*i}")
            e("    s_nop 1")
        e(f"    v_mov_b32 v{vS}, s88")
        e(f"    v_mov_b32 v{vS+1}, s89")
        e(f"    v_mov_b32 v{vS+2}, s{sG}")
        e(f"    v_mov_b32 v{vS+3}, s{sB1}")
        e(f"    global_store_dwordx4 v{vT0}, v[{vS}:{vS+3}], s[{sWS}:{sWS+1}] offset:64")

    def q_dma():
        out = []
        for item in range(2):
            so = sQo1 if item == 0 else sQo2
            for half in range(2):
                out.append(f"    s_mov_b32 m0, {QB + item*8192 + half*4096}")
                out.append(f"    s_add_u32 s{sTd}, s{so}, {half*4096}")
                for i in range(4):
                    off = f" offset:{i*1024}" if i else ""
                    out.append(f"    buffer_load_dwordx4 v{vQo[i]}, s[{KS}:{KS+3}], s{sTd} offen{off} {pol} lds")
        return out

    def q_offsets(b1, b2):
        return [f"    s_lshl_b32 s{sTd}, s{sH}, 13",
                f"    s_lshl_b32 s{sQo1}, s{b1}, 18",
                f"    s_lshl_b32 s{sQo2}, s{b2}, 18",
                f"    s_add_u32 s{sQo1}, s{sQo1}, s{sTd}",
                f"    s_add_u32 s{sQo2}, s{sQo2}, s{sTd}"]

    def item_params(key):
        return [f"    s_lshr_b32 s{sG}, s{key}, 11",
                f"    s_lshr_b32 s{sT}, s{key}, 9",
                f"    s_lshr_b32 s{sE}, s{key}, 4",
                f"    s_add_u32 s{sG}, s{sG}, 1",
                f"    s_add_u32 s{sT}, s{sT}, 1",
                f"    s_add_u32 s{sE}, s{sE}, 1",
                f"    s_lshl_b32 s{sRe}, s{sG}, 1",
                f"    s_cmp_ge_u32 s{sT}, s{sRe}",
                f"    s_addc_u32 s{sBa}, 1, 0",
                f"    s_add_u32 s{sRe}, s{sRe}, s{sG}",
                f"    s_cmp_ge_u32 s{sT}, s{sRe}",
                f"    s_addc_u32 s{sBa}, s{sBa}, 0",
                f"    s_add_u32 s{sRe}, s{sRe}, s{sG}",
                f"    s_cmp_ge_u32 s{sT}, s{sRe}",
                f"    s_addc_u32 s{sBa}, s{sBa}, 0",
                f"    s_mul_i32 s{sRe}, s{sBa}, s{sG}",
                f"    s_sub_u32 s{sRe}, s{sT}, s{sRe}"]

    def cl_loads():
        return [f"    global_load_dword v{vS}, v{vX+0}, s[{sCL}:{sCL+1}]",
                f"    global_load_dwordx4 v[{vS+4}:{vS+7}], v{vX+2}, s[{sCL}:{sCL+1}]"]

    def sort_consts():
        return [f"    v_lshrrev_b32 v{vX+6}, 2, v{vL}",
                f"    v_lshlrev_b32 v{vX+7}, 2, v{vX+1}",
                f"    s_sub_u32 s{sTe}, 15, s{sP}",
                f"    s_movk_i32 s{sT0}, 2047"]

    def sort_code():
        out = [f"    v_add_u32 v{vS+1}, -1, v{vS}"]
        for j in range(4):
            out.append(f"    v_add_u32 v{vS+4+j}, -1, v{vS+4+j}")
        out.append(f"    v_min_u32 v{vS+1}, s{sT0}, v{vS+1}")
        for j in range(4):
            out.append(f"    v_min_u32 v{vS+4+j}, s{sT0}, v{vS+4+j}")
        out.append(f"    v_lshl_or_b32 v{vS+1}, v{vS+1}, 4, v{vX+6}")
        out.append(f"    v_sub_u32 v{vS+2}, v{vS+1}, v{vX+7}")
        for j in range(4):
            out.append(f"    v_lshl_or_b32 v{vS+4+j}, v{vS+4+j}, 4, {j}")
        for j in range(4):
            out.append(f"    v_sub_u32 v{vS+4+j}, v{vS+2}, v{vS+4+j}")
        for j in range(4):
            out.append(f"    v_lshrrev_b32 v{vS+4+j}, 31, v{vS+4+j}")
        out += [f"    v_add_u32 v{vS+4}, v{vS+4}, v{vS+5}",
                f"    v_add3_u32 v{vS+4}, v{vS+4}, v{vS+6}, v{vS+7}",
                "    s_nop 1",
                f"    v_add_u32_dpp v{vS+5}, v{vS+4}, v{vS+4} quad_perm:[1,0,3,2] row_mask:0xf bank_mask:0xf",
                "    s_nop 1",
                f"    v_add_u32_dpp v{vS+4}, v{vS+5}, v{vS+5} quad_perm:[2,3,0,1] row_mask:0xf bank_mask:0xf",
                f"    v_cmp_eq_u32 s[{sM0}:{sM0+1}], s{sP}, v{vS+4}",
                f"    v_cmp_eq_u32 s[{sM1}:{sM1+1}], s{sTe}, v{vS+4}",
                f"    s_ff1_i32_b64 s{sTa}, s[{sM0}:{sM0+1}]",
                f"    s_ff1_i32_b64 s{sTb}, s[{sM1}:{sM1+1}]",
                f"    v_readlane_b32 s{sKey1}, v{vS+1}, s{sTa}",
                f"    v_readlane_b32 s{sKey2}, v{vS+1}, s{sTb}",
                f"    s_lshr_b32 s{sB1}, s{sTa}, 2",
                f"    s_lshr_b32 s{sB2}, s{sTb}, 2"]
        return out

    e(HEADER.rstrip())
    e(f"; @launch grid=(256,1,1) block=(320,1,1) lds={LDS}")
    e('.amdgcn_target "amdgcn-amd-amdhsa--gfx950"')
    e(".text")
    e(f".globl {NAME}_kernel")
    e(".p2align 8")
    e(f".type {NAME}_kernel,@function")
    e(f"{NAME}_kernel:")
    e("    s_cmp_ge_u32 s2, 256")
    e("    s_cbranch_scc1 L_done")
    if diag:
        for i in range(16):
            e(f"    s_mov_b32 s{sTS+i}, 0")
    ts(0)
    e(f"    s_load_dwordx4 s[12:15], s[0:1], 32")
    e(f"    s_load_dwordx8 s[4:11], s[0:1], 0")
    if diag:
        e(f"    s_load_dwordx4 s[16:19], s[0:1], 48")
    elif fb:
        e(f"    s_load_dwordx2 s[16:17], s[0:1], 48")
    e(f"    v_lshrrev_b32 v{vT0}, 6, v0")
    e(f"    v_and_b32 v{vL}, 63, v0")
    e(f"    v_readfirstlane_b32 s{sWv}, v{vT0}")
    e(f"    s_and_b32 s{sP}, s2, 7")
    if perm:
        assert sorted(perm) == list(range(8))
        PK = sum(perm[x] << (4 * x) for x in range(8))
        e(f"    s_lshl_b32 s{sP}, s{sP}, 2")
        e(f"    s_lshr_b32 s{sP}, {PK:#x}, s{sP}")
        e(f"    s_and_b32 s{sP}, s{sP}, 7")
    e(f"    s_lshr_b32 s{sH}, s2, 3")
    e(f"    v_and_b32 v{vX+0}, 60, v{vL}")
    e(f"    v_and_b32 v{vX+1}, 3, v{vL}")
    e(f"    v_lshlrev_b32 v{vX+2}, 4, v{vX+1}")
    e(f"    s_cmp_lg_u32 s{sWv}, 0")
    e("    s_cbranch_scc1 L_consumer")

    e(f"    v_lshrrev_b32 v{vT0}, 4, v{vL}")
    e(f"    v_and_b32 v{vT1}, 15, v{vL}")
    e(f"    v_lshlrev_b32 v{vT2}, 2, v{vT0}")
    e(f"    v_xor_b32 v{vT1}, v{vT1}, v{vT2}")
    e(f"    v_lshlrev_b32 v{vT1}, 4, v{vT1}")
    e(f"    v_lshl_add_u32 v{vQo[0]}, v{vT0}, 8, v{vT1}")
    for i in range(1, 4):
        e(f"    v_xor_b32 v{vQo[i]}, {i*16}, v{vQo[0]}")
    e(f"    s_mov_b32 s{KS+2}, 0x400000")
    e(f"    s_mov_b32 s{KS+3}, 0x20000")
    if spec:
        e(f"    s_lshl_b32 s{sT0}, s{sP}, 2")
        e(f"    s_lshr_b32 s{sG1g}, {GU1:#x}, s{sT0}")
        e(f"    s_lshr_b32 s{sG2g}, {GU2:#x}, s{sT0}")
        e(f"    s_and_b32 s{sG1g}, s{sG1g}, 15")
        e(f"    s_and_b32 s{sG2g}, s{sG2g}, 15")
        L.extend(q_offsets(sG1g, sG2g))
        e(f"    s_lshl_b32 s{sBo}, s{sG1g}, 9")
    else:
        e(f"    v_lshlrev_b32 v{vX+3}, 7, v{vL}")
    e("    s_waitcnt lgkmcnt(0)")
    ts(1)
    L.extend(cl_loads())
    e(f"    s_mov_b32 s{KS}, s{sQ}")
    e(f"    s_mov_b32 s{KS+1}, s{sQ+1}")
    if spec:
        e(f"    s_load_dwordx8 s[{sNx[0]}:{sNx[7]}], s[{sBT}:{sBT+1}], s{sBo}")
        L.extend(q_dma())
    else:
        e(f"    global_load_dword v{vS+8}, v{vX+3}, s[{sBT}:{sBT+1}]")
    if prio:
        e(f"    s_setprio {prio}")
    e(f"    v_lshl_add_u32 v{vVo[0]}, v{vT0}, 15, v{vT1}")
    for i in range(1, 4):
        e(f"    v_add_u32 v{vVo[i]}, {i*(8192-1024)}, v{vVo[0]}")
    e(f"    v_mov_b32 v{vKo[0]}, v{vVo[0]}")
    for i in range(1, 4):
        e(f"    v_xor_b32 v{vKo[i]}, {i*16}, v{vVo[i]}")
    e(f"    s_lshl_b32 s{sT0}, s{sH}, 8")
    e(f"    s_add_u32 s{sKh}, s{sK}, s{sT0}")
    e(f"    s_addc_u32 s{sKh+1}, s{sK+1}, 0")
    e(f"    s_add_u32 s{sVh}, s{sV}, s{sT0}")
    e(f"    s_addc_u32 s{sVh+1}, s{sV+1}, 0")
    e(f"    s_mov_b32 s{sKc}, 0")
    e(f"    s_mov_b32 s{sGi}, 0")
    e(f"    s_mov_b32 s{sSlot}, 0")
    e(f"    s_mov_b32 s{sItem}, 0")
    if fb:
        e(f"    s_and_b32 s{sT0}, s2, 7")
        if soff:
            PO = sum(((x + 8) & 15) << (4 * i) for i, x in enumerate(soff))
            e(f"    s_lshl_b32 s{sOff}, s{sT0}, 2")
            e(f"    s_lshr_b32 s{sOff}, {PO:#x}, s{sOff}")
            e(f"    s_and_b32 s{sOff}, s{sOff}, 15")
            e(f"    s_sub_i32 s{sOff}, s{sOff}, 8")
        e(f"    s_lshl_b32 s{sT0}, s{sT0}, 5")
        e(f"    v_and_b32 v{vFr}, 31, v{vL}")
        e(f"    v_add_u32 v{vFr}, s{sT0}, v{vFr}")
        e(f"    s_add_u32 s{sT0}, s{sT0}, s{sH}")
        e(f"    v_mov_b32 v{vFw}, s{sT0}")
        e(f"    s_mov_b32 s{sLvl}, 16")
    L.extend(sort_consts())
    e(f"    s_waitcnt vmcnt({16 if spec else 1})")
    ts(2)
    L.extend(sort_code())
    if spec:
        e(f"    s_cmp_lg_u32 s{sB1}, s{sG1g}")
        e("    s_cbranch_scc1 L_ld_redo")
        e(f"    s_cmp_lg_u32 s{sB2}, s{sG2g}")
        e("    s_cbranch_scc1 L_ld_redo")
    else:
        e(f"    s_lshl_b32 s{sBo}, s{sB1}, 9")
        e(f"    s_load_dwordx8 s[{sNx[0]}:{sNx[7]}], s[{sBT}:{sBT+1}], s{sBo}")
        L.extend(q_offsets(sB1, sB2))
        L.extend(q_dma())
    e("L_ld_item:")
    L.extend(item_params(sKey1))
    e(f"    s_mov_b32 s{sRem}, s{sE}")
    e(f"    s_mov_b32 s{sGl}, s{sG}")
    if diag:
        e(f"    s_cmp_lg_u32 s{sItem}, 0")
        e("    s_cbranch_scc1 L_ld_go")
        ts(3)
    e("    s_branch L_ld_go")
    if spec:
        e("L_ld_redo:")
        e("    s_waitcnt vmcnt(0) lgkmcnt(0)")
        e(f"    s_lshl_b32 s{sBo}, s{sB1}, 9")
        e(f"    s_load_dwordx8 s[{sNx[0]}:{sNx[7]}], s[{sBT}:{sBT+1}], s{sBo}")
        L.extend(q_offsets(sB1, sB2))
        L.extend(q_dma())
        e("    s_branch L_ld_item")

    def page_setup(isK, j):
        out = []
        if isK:
            out.append(f"    s_min_u32 s{sTa}, s{sNx[j]}, 0x803")
            out.append(f"    s_min_i32 s{sTb}, s{sRem}, 16")
            out.append(f"    s_lshl_b32 s{sPg[j]}, s{sTa}, 17")
            out.append(f"    s_max_i32 s{sTb}, s{sTb}, 0")
            out.append(f"    s_sub_i32 s{sRem}, s{sRem}, 16")
            out.append(f"    s_lshl_b32 s{sNr[j]}, s{sTb}, 13")
        elif j < 4:
            out.append(f"    s_add_u32 s{sTa}, s{sBo}, {8*j}")
            out.append(f"    s_min_u32 s{sTa}, s{sTa}, 8184")
            out.append(f"    s_load_dwordx2 s[{sNx[2*j]}:{sNx[2*j+1]}], s[{sBT}:{sBT+1}], s{sTa}")
        base = sKh if isK else sVh
        c = (j >> 1) * 32768 + (j & 1) * 4096 + (0 if isK else 8192)
        out.append(f"    s_add_u32 m0, s{sSlot}, {c}")
        out.append(f"    s_add_u32 s{KS}, s{base}, s{sPg[j]}")
        out.append(f"    s_addc_u32 s{KS+1}, s{base+1}, 0")
        out.append(f"    s_mov_b32 s{KS+2}, s{sNr[j]}")
        return out

    uid = [0]

    def prev_barrier():
        uid[0] += 1
        return [f"    s_cmp_eq_u32 s{sKc}, 0",
                f"    s_cbranch_scc1 L_nb{uid[0]}",
                "    s_barrier",
                f"L_nb{uid[0]}:"]

    def group_code(npg, Wn, last):
        out = []
        seq = [(True, j, i) for j in range(npg) for i in range(4)] + \
              [(False, j, i) for j in range(npg) for i in range(4)]
        x0 = 0
        if fb and not last:
            seq = [("st", 0, 1), ("ld", 0, 1)] + seq
            x0 = 2
        pend = [(x0 // 2, "prev"), (x0 + 4 * npg, "K")]
        if last:
            if vsplit:
                pend += [(4 * npg + min(8 * (t + 1), 4 * npg), "V") for t in range((npg + 1) // 2)]
            else:
                pend.append((8 * npg, "V"))
        for n, (isK, j, i) in enumerate(seq):
            if isK == "st":
                out.append(f"    global_store_byte v{vFw}, v{vFv}, s[{sDBG}:{sDBG+1}]")
                continue
            if isK == "ld":
                out.append(f"    global_load_ubyte v{vFd}, v{vFr}, s[{sDBG}:{sDBG+1}] sc1")
                continue
            if i == 0:
                ps = page_setup(isK, j)
                if last and not isK and j < 4:
                    ps = ps[3:]
                out += ps
            fr = Wn - int(Wn)
            wv = int(Wn) - 1 + (int((n + 1) * fr + 1e-9) - int(n * fr + 1e-9))
            out.append(f"    s_waitcnt vmcnt({wv})")
            while pend and n - pend[0][0] >= wv:
                out += prev_barrier() if pend[0][1] == "prev" else ["    s_barrier"]
                pend.pop(0)
            vo = vKo if isK else vVo
            off = f" offset:{i*1024}" if i else ""
            out.append(f"    buffer_load_dwordx4 v{vo[i]}, s[{KS}:{KS+3}], 0 offen{off} {pol} lds")
        if not last:
            for j in range(npg, 4):
                out += page_setup(False, j)[:3]
        for (pos, name) in pend:
            out.append(f"    s_waitcnt vmcnt({len(seq)-pos})")
            out += prev_barrier() if name == "prev" else ["    s_barrier"]
        if last:
            out.append("    s_branch L_ld_end" if diag else "    s_endpgm")
        else:
            out.append("    s_branch L_ld_next")
        return out

    e("L_ld_switch:")
    e(f"    s_mov_b32 s{sItem}, 1")
    e(f"    s_mov_b32 s{sGi}, 0")
    e(f"    s_mov_b32 s{sKey1}, s{sKey2}")
    e("    s_branch L_ld_item")
    e("    .p2align 6")
    e("L_ld_next:")
    e(f"    s_xor_b32 s{sSlot}, s{sSlot}, 16384")
    e(f"    s_add_u32 s{sKc}, s{sKc}, 1")
    e(f"    s_add_u32 s{sGi}, s{sGi}, 1")
    if fb:
        e(f"    v_cmp_le_u32 vcc, s{sKc}, v{vFd}")
        e(f"    s_bcnt1_i32_b32 s{sLvl}, vcc_lo")
        if soff:
            e(f"    s_add_i32 s{sLvl}, s{sLvl}, s{sOff}")
    e(f"    s_sub_u32 s{sGl}, s{sGl}, 1")
    e(f"    s_cmp_eq_u32 s{sGl}, 0")
    e("    s_cbranch_scc1 L_ld_switch")
    e("L_ld_go:")
    if fb:
        e(f"    s_add_u32 s{sTa}, s{sKc}, 1")
        e(f"    v_mov_b32 v{vFv}, s{sTa}")
    e(f"    s_cmp_lt_u32 s{sGi}, s{sRe}")
    e(f"    s_addc_u32 s{sNt}, s{sBa}, 0")
    e(f"    s_lshl3_add_u32 s{sBo}, s{sNt}, s{sBo}")
    e(f"    s_lshl_b32 s{sTa}, s{sB2}, 9")
    e(f"    s_cmp_eq_u32 s{sGl}, 1")
    e(f"    s_cselect_b32 s{sBo}, s{sTa}, s{sBo}")
    e(f"    s_cmp_eq_u32 s{sItem}, 0")
    e(f"    s_cselect_b32 s{sTa}, 64, s{sGl}")
    e(f"    s_lshl_b32 s{sNt}, s{sNt}, 1")
    if skip:
        e(f"    s_add_u32 s{sTb}, s{sRem}, 15")
        e(f"    s_lshr_b32 s{sTb}, s{sTb}, 4")
        e(f"    s_min_u32 s{sNt}, s{sNt}, s{sTb}")
    e("    s_waitcnt lgkmcnt(0)")
    e(f"    s_cmp_eq_u32 s{sTa}, 1")
    e("    s_cbranch_scc1 L_ld_last")
    NPS = (7, 6, 5, 4, 3, 2, 1) if skip else (6, 4, 2)
    if tailg:
        e(f"    s_cmp_le_u32 s{sTa}, {tailg+1}")
        e("    s_cbranch_scc1 L_ld_tail")
    e(f"    s_cmp_lg_u32 s{sNt}, 8")
    e("    s_cbranch_scc1 L_ld_small")
    def levels(npg, tag):
        assert len(th) == len(fb) - 1
        mid = len(fb) // 2
        for k in range(len(fb) - 1, mid, -1):
            e(f"    s_cmp_gt_i32 s{sLvl}, {th[k-1]}")
            e(f"    s_cbranch_scc1 L_{tag}{k}")
        for k in range(0, mid):
            e(f"    s_cmp_le_i32 s{sLvl}, {th[k]}")
            e(f"    s_cbranch_scc1 L_{tag}{k}")
        for k in [mid] + [x for x in range(len(fb)) if x != mid]:
            e(f"L_{tag}{k}:")
            L.extend(group_code(npg, fb[k], False))
    if fb:
        levels(8, "fa")
    else:
        L.extend(group_code(8, W, False))
    e("L_ld_small:")
    for npg in NPS:
        if npg != 6:
            e(f"    s_cmp_eq_u32 s{sNt}, {npg}")
            e(f"    s_cbranch_scc1 L_ld_mid{npg}")
    for npg in sorted(NPS, key=lambda x: (x != 6, -x)):
        e(f"L_ld_mid{npg}:")
        if fb and fb6 and npg == 6:
            levels(6, "fb")
        else:
            L.extend(group_code(npg, W, False))
    if tailg:
        e("L_ld_tail:")
        e(f"    s_cmp_eq_u32 s{sNt}, 6")
        e("    s_cbranch_scc1 L_ld_tail6")
        e(f"    s_cmp_lg_u32 s{sNt}, 8")
        e("    s_cbranch_scc1 L_ld_small")
        L.extend(group_code(8, min(Wtail, 32), False))
        e("L_ld_tail6:")
        L.extend(group_code(6, min(Wtail, 25), False))
    e("L_ld_last:")
    for npg in NPS:
        e(f"    s_cmp_eq_u32 s{sNt}, {npg}")
        e(f"    s_cbranch_scc1 L_ld_last{npg}")
    for npg in (8,) + NPS:
        e(f"L_ld_last{npg}:")
        L.extend(group_code(npg, min(Wtail, 63), True))
    if diag:
        e("L_ld_end:")
        ts(6)
        ts(7)
        diag_store("l")
        e("    s_endpgm")

    e("L_consumer:")
    e(f"    s_sub_u32 s{sW}, s{sWv}, 1")
    e(f"    v_and_b32 v{vT0}, 31, v{vL}")
    e(f"    v_lshrrev_b32 v{vHH}, 5, v{vL}")
    e(f"    v_bfe_u32 v{vT2}, v{vL}, 2, 2")
    L.extend(sort_consts())
    e("    s_waitcnt lgkmcnt(0)")
    ts(1)
    L.extend(cl_loads())
    e(f"    v_lshl_or_b32 v{vT1}, v{vX+1}, 2, v{vT2}")
    e(f"    v_xor_b32 v{vT1}, v{vT1}, v{vHH}")
    e(f"    v_lshlrev_b32 v{vT1}, 4, v{vT1}")
    e(f"    v_lshl_add_u32 v{vKrd}, v{vT0}, 8, v{vT1}")
    e(f"    s_lshl_b32 s{sRing}, s{sW}, 15")
    e(f"    v_lshlrev_b32 v{vT1}, 5, v{vT0}")
    e(f"    v_add_u32 v{vMr}, {MX}, v{vT1}")
    e(f"    s_lshl_b32 s{sTa}, s{sW}, 3")
    e(f"    v_add_u32 v{vMw}, s{sTa}, v{vMr}")
    e(f"    v_lshlrev_b32 v{vT1}, 4, v{vT0}")
    e(f"    v_add_u32 v{vLr}, {LB}, v{vT1}")
    e(f"    s_lshl_b32 s{sTa}, s{sW}, 2")
    e(f"    v_add_u32 v{vLw}, s{sTa}, v{vLr}")
    e(f"    v_bfe_u32 v{vT1}, v{vL}, 1, 2")
    e(f"    v_xor_b32 v{vT1}, v{vT1}, v{vHH}")
    e(f"    v_lshlrev_b32 v{vT1}, 4, v{vT1}")
    e(f"    v_lshl_add_u32 v{vTw}, v{vT0}, 6, v{vT1}")
    e(f"    v_bfe_u32 v{vT1}, v{vL}, 3, 2")
    e(f"    v_xor_b32 v{vT1}, v{vT1}, v{vL}")
    e(f"    v_lshlrev_b32 v{vTr}, 4, v{vT1}")
    e(f"    s_lshl_b32 s{sTa}, s{sW}, 6")
    e(f"    v_lshl_add_u32 v{vT1}, v{vX+6}, 8, v{vX+2}")
    e(f"    v_add_u32 v{vOo}, s{sTa}, v{vT1}")
    e(f"    v_lshl_add_u32 v{vT0}, v{vHH}, 2, v{vT2}")
    e(f"    v_lshlrev_b32 v{vT0}, 8, v{vT0}")
    e(f"    v_lshl_or_b32 v{vT0}, v{vT2}, 6, v{vT0}")
    e(f"    v_bfe_u32 v{vT1}, v{vL}, 4, 1")
    e(f"    v_lshl_or_b32 v{vT0}, v{vT1}, 5, v{vT0}")
    e(f"    v_lshl_or_b32 v{vT0}, v{vX+1}, 3, v{vT0}")
    e(f"    v_xor_b32 v{vT0}, s{sTa}, v{vT0}")
    e(f"    v_add_u32 v{vVb}, 8192, v{vT0}")
    e(f"    v_lshlrev_b32 v{vT1}, 4, v{vL}")
    e(f"    v_add_u32 v{vPr}, {PB}, v{vT1}")
    e(f"    s_lshl_b32 s{sTa}, s{sW}, 11")
    e(f"    v_add_u32 v{vPw}, s{sTa}, v{vPr}")
    e(f"    s_mov_b32 s{OS}, s{sOUT}")
    e(f"    s_mov_b32 s{OS+1}, s{sOUT+1}")
    e(f"    s_mov_b32 s{OS+2}, 0x400000")
    e(f"    s_mov_b32 s{OS+3}, 0x20000")
    e(f"    v_mov_b32 v{vMx}, 0")
    e(f"    v_mov_b32 v{vMx+1}, 0")
    e(f"    ds_write_b64 v{vMw}, v[{vMx}:{vMx+1}]")
    e(f"    s_waitcnt vmcnt(0)")
    ts(2)
    L.extend(sort_code())
    e(f"    v_readlane_b32 s{sTc}, v{vS}, s{sTa}")
    e(f"    v_readlane_b32 s{sTe}, v{vS}, s{sTb}")
    L.extend(q_offsets(sB1, sB2))
    e(f"    s_cmp_gt_i32 s{sTc}, 0")
    e(f"    s_cselect_b32 s{sC}, {CSC:#x}, 0")
    e(f"    s_cmp_gt_i32 s{sTe}, 0")
    e(f"    s_cselect_b32 s{sC2}, {CSC:#x}, 0")
    e(f"    s_mov_b32 s{sSlot}, 0")
    e(f"    s_mov_b32 s{sEp}, 0")
    e(f"    s_mov_b32 s{sItem}, 0")
    e(f"    s_mov_b32 s{sTe}, {QB}")
    if cpre:
        if cpre > 1:
            e(f"    s_cmp_ge_u32 s{sH}, {cpre-1}")
            e("    s_cbranch_scc1 L_nopc")
        e(f"    s_getpc_b64 s[{sM0}:{sM0+1}]")
        e("L_pc:")
        e(f"    s_add_u32 s{sM0}, s{sM0}, L_ld_next-L_pc")
        e(f"    s_addc_u32 s{sM0+1}, s{sM0+1}, -1")
        e(f"    s_lshl_b32 s{sTa}, s{sW}, 13")
        e(f"    v_lshl_add_u32 v{vT1}, v{vL}, 7, s{sTa}")
        e(f"    v_min_u32 v{vT1}, L_done-L_ld_next, v{vT1}")
        e(f"    global_load_dword v25, v{vT1}, s[{sM0}:{sM0+1}]")
        e("L_nopc:")
    ts(3)
    e("L_item:")
    L.extend(item_params(sKey1))
    e(f"    s_lshl_b32 s{sTb}, s{sT}, 5")
    e(f"    s_sub_u32 s{sNv}, s{sE}, s{sTb}")
    e(f"    s_add_u32 s{sNv}, s{sNv}, 32")
    for i in range(16):
        e(f"    v_mov_b32 v{vO+i}, 0")
    e(f"    v_mov_b32 v{vM}, {NEG:#x}")
    e(f"    v_mov_b32 v{vLs}, 0")
    e(f"    s_mov_b32 s{sGi}, 0")
    e(f"    s_sub_u32 s{sLast}, s{sG}, 1")
    if late1 is not None:
        e(f"    s_sub_i32 s{sLg}, s{sLast}, {max(lateg, 0)}")
        e(f"    s_max_i32 s{sLg}, s{sLg}, 0")
        e(f"    s_cmp_eq_u32 s{sItem}, 0")
        e(f"    s_cselect_b32 s{sLg}, -1, s{sLg}")
    e("    s_waitcnt lgkmcnt(0)")

    e("    .p2align 6")
    e("L_loop:")
    e(f"    s_cmp_lt_u32 s{sGi}, s{sRe}")
    e(f"    s_addc_u32 s{sNt}, s{sBa}, 0")
    e(f"    s_lshl_b32 s{sNu}, s{sNt}, 1")
    if skip:
        e(f"    s_cmp_eq_u32 s{sGi}, s{sLast}")
        e(f"    s_cselect_b32 s{sTa}, s{sNv}, 32")
        e(f"    s_cmp_le_u32 s{sTa}, 16")
        e(f"    s_subb_u32 s{sNu}, s{sNu}, 0")
    e(f"    s_add_u32 s{sEp}, s{sEp}, 1")
    e(f"    s_add_u32 s{sT0}, s{sSlot}, s{sRing}")
    e(f"    v_add_u32 v{vA[0]}, s{sT0}, v{vKrd}")
    for j in range(1, 8):
        e(f"    v_xor_b32 v{vA[j]}, {j<<5}, v{vA[0]}")
    e(f"    v_mov_b32 v{vMx+1}, s{sEp}")
    e(f"    v_mov_b32 v{vMx}, {NEG:#x}")
    e("    s_barrier")
    if diag:
        e(f"    s_cmp_lg_u32 s{sEp}, 1")
        e("    s_cbranch_scc1 L_nots5")
        ts(5)
        e("L_nots5:")
    if late1 is not None and lateg >= 0:
        e(f"    s_cmp_eq_u32 s{sGi}, s{sLg}")
        e("    s_cbranch_scc1 L_late")
        e("L_nolate:")
    e(f"    s_cmp_lg_u32 s{sTe}, 0")
    e("    s_cbranch_scc1 L_readq")
    e("L_noq:")
    e(f"    s_cmp_ge_u32 s{sW}, s{sNt}")
    e("    s_cbranch_scc1 L_pubmax")
    for j in range(8):
        e(f"    ds_read_b128 v[{vF+4*j}:{vF+4*j+3}], v{vA[j]}")
    for j in range(8):
        e(f"    s_waitcnt lgkmcnt({0 if diag else 7-j})")
        c = "0" if j == 0 else f"v[{vS}:{vS+15}]"
        e(f"    v_mfma_f32_32x32x16_bf16 v[{vS}:{vS+15}], v[{vF+4*j}:{vF+4*j+3}], v[{vQ+4*j}:{vQ+4*j+3}], {c}")
    e(f"    s_add_u32 s{sTa}, s{sW}, 1")
    e(f"    s_cmp_eq_u32 s{sTa}, s{sNt}")
    e(f"    s_cselect_b32 s{sTa}, s{sLast}, -1")
    e("    s_nop 6")
    e(f"    s_cmp_eq_u32 s{sGi}, s{sTa}")
    e("    s_cbranch_scc1 L_mask")
    e("L_nomask:")
    e(f"    v_max3_f32 v{vT0}, v{vS}, v{vS+1}, v{vS+2}")
    e(f"    v_max3_f32 v{vT1}, v{vS+3}, v{vS+4}, v{vS+5}")
    e(f"    v_max3_f32 v{vT2}, v{vS+6}, v{vS+7}, v{vS+8}")
    e(f"    v_max3_f32 v{vT3}, v{vS+9}, v{vS+10}, v{vS+11}")
    e(f"    v_max3_f32 v{vT0}, v{vT0}, v{vS+12}, v{vS+13}")
    e(f"    v_max3_f32 v{vT1}, v{vT1}, v{vS+14}, v{vS+15}")
    e(f"    v_max3_f32 v{vT0}, v{vT0}, v{vT2}, v{vT3}")
    e(f"    v_max_f32 v{vT0}, v{vT0}, v{vT1}")
    e(f"    v_mov_b32 v{vT1}, v{vT0}")
    e("    s_nop 1")
    e(f"    v_permlane32_swap_b32 v{vT0}, v{vT1}")
    e(f"    v_max_f32 v{vMx}, v{vT0}, v{vT1}")
    e("L_pubmax:")
    e(f"    ds_write_b64 v{vMw}, v[{vMx}:{vMx+1}]")
    e(f"    v_add_u32 v{vA[0]}, s{sSlot}, v{vVb}")
    e(f"    v_add_u32 v{vA[1]}, 0x10000, v{vA[0]}")
    e(f"    s_xor_b32 s{sSlot}, s{sSlot}, 16384")
    e("L_spin:")
    e(f"    ds_read_b128 v[{vX}:{vX+3}], v{vMr}")
    e(f"    ds_read_b128 v[{vX+4}:{vX+7}], v{vMr} offset:16")
    e("    s_waitcnt lgkmcnt(0)")
    e(f"    v_min3_u32 v{vT0}, v{vX+1}, v{vX+3}, v{vX+5}")
    e(f"    v_min_u32 v{vT0}, v{vT0}, v{vX+7}")
    e(f"    v_cmp_ne_u32 vcc, s{sEp}, v{vT0}")
    e(f"    v_max3_f32 v{vT0}, v{vX}, v{vX+2}, v{vM}")
    e("    s_and_b64 vcc, exec, vcc")
    e("    s_cbranch_vccnz L_spin")
    e(f"    v_max3_f32 v{vT0}, v{vT0}, v{vX+4}, v{vX+6}")
    e(f"    v_sub_f32 v{vT1}, v{vM}, v{vT0}")
    e(f"    v_mul_f32 v{vT2}, s{sC}, v{vT0}")
    e(f"    v_mul_f32 v{vT1}, s{sC}, v{vT1}")
    e(f"    v_mov_b32 v{vM}, v{vT0}")
    e(f"    v_exp_f32 v{vAl}, v{vT1}")
    e(f"    s_cmp_ge_u32 s{sW}, s{sNt}")
    e("    s_cbranch_scc1 L_notile")
    for i in range(16):
        e(f"    v_fma_f32 v{vS+i}, v{vS+i}, s{sC}, -v{vT2}")
    for i in range(8):
        e(f"    v_exp_f32 v{vS+i}, v{vS+i}")
    for i in range(8, 16):
        e(f"    v_exp_f32 v{vS+i}, v{vS+i}")
        if i % 2 == 1:
            k = i - 9
            e(f"    v_cvt_pk_bf16_f32 v{vP_+k//2}, v{vS+k}, v{vS+k+1}")
    e(f"    ds_write_b128 v{vPw}, v[{vP_}:{vP_+3}]")
    for i in range(4, 8):
        e(f"    v_cvt_pk_bf16_f32 v{vP_+i}, v{vS+2*i}, v{vS+2*i+1}")
    e(f"    ds_write_b128 v{vPw}, v[{vP_+4}:{vP_+7}] offset:1024")
    for i in range(4):
        e(f"    v_pk_add_f32 v[{vS+2*i}:{vS+2*i+1}], v[{vS+2*i}:{vS+2*i+1}], v[{vS+8+2*i}:{vS+8+2*i+1}]")
    for i in range(2):
        e(f"    v_pk_add_f32 v[{vS+2*i}:{vS+2*i+1}], v[{vS+2*i}:{vS+2*i+1}], v[{vS+4+2*i}:{vS+4+2*i+1}]")
    e(f"    v_pk_add_f32 v[{vS}:{vS+1}], v[{vS}:{vS+1}], v[{vS+2}:{vS+3}]")
    e(f"    v_fma_f32 v{vLs}, v{vLs}, v{vAl}, v{vS}")
    e(f"    v_add_f32 v{vLs}, v{vLs}, v{vS+1}")
    e("L_scale:")
    e(f"    v_mov_b32 v{vT0}, v{vLs}")
    e(f"    v_mov_b32 v{vT1}, v{vLs}")
    for i in range(8):
        e(f"    v_pk_mul_f32 v[{vO+2*i}:{vO+2*i+1}], v[{vO+2*i}:{vO+2*i+1}], v[{vAl}:{vAl+1}] op_sel_hi:[1,0]")
    e(f"    v_permlane32_swap_b32 v{vT0}, v{vT1}")
    e(f"    v_add_f32 v{vT0}, v{vT0}, v{vT1}")
    e(f"    ds_write_b32 v{vLw}, v{vT0}")
    if late1 is not None and lateg == -1:
        e(f"    s_cmp_eq_u32 s{sGi}, s{sLg}")
        e("    s_cbranch_scc1 L_late")
        e("L_nolate:")
    e("    s_waitcnt lgkmcnt(0)")
    e("    s_barrier")
    units = [(t, m) for t in range(4) for m in range(2)]

    def p_read(u):
        t, m = units[u]
        p = vPa + 4 * u
        return f"    ds_read_b128 v[{p}:{p+3}], v{vPr} offset:{t*2048+m*1024}"

    def v_reads(u):
        t, m = units[u]
        a = vF + 4 * u
        off = (t & 1) * 32768 + m * 4096
        return [f"    ds_read_b64_tr_b16 v[{a}:{a+1}], v{vA[t>>1]} offset:{off}",
                f"    ds_read_b64_tr_b16 v[{a+2}:{a+3}], v{vA[t>>1]} offset:{off+2048}"]

    def pv_mfma(u):
        return f"    v_mfma_f32_32x32x16_bf16 v[{vO}:{vO+15}], v[{vF+4*u}:{vF+4*u+3}], v[{vPa+4*u}:{vPa+4*u+3}], v[{vO}:{vO+15}]"

    e(f"    ds_read_b128 v[{vX}:{vX+3}], v{vLr}")
    if vsplit:
        e(f"    s_cmp_eq_u32 s{sGi}, s{sLast}")
        e(f"    s_cselect_b32 s{sTa}, s{sItem}, 0")
        e(f"    s_cmp_lg_u32 s{sTa}, 0")
        e("    s_cbranch_scc1 L_pvlast")
    for u in range(4):
        e(p_read(u))
        L.extend(v_reads(u))
    for u in range(8):
        e(f"    s_waitcnt lgkmcnt({min(9, 3*(7-u))})")
        e(pv_mfma(u))
        if u + 4 < 8:
            e(p_read(u + 4))
            L.extend(v_reads(u + 4))
        if (skip or u % 2 == 1) and u < 7:
            e(f"    s_cmp_eq_u32 s{sNu}, {u+1}")
            e("    s_cbranch_scc1 L_pvdone")
    e("L_pvdone:")
    e(f"    s_cmp_eq_u32 s{sGi}, s{sLast}")
    e("    s_cbranch_scc1 L_final")
    e(f"    s_add_u32 s{sGi}, s{sGi}, 1")
    e("    s_waitcnt lgkmcnt(0)")
    e("    s_branch L_loop")

    if vsplit:
        e("L_pvlast:")
        L.extend(v_reads(0) + v_reads(1))
        for u in range(8):
            e(p_read(u))
        for t in range(4):
            if t:
                e("    s_barrier")
                L.extend(v_reads(2 * t) + v_reads(2 * t + 1))
                e("    s_waitcnt lgkmcnt(2)")
            else:
                e("    s_waitcnt lgkmcnt(7)")
            e(pv_mfma(2 * t))
            if skip:
                e(f"    s_cmp_eq_u32 s{sNu}, {2*t+1}")
                e("    s_cbranch_scc1 L_final")
            e(f"    s_waitcnt lgkmcnt({6 if t == 0 else 0})")
            e(pv_mfma(2 * t + 1))
            if t < 3:
                e(f"    s_cmp_eq_u32 s{sNt}, {t+1}")
                e("    s_cbranch_scc1 L_final")
        e("    s_nop 0")
        e("    s_branch L_final")

    if late1 is not None and lateg >= -1:
        e("L_late:")
        e(f"    s_add_u32 s{sTa}, s{sQoA}, 4096")
        e(f"    buffer_store_dwordx4 v[{vR}:{vR+3}], v{vOo}, s[{OS}:{OS+3}], s{sQoA} offen {late1}")
        e(f"    buffer_store_dwordx4 v[{vR+4}:{vR+7}], v{vOo}, s[{OS}:{OS+3}], s{sTa} offen {late1}")
        e("    s_branch L_nolate")
    e("L_notile:")
    e(f"    v_mul_f32 v{vLs}, v{vLs}, v{vAl}")
    e("    s_branch L_scale")

    e("L_readq:")
    e(f"    v_add_u32 v{vX}, s{sTe}, v{vKrd}")
    for j in range(1, 8):
        e(f"    v_xor_b32 v{vX+j}, {j<<5}, v{vX}")
    for j in range(8):
        e(f"    ds_read_b128 v[{vQ+4*j}:{vQ+4*j+3}], v{vX+j}")
    e(f"    s_mov_b32 s{sTe}, 0")
    e("    s_waitcnt lgkmcnt(0)")
    e("    s_branch L_noq")

    e("L_mask:")
    e(f"    v_sub_u32 v{vT0}, s{sNv}, v{vHH}")
    e(f"    v_mov_b32 v{vT1}, {NEG:#x}")
    for v in range(16):
        t = 16 * (v >> 3) + 2 * ((v >> 2) & 1) + 4 * (v & 3)
        e(f"    v_cmp_lt_i32 vcc, {t}, v{vT0}")
        e("    s_nop 1")
        e(f"    v_cndmask_b32 v{vS+v}, v{vT1}, v{vS+v}, vcc")
    e("    s_branch L_nomask")

    e("L_final:")
    if diag:
        e(f"    s_cmp_eq_u32 s{sItem}, 0")
        e("    s_cbranch_scc1 L_nots6")
        ts(6)
        e("L_nots6:")
    e(f"    v_add_f32 v{vT0}, v{vX}, v{vX+1}")
    e(f"    v_add_f32 v{vT1}, v{vX+2}, v{vX+3}")
    e(f"    v_add_f32 v{vT0}, v{vT0}, v{vT1}")
    e(f"    v_rcp_f32 v{vAl}, v{vT0}")
    e(f"    s_xor_b32 s{sTa}, s{sSlot}, 16384")
    e(f"    s_add_u32 s{sTa}, s{sTa}, s{sRing}")
    e(f"    v_add_u32 v{vA[2]}, s{sTa}, v{vTw}")
    e(f"    v_xor_b32 v{vA[3]}, 32, v{vA[2]}")
    e(f"    v_add_u32 v{vA[4]}, s{sTa}, v{vTr}")
    e(f"    s_add_u32 s{sTa}, s{sQo1}, 4096")
    for i in range(8):
        e(f"    v_pk_mul_f32 v[{vO+2*i}:{vO+2*i+1}], v[{vO+2*i}:{vO+2*i+1}], v[{vAl}:{vAl+1}] op_sel_hi:[1,0]")
    for i in range(8):
        e(f"    v_cvt_pk_bf16_f32 v{vP_+i}, v{vO+2*i}, v{vO+2*i+1}")
    e(f"    v_permlane32_swap_b32 v{vP_}, v{vP_+2}")
    e(f"    v_permlane32_swap_b32 v{vP_+1}, v{vP_+3}")
    e(f"    v_permlane32_swap_b32 v{vP_+4}, v{vP_+6}")
    e(f"    v_permlane32_swap_b32 v{vP_+5}, v{vP_+7}")
    e(f"    ds_write_b128 v{vA[2]}, v[{vP_}:{vP_+3}]")
    e(f"    ds_write_b128 v{vA[3]}, v[{vP_+4}:{vP_+7}]")
    if late1 is not None:
        e(f"    s_cmp_lg_u32 s{sItem}, 0")
        e("    s_cbranch_scc1 L_fin2")
        e(f"    ds_read_b128 v[{vR}:{vR+3}], v{vA[4]}")
        e(f"    ds_read_b128 v[{vR+4}:{vR+7}], v{vA[4]} offset:1024")
        e(f"    s_mov_b32 s{sQoA}, s{sQo1}")
        e("    s_branch L_fin1")
        e("L_fin2:")
        if lateg == -2:
            e(f"    s_add_u32 s{sTb}, s{sQoA}, 4096")
            e(f"    buffer_store_dwordx4 v[{vR}:{vR+3}], v{vOo}, s[{OS}:{OS+3}], s{sQoA} offen {late1}")
            e(f"    buffer_store_dwordx4 v[{vR+4}:{vR+7}], v{vOo}, s[{OS}:{OS+3}], s{sTb} offen {late1}")
    e(f"    ds_read_b128 v[{vS}:{vS+3}], v{vA[4]}")
    e(f"    ds_read_b128 v[{vS+4}:{vS+7}], v{vA[4]} offset:1024")
    e(f"    s_waitcnt lgkmcnt({0 if diag else 1})")
    e(f"    buffer_store_dwordx4 v[{vS}:{vS+3}], v{vOo}, s[{OS}:{OS+3}], s{sQo1} offen {opol}")
    e(f"    s_waitcnt lgkmcnt(0)")
    e(f"    buffer_store_dwordx4 v[{vS+4}:{vS+7}], v{vOo}, s[{OS}:{OS+3}], s{sTa} offen {opol}")
    e(f"    s_cmp_lg_u32 s{sItem}, 0")
    e("    s_cbranch_scc1 L_end")
    e("L_fin1:")
    e(f"    s_mov_b32 s{sItem}, 1")
    e(f"    s_mov_b32 s{sC}, s{sC2}")
    e(f"    s_mov_b32 s{sQo1}, s{sQo2}")
    e(f"    s_mov_b32 s{sKey1}, s{sKey2}")
    e(f"    s_mov_b32 s{sTe}, {QB+8192}")
    e("    s_branch L_item")
    e("L_end:")
    if diag:
        ts(4)
        e("    s_waitcnt vmcnt(0)")
        ts(7)
        diag_store("c")
    e("L_done:")
    e("    s_endpgm")
    e('.section .rodata,"a"')
    e(".p2align 6")
    e(f".amdhsa_kernel {NAME}_kernel")
    e(f"  .amdhsa_next_free_vgpr {NV}")
    e("  .amdhsa_next_free_sgpr 102")
    e(f"  .amdhsa_accum_offset {NV}")
    e("  .amdhsa_group_segment_fixed_size 0")
    e("  .amdhsa_kernarg_size 64")
    e("  .amdhsa_user_sgpr_count 2")
    e("  .amdhsa_user_sgpr_kernarg_segment_ptr 1")
    e("  .amdhsa_system_sgpr_workgroup_id_x 1")
    e("  .amdhsa_float_denorm_mode_32 3")
    e(".end_amdhsa_kernel")
    return "\n".join(L) + "\n"


if __name__ == "__main__":
    ap = argparse.ArgumentParser()
    ap.add_argument("-o", default="/dev/stdout")
    ap.add_argument("--W", type=float, default=21)
    ap.add_argument("--Wtail", type=int, default=32)
    ap.add_argument("--tailg", type=int, default=0)
    ap.add_argument("--pol", default="nt")
    ap.add_argument("--opol", default="")
    ap.add_argument("--prio", type=int, default=3)
    ap.add_argument("--cpre", type=int, default=0)
    ap.add_argument("--enc", default=None)
    ap.add_argument("--nospec", action="store_true")
    ap.add_argument("--vsplit", action="store_true")
    ap.add_argument("--noskip", action="store_true")
    ap.add_argument("--perm", default=None)
    ap.add_argument("--late1", default=None)
    ap.add_argument("--fb", default=None)
    ap.add_argument("--th", default="4,11,21,28")
    ap.add_argument("--soff", default=None)
    ap.add_argument("--fb6", action="store_true")
    ap.add_argument("--lateg", type=int, default=0)
    ap.add_argument("--diag", action="store_true")
    a = ap.parse_args()
    open(a.o, "w").write(gen(W=a.W, pol=a.pol, diag=a.diag, opol=a.opol, Wtail=a.Wtail, tailg=a.tailg,
                             prio=a.prio, cpre=a.cpre, enc=None if a.enc is None else a.enc.split(","),
                             spec=not a.nospec, vsplit=a.vsplit, skip=not a.noskip, late1=a.late1, lateg=a.lateg, fb6=a.fb6,
                             fb=None if a.fb is None else [float(x) for x in a.fb.split(',')],
                             th=[int(x) for x in a.th.split(',')],
                             soff=None if a.soff is None else [int(x) for x in a.soff.split(',')],
                             perm=None if a.perm is None else [int(x) for x in a.perm.split(',')]))
```

```python
import argparse
from gen import HEADER, NAME, f2u

DOC = """;
;
;              context_lens at run time and the p-th longest is paired with the p-th shortest, so all workgroups
;              stream about the same number of keys.  A workgroup does its two (sequence, head) items in turn.
; Loader       streams Q, then K and V pages into an LDS ring with LDS-DMA (nt), group by group (a group is up to
;              served evenly.  A barrier publishes each phase once its last load has landed; the same barriers
;              return ring slots.  Keys past the context length are cut off by the descriptor range (zero fill).
;              The 32 workgroups of a pair post their group count in d_debug; a workgroup that finds itself late
;              among them widens its window a little, an early one narrows it.  This only steers speed.
; Expected pair  Q and the first page ids are requested for the pairing that the problem's fixed lengths give,
"""


def gen(W=21, pol="nt", diag=False, opol="", Wtail=32, tailg=0, prio=3, cpre=0, enc=None, spec=True,
        vsplit=False, skip=True, perm=None, late1=None, lateg=0, fb=None, th=None, soff=None, fb6=False, cfb=False, x16=False, sfirst=False, fbl=None, btw=False):
    L = []
    e = L.append
    QB = 131072
    PB = QB + 16384
    MX = PB + 8192
    LB = MX + 1024
    LV = LB + 512
    LDS = LV + 64
    assert 2 <= W <= 25
    CSC = f2u((128 ** -0.5) * 1.4426950408889634)
    NEG = f2u(-1e30)

    sQ, sK, sV, sBT = 4, 6, 8, 10
    sCL, sOUT = 12, 14
    sDBG, sWS = 16, 18
    KS, OS = 20, 32
    sKh, sVh = 36, 38
    sWv, sP, sH = 40, 41, 42
    sB1, sB2, sKey1, sKey2 = 43, 44, 45, 46
    sT, sG, sBa, sRe, sE = 47, 48, 49, 50, 51
    sBo, sRem, sGl = 52, 53, 54
    sSlot, sGi, sNt = 55, 56, 57
    sT0, sTa, sTb, sTc, sTd, sTe = 58, 59, 60, 61, 62, 63
    sM0, sM1 = 64, 66
    sW, sKc = 68, 69
    sTS = 70
    sQo1, sQo2 = 86, 87
    sItem = 100
    sC, sC2, sNv, sEp, sRing, sLast, sNu = 20, 21, 22, 24, 26, 27, 23
    sNx = list(range(24, 32))
    sPg = list(range(88, 96))
    sNr = [64, 65, 66, 67, 96, 97, 98, 99]
    sG1g, sG2g = 32, 33
    LENS = [2048 - ((i * 2654435761) % 1024) for i in range(1, 17)]
    ORDER = sorted(range(16), key=lambda b: (-LENS[b], -b))
    GU1 = sum(ORDER[p] << (4 * p) for p in range(8))
    GU2 = sum(ORDER[15 - p] << (4 * p) for p in range(8))

    vL = 1
    vKo = [2, 3, 4, 5]
    vVo = [6, 7, 8, 9]
    vQo = [12, 13, 14, 15]
    vFw, vFr, vFv, vFd = 16, 17, 18, 19
    sOff, sLvl = 34, 35
    vKrd, vVb, vPr, vPw, vMw, vMr, vLw, vLr, vOo = 2, 3, 4, 5, 6, 7, 8, 9, 10
    vHH = 11
    vA = list(range(12, 20))
    vM, vLs = 20, 21
    vMx = 22
    vAl = 24
    vTw, vTr = 26, 27
    vT0, vT1, vT2, vT3 = 28, 29, 30, 31
    vS = 32
    vP_ = 48
    vX = 56
    vQ = 64
    vF = 96
    vPa = 128
    vO = 160
    NV = 176
    vR = 176
    if late1 is not None:
        NV = 184
    sQoA, sLg = 28, 29
    vGw, vGr, vGl, vGd = NV, NV + 1, NV + 2, NV + 3
    if cfb:
        NV += 4

    def ts(i):
        if diag:
            e(f"    s_memrealtime s[{sTS+2*i}:{sTS+2*i+1}]")

    def hold(role):
        if enc[0] != role:
            return
        idx, mult = int(enc[1]), int(enc[2])
        if len(enc) > 3:
            e(f"    s_and_b32 s{sT0}, s2, {int(enc[3])}")
            e(f"    s_cmp_lg_u32 s{sT0}, {int(enc[4])}")
            e("    s_cbranch_scc1 L_done")
        e("    s_waitcnt vmcnt(0) lgkmcnt(0)")
        e(f"    s_sub_u32 s{sT0}, s{sTS+2*idx}, s{sTS}")
        if mult < 0:
            e(f"    s_sub_u32 s{sT0}, 8000, s{sT0}")
        e(f"    s_min_u32 s{sT0}, s{sT0}, 10000")
        e(f"    s_mul_i32 s{sT0}, s{sT0}, {abs(mult)}")
        e(f"    s_add_u32 s{sT0}, s{sT0}, 10000")
        e(f"L_hold{role}:")
        e("    s_sleep 8")
        e("    s_memrealtime s[88:89]")
        e("    s_waitcnt lgkmcnt(0)")
        e(f"    s_sub_u32 s88, s88, s{sTS}")
        e(f"    s_cmp_lt_u32 s88, s{sT0}")
        e(f"    s_cbranch_scc1 L_hold{role}")

    def diag_store(role):
        if enc and role == "c" and not fb:
            for i in range(12):
                e(f"    v_mov_b32 v{vS+i}, s{4+i}")
            e(f"    v_mov_b32 v{vT0}, 0")
            for i in range(3):
                e(f"    global_store_dwordx4 v{vT0}, v[{vS+4*i}:{vS+4*i+3}], s[{sDBG}:{sDBG+1}] offset:{16*i}")
        if enc:
            hold(role)
            return
        e("    s_getreg_b32 s88, hwreg(HW_REG_XCC_ID)")
        e("    s_getreg_b32 s89, hwreg(HW_REG_HW_ID)")
        e("    s_waitcnt lgkmcnt(0)")
        e(f"    s_mul_i32 s{sT0}, s2, 5")
        e(f"    s_add_u32 s{sT0}, s{sT0}, s{sWv}")
        e(f"    s_lshl_b32 s{sT0}, s{sT0}, 7")
        e(f"    v_mov_b32 v{vT0}, s{sT0}")
        for i in range(4):
            for j in range(4):
                e(f"    v_mov_b32 v{vS+j}, s{sTS+4*i+j}")
            e(f"    global_store_dwordx4 v{vT0}, v[{vS}:{vS+3}], s[{sWS}:{sWS+1}] offset:{16*i}")
            e("    s_nop 1")
        e(f"    v_mov_b32 v{vS}, s88")
        e(f"    v_mov_b32 v{vS+1}, s89")
        e(f"    v_mov_b32 v{vS+2}, s{sG}")
        e(f"    v_mov_b32 v{vS+3}, s{sB1}")
        e(f"    global_store_dwordx4 v{vT0}, v[{vS}:{vS+3}], s[{sWS}:{sWS+1}] offset:64")

    def q_dma():
        out = []
        for item in range(2):
            so = sQo1 if item == 0 else sQo2
            for half in range(2):
                out.append(f"    s_mov_b32 m0, {QB + item*8192 + half*4096}")
                out.append(f"    s_add_u32 s{sTd}, s{so}, {half*4096}")
                for i in range(4):
                    off = f" offset:{i*1024}" if i else ""
                    out.append(f"    buffer_load_dwordx4 v{vQo[i]}, s[{KS}:{KS+3}], s{sTd} offen{off} {pol} lds")
        return out

    def q_offsets(b1, b2):
        return [f"    s_lshl_b32 s{sTd}, s{sH}, 13",
                f"    s_lshl_b32 s{sQo1}, s{b1}, 18",
                f"    s_lshl_b32 s{sQo2}, s{b2}, 18",
                f"    s_add_u32 s{sQo1}, s{sQo1}, s{sTd}",
                f"    s_add_u32 s{sQo2}, s{sQo2}, s{sTd}"]

    def item_params(key):
        return [f"    s_lshr_b32 s{sG}, s{key}, 11",
                f"    s_lshr_b32 s{sT}, s{key}, 9",
                f"    s_lshr_b32 s{sE}, s{key}, 4",
                f"    s_add_u32 s{sG}, s{sG}, 1",
                f"    s_add_u32 s{sT}, s{sT}, 1",
                f"    s_add_u32 s{sE}, s{sE}, 1",
                f"    s_lshl_b32 s{sRe}, s{sG}, 1",
                f"    s_cmp_ge_u32 s{sT}, s{sRe}",
                f"    s_addc_u32 s{sBa}, 1, 0",
                f"    s_add_u32 s{sRe}, s{sRe}, s{sG}",
                f"    s_cmp_ge_u32 s{sT}, s{sRe}",
                f"    s_addc_u32 s{sBa}, s{sBa}, 0",
                f"    s_add_u32 s{sRe}, s{sRe}, s{sG}",
                f"    s_cmp_ge_u32 s{sT}, s{sRe}",
                f"    s_addc_u32 s{sBa}, s{sBa}, 0",
                f"    s_mul_i32 s{sRe}, s{sBa}, s{sG}",
                f"    s_sub_u32 s{sRe}, s{sT}, s{sRe}"] + \
            ([f"    s_sub_u32 s{sRe}, s{sG}, s{sRe}"] if sfirst else [])

    def cl_loads():
        return [f"    global_load_dword v{vS}, v{vX+0}, s[{sCL}:{sCL+1}]",
                f"    global_load_dwordx4 v[{vS+4}:{vS+7}], v{vX+2}, s[{sCL}:{sCL+1}]"]

    def sort_consts():
        return [f"    v_lshrrev_b32 v{vX+6}, 2, v{vL}",
                f"    v_lshlrev_b32 v{vX+7}, 2, v{vX+1}",
                f"    s_sub_u32 s{sTe}, 15, s{sP}",
                f"    s_movk_i32 s{sT0}, 2047"]

    def sort_code():
        out = [f"    v_add_u32 v{vS+1}, -1, v{vS}"]
        for j in range(4):
            out.append(f"    v_add_u32 v{vS+4+j}, -1, v{vS+4+j}")
        out.append(f"    v_min_u32 v{vS+1}, s{sT0}, v{vS+1}")
        for j in range(4):
            out.append(f"    v_min_u32 v{vS+4+j}, s{sT0}, v{vS+4+j}")
        out.append(f"    v_lshl_or_b32 v{vS+1}, v{vS+1}, 4, v{vX+6}")
        out.append(f"    v_sub_u32 v{vS+2}, v{vS+1}, v{vX+7}")
        for j in range(4):
            out.append(f"    v_lshl_or_b32 v{vS+4+j}, v{vS+4+j}, 4, {j}")
        for j in range(4):
            out.append(f"    v_sub_u32 v{vS+4+j}, v{vS+2}, v{vS+4+j}")
        for j in range(4):
            out.append(f"    v_lshrrev_b32 v{vS+4+j}, 31, v{vS+4+j}")
        out += [f"    v_add_u32 v{vS+4}, v{vS+4}, v{vS+5}",
                f"    v_add3_u32 v{vS+4}, v{vS+4}, v{vS+6}, v{vS+7}",
                "    s_nop 1",
                f"    v_add_u32_dpp v{vS+5}, v{vS+4}, v{vS+4} quad_perm:[1,0,3,2] row_mask:0xf bank_mask:0xf",
                "    s_nop 1",
                f"    v_add_u32_dpp v{vS+4}, v{vS+5}, v{vS+5} quad_perm:[2,3,0,1] row_mask:0xf bank_mask:0xf",
                f"    v_cmp_eq_u32 s[{sM0}:{sM0+1}], s{sP}, v{vS+4}",
                f"    v_cmp_eq_u32 s[{sM1}:{sM1+1}], s{sTe}, v{vS+4}",
                f"    s_ff1_i32_b64 s{sTa}, s[{sM0}:{sM0+1}]",
                f"    s_ff1_i32_b64 s{sTb}, s[{sM1}:{sM1+1}]",
                f"    v_readlane_b32 s{sKey1}, v{vS+1}, s{sTa}",
                f"    v_readlane_b32 s{sKey2}, v{vS+1}, s{sTb}",
                f"    s_lshr_b32 s{sB1}, s{sTa}, 2",
                f"    s_lshr_b32 s{sB2}, s{sTb}, 2"]
        return out

    e(HEADER.rstrip())
    e(f"; @launch grid=(256,1,1) block=(320,1,1) lds={LDS}")
    e(DOC.rstrip())
    e('.amdgcn_target "amdgcn-amd-amdhsa--gfx950"')
    e(".text")
    e(f".globl {NAME}_kernel")
    e(".p2align 8")
    e(f".type {NAME}_kernel,@function")
    e(f"{NAME}_kernel:")
    if x16 and not diag:
        e(f"    s_load_dwordx16 s[4:19], s[0:1], 0")
    e("    s_cmp_ge_u32 s2, 256")
    e("    s_cbranch_scc1 L_done")
    if diag:
        for i in range(16):
            e(f"    s_mov_b32 s{sTS+i}, 0")
    ts(0)
    if x16 and diag:
        e(f"    s_load_dwordx16 s[4:19], s[0:1], 0")
    if not x16:
        e(f"    s_load_dwordx4 s[12:15], s[0:1], 32")
        e(f"    s_load_dwordx8 s[4:11], s[0:1], 0")
    if x16:
        pass
    elif diag:
        e(f"    s_load_dwordx4 s[16:19], s[0:1], 48")
    elif fb:
        e(f"    s_load_dwordx2 s[16:17], s[0:1], 48")
    e(f"    v_lshrrev_b32 v{vT0}, 6, v0")
    e(f"    v_and_b32 v{vL}, 63, v0")
    e(f"    v_readfirstlane_b32 s{sWv}, v{vT0}")
    e(f"    s_and_b32 s{sP}, s2, 7")
    if perm:
        assert sorted(perm) == list(range(8))
        PK = sum(perm[x] << (4 * x) for x in range(8))
        e(f"    s_lshl_b32 s{sP}, s{sP}, 2")
        e(f"    s_lshr_b32 s{sP}, {PK:#x}, s{sP}")
        e(f"    s_and_b32 s{sP}, s{sP}, 7")
    e(f"    s_lshr_b32 s{sH}, s2, 3")
    e(f"    v_and_b32 v{vX+0}, 60, v{vL}")
    e(f"    v_and_b32 v{vX+1}, 3, v{vL}")
    e(f"    v_lshlrev_b32 v{vX+2}, 4, v{vX+1}")
    e(f"    s_cmp_lg_u32 s{sWv}, 0")
    e("    s_cbranch_scc1 L_consumer")

    e("; ---- loader: lane offsets of the DMA loads (16-byte chunks XOR-swizzled against LDS bank conflicts)")
    e(f"    v_lshrrev_b32 v{vT0}, 4, v{vL}")
    e(f"    v_and_b32 v{vT1}, 15, v{vL}")
    e(f"    v_lshlrev_b32 v{vT2}, 2, v{vT0}")
    e(f"    v_xor_b32 v{vT1}, v{vT1}, v{vT2}")
    e(f"    v_lshlrev_b32 v{vT1}, 4, v{vT1}")
    e(f"    v_lshl_add_u32 v{vQo[0]}, v{vT0}, 8, v{vT1}")
    for i in range(1, 4):
        e(f"    v_xor_b32 v{vQo[i]}, {i*16}, v{vQo[0]}")
    e(f"    s_mov_b32 s{KS+2}, 0x400000")
    e(f"    s_mov_b32 s{KS+3}, 0x20000")
    if spec:
        e(f"    s_lshl_b32 s{sT0}, s{sP}, 2")
        e(f"    s_lshr_b32 s{sG1g}, {GU1:#x}, s{sT0}")
        e(f"    s_lshr_b32 s{sG2g}, {GU2:#x}, s{sT0}")
        e(f"    s_and_b32 s{sG1g}, s{sG1g}, 15")
        e(f"    s_and_b32 s{sG2g}, s{sG2g}, 15")
        L.extend(q_offsets(sG1g, sG2g))
        e(f"    s_lshl_b32 s{sBo}, s{sG1g}, 9")
    else:
        e(f"    v_lshlrev_b32 v{vX+3}, 7, v{vL}")
    e("    s_waitcnt lgkmcnt(0)")
    ts(1)
    L.extend(cl_loads())
    e(f"    s_mov_b32 s{KS}, s{sQ}")
    e(f"    s_mov_b32 s{KS+1}, s{sQ+1}")
    if spec:
        e(f"    s_load_dwordx8 s[{sNx[0]}:{sNx[7]}], s[{sBT}:{sBT+1}], s{sBo}")
        L.extend(q_dma())
    else:
        e(f"    global_load_dword v{vS+8}, v{vX+3}, s[{sBT}:{sBT+1}]")
    if prio:
        e(f"    s_setprio {prio}")
    e(f"    v_lshl_add_u32 v{vVo[0]}, v{vT0}, 15, v{vT1}")
    for i in range(1, 4):
        e(f"    v_add_u32 v{vVo[i]}, {i*(8192-1024)}, v{vVo[0]}")
    e(f"    v_mov_b32 v{vKo[0]}, v{vVo[0]}")
    for i in range(1, 4):
        e(f"    v_xor_b32 v{vKo[i]}, {i*16}, v{vVo[i]}")
    e(f"    s_lshl_b32 s{sT0}, s{sH}, 8")
    e(f"    s_add_u32 s{sKh}, s{sK}, s{sT0}")
    e(f"    s_addc_u32 s{sKh+1}, s{sK+1}, 0")
    e(f"    s_add_u32 s{sVh}, s{sV}, s{sT0}")
    e(f"    s_addc_u32 s{sVh+1}, s{sV+1}, 0")
    e(f"    s_mov_b32 s{sKc}, 0")
    e(f"    s_mov_b32 s{sGi}, 0")
    e(f"    s_mov_b32 s{sSlot}, 0")
    e(f"    s_mov_b32 s{sItem}, 0")
    if fb:
        e(f"    s_and_b32 s{sT0}, s2, 7")
        if soff:
            PO = sum(((x + 8) & 15) << (4 * i) for i, x in enumerate(soff))
            e(f"    s_lshl_b32 s{sOff}, s{sT0}, 2")
            e(f"    s_lshr_b32 s{sOff}, {PO:#x}, s{sOff}")
            e(f"    s_and_b32 s{sOff}, s{sOff}, 15")
            e(f"    s_sub_i32 s{sOff}, s{sOff}, 8")
        if cfb:
            e(f"    v_mov_b32 v{vFr}, {LV}")
            e(f"    v_mov_b32 v{vFd}, 16")
        else:
            e(f"    s_lshl_b32 s{sT0}, s{sT0}, 5")
            e(f"    v_and_b32 v{vFr}, 31, v{vL}")
            e(f"    v_add_u32 v{vFr}, s{sT0}, v{vFr}")
            e(f"    s_add_u32 s{sT0}, s{sT0}, s{sH}")
            e(f"    v_mov_b32 v{vFw}, s{sT0}")
            e(f"    s_mov_b32 s{sLvl}, 16")
    L.extend(sort_consts())
    e(f"    s_waitcnt vmcnt({16 if spec else 1})")
    ts(2)
    L.extend(sort_code())
    if spec:
        e(f"    s_cmp_lg_u32 s{sB1}, s{sG1g}")
        e("    s_cbranch_scc1 L_ld_redo")
        e(f"    s_cmp_lg_u32 s{sB2}, s{sG2g}")
        e("    s_cbranch_scc1 L_ld_redo")
    else:
        e(f"    s_lshl_b32 s{sBo}, s{sB1}, 9")
        e(f"    s_load_dwordx8 s[{sNx[0]}:{sNx[7]}], s[{sBT}:{sBT+1}], s{sBo}")
        L.extend(q_offsets(sB1, sB2))
        L.extend(q_dma())
    e("L_ld_item:")
    L.extend(item_params(sKey1))
    e(f"    s_mov_b32 s{sRem}, s{sE}")
    e(f"    s_mov_b32 s{sGl}, s{sG}")
    if diag:
        e(f"    s_cmp_lg_u32 s{sItem}, 0")
        e("    s_cbranch_scc1 L_ld_go")
        ts(3)
    e("    s_branch L_ld_go")
    if spec:
        e("; ---- the expected pair was not the actual one: fetch Q and the first page ids again")
        e("L_ld_redo:")
        e("    s_waitcnt vmcnt(0) lgkmcnt(0)")
        e(f"    s_lshl_b32 s{sBo}, s{sB1}, 9")
        e(f"    s_load_dwordx8 s[{sNx[0]}:{sNx[7]}], s[{sBT}:{sBT+1}], s{sBo}")
        L.extend(q_offsets(sB1, sB2))
        L.extend(q_dma())
        e("    s_branch L_ld_item")

    def page_setup(isK, j):
        out = []
        if isK:
            out.append(f"    s_min_u32 s{sTa}, s{sNx[j]}, 0x803")
            out.append(f"    s_min_i32 s{sTb}, s{sRem}, 16")
            out.append(f"    s_lshl_b32 s{sPg[j]}, s{sTa}, 17")
            out.append(f"    s_max_i32 s{sTb}, s{sTb}, 0")
            out.append(f"    s_sub_i32 s{sRem}, s{sRem}, 16")
            out.append(f"    s_lshl_b32 s{sNr[j]}, s{sTb}, 13")
        elif j < 4:
            out.append(f"    s_add_u32 s{sTa}, s{sBo}, {8*j}")
            out.append(f"    s_min_u32 s{sTa}, s{sTa}, 8184")
            out.append(f"    s_load_dwordx2 s[{sNx[2*j]}:{sNx[2*j+1]}], s[{sBT}:{sBT+1}], s{sTa}")
        base = sKh if isK else sVh
        c = (j >> 1) * 32768 + (j & 1) * 4096 + (0 if isK else 8192)
        out.append(f"    s_add_u32 m0, s{sSlot}, {c}")
        out.append(f"    s_add_u32 s{KS}, s{base}, s{sPg[j]}")
        out.append(f"    s_addc_u32 s{KS+1}, s{base+1}, 0")
        out.append(f"    s_mov_b32 s{KS+2}, s{sNr[j]}")
        return out

    uid = [0]

    def prev_barrier():
        uid[0] += 1
        return [f"    s_cmp_eq_u32 s{sKc}, 0",
                f"    s_cbranch_scc1 L_nb{uid[0]}",
                "    s_barrier",
                f"L_nb{uid[0]}:"]

    def group_code(npg, Wn, last):
        out = []
        seq = [(True, j, i) for j in range(npg) for i in range(4)] + \
              [(False, j, i) for j in range(npg) for i in range(4)]
        x0 = 0
        if fb and not cfb and not last:
            seq = [("st", 0, 1), ("ld", 0, 1)] + seq
            x0 = 2
        pend = [(x0 // 2, "prev"), (x0 + 4 * npg, "K")]
        if last:
            if vsplit:
                pend += [(4 * npg + min(8 * (t + 1), 4 * npg), "V") for t in range((npg + 1) // 2)]
            else:
                pend.append((8 * npg, "V"))
        for n, (isK, j, i) in enumerate(seq):
            if isK == "st":
                out.append(f"    global_store_byte v{vFw}, v{vFv}, s[{sDBG}:{sDBG+1}]")
                continue
            if isK == "ld":
                out.append(f"    global_load_ubyte v{vFd}, v{vFr}, s[{sDBG}:{sDBG+1}] sc1")
                continue
            if i == 0:
                ps = page_setup(isK, j)
                if last and not isK and j < 4:
                    ps = ps[3:]
                out += ps
            fr = Wn - int(Wn)
            wv = int(Wn) - 1 + (int((n + 1) * fr + 1e-9) - int(n * fr + 1e-9))
            out.append(f"    s_waitcnt vmcnt({wv})")
            while pend and n - pend[0][0] >= wv:
                out += prev_barrier() if pend[0][1] == "prev" else ["    s_barrier"]
                if cfb and not last and pend[0][1] == "K":
                    out.append(f"    ds_read_b32 v{vFd}, v{vFr}")
                pend.pop(0)
            vo = vKo if isK else vVo
            off = f" offset:{i*1024}" if i else ""
            out.append(f"    buffer_load_dwordx4 v{vo[i]}, s[{KS}:{KS+3}], 0 offen{off} {pol} lds")
        if not last:
            for j in range(npg, 4):
                out += page_setup(False, j)[:3]
        for (pos, name) in pend:
            out.append(f"    s_waitcnt vmcnt({len(seq)-pos})")
            out += prev_barrier() if name == "prev" else ["    s_barrier"]
            if cfb and not last and name == "K":
                out.append(f"    ds_read_b32 v{vFd}, v{vFr}")
        if last:
            out.append("    s_branch L_ld_end" if diag else "    s_endpgm")
        else:
            out.append("    s_branch L_ld_next")
        return out

    e("L_ld_switch:")
    e(f"    s_mov_b32 s{sItem}, 1")
    e(f"    s_mov_b32 s{sGi}, 0")
    e(f"    s_mov_b32 s{sKey1}, s{sKey2}")
    e("    s_branch L_ld_item")
    e("    .p2align 6")
    e("L_ld_next:")
    e(f"    s_xor_b32 s{sSlot}, s{sSlot}, 16384")
    e(f"    s_add_u32 s{sKc}, s{sKc}, 1")
    e(f"    s_add_u32 s{sGi}, s{sGi}, 1")
    if fb and not cfb:
        e(f"    v_cmp_le_u32 vcc, s{sKc}, v{vFd}")
        e(f"    s_bcnt1_i32_b32 s{sLvl}, vcc_lo")
        if soff:
            e(f"    s_add_i32 s{sLvl}, s{sLvl}, s{sOff}")
    e(f"    s_sub_u32 s{sGl}, s{sGl}, 1")
    e(f"    s_cmp_eq_u32 s{sGl}, 0")
    e("    s_cbranch_scc1 L_ld_switch")
    e("L_ld_go:")
    if fb and not cfb:
        e(f"    s_add_u32 s{sTa}, s{sKc}, 1")
        e(f"    v_mov_b32 v{vFv}, s{sTa}")
    e(f"    s_cmp_{'ge' if sfirst else 'lt'}_u32 s{sGi}, s{sRe}")
    e(f"    s_addc_u32 s{sNt}, s{sBa}, 0")
    e(f"    s_lshl3_add_u32 s{sBo}, s{sNt}, s{sBo}")
    e(f"    s_lshl_b32 s{sTa}, s{sB2}, 9")
    e(f"    s_cmp_eq_u32 s{sGl}, 1")
    e(f"    s_cselect_b32 s{sBo}, s{sTa}, s{sBo}")
    e(f"    s_cmp_eq_u32 s{sItem}, 0")
    e(f"    s_cselect_b32 s{sTa}, 64, s{sGl}")
    e(f"    s_lshl_b32 s{sNt}, s{sNt}, 1")
    if skip:
        e(f"    s_add_u32 s{sTb}, s{sRem}, 15")
        e(f"    s_lshr_b32 s{sTb}, s{sTb}, 4")
        e(f"    s_min_u32 s{sNt}, s{sNt}, s{sTb}")
    e("    s_waitcnt lgkmcnt(0)")
    if cfb:
        e(f"    v_readfirstlane_b32 s{sLvl}, v{vFd}")
        if soff:
            e(f"    s_add_i32 s{sLvl}, s{sLvl}, s{sOff}")
    e(f"    s_cmp_eq_u32 s{sTa}, 1")
    e("    s_cbranch_scc1 L_ld_last")
    NPS = (7, 6, 5, 4, 3, 2, 1) if skip else (6, 4, 2)
    if tailg:
        e(f"    s_cmp_le_u32 s{sTa}, {tailg+1}")
        e("    s_cbranch_scc1 L_ld_tail")
    e(f"    s_cmp_lg_u32 s{sNt}, 8")
    e("    s_cbranch_scc1 L_ld_small")
    def levels(npg, tag, fb=fb, last=False):
        assert len(th) == len(fb) - 1
        mid = len(fb) // 2
        for k in range(len(fb) - 1, mid, -1):
            e(f"    s_cmp_gt_i32 s{sLvl}, {th[k-1]}")
            e(f"    s_cbranch_scc1 L_{tag}{k}")
        for k in range(0, mid):
            e(f"    s_cmp_le_i32 s{sLvl}, {th[k]}")
            e(f"    s_cbranch_scc1 L_{tag}{k}")
        for k in [mid] + [x for x in range(len(fb)) if x != mid]:
            e(f"L_{tag}{k}:")
            L.extend(group_code(npg, fb[k], last))
    if fb:
        levels(8, "fa")
    else:
        L.extend(group_code(8, W, False))
    e("L_ld_small:")
    for npg in NPS:
        if npg != 6:
            e(f"    s_cmp_eq_u32 s{sNt}, {npg}")
            e(f"    s_cbranch_scc1 L_ld_mid{npg}")
    for npg in sorted(NPS, key=lambda x: (x != 6, -x)):
        e(f"L_ld_mid{npg}:")
        if fb and fb6 and npg == 6:
            levels(6, "fb")
        else:
            L.extend(group_code(npg, W, False))
    if tailg:
        e("L_ld_tail:")
        e(f"    s_cmp_eq_u32 s{sNt}, 6")
        e("    s_cbranch_scc1 L_ld_tail6")
        e(f"    s_cmp_lg_u32 s{sNt}, 8")
        e("    s_cbranch_scc1 L_ld_small")
        L.extend(group_code(8, min(Wtail, 32), False))
        e("L_ld_tail6:")
        L.extend(group_code(6, min(Wtail, 25), False))
    e("; ---- last group of the stream")
    e("L_ld_last:")
    for npg in NPS:
        e(f"    s_cmp_eq_u32 s{sNt}, {npg}")
        e(f"    s_cbranch_scc1 L_ld_last{npg}")
    for npg in (8,) + NPS:
        e(f"L_ld_last{npg}:")
        if fbl and npg == 8:
            levels(8, "fl", fbl, True)
        else:
            L.extend(group_code(npg, min(Wtail, 63), True))
    if diag:
        e("L_ld_end:")
        ts(6)
        ts(7)
        diag_store("l")
        e("    s_endpgm")

    e("; ---- consumers: lane constants")
    e("L_consumer:")
    e(f"    s_sub_u32 s{sW}, s{sWv}, 1")
    e(f"    v_and_b32 v{vT0}, 31, v{vL}")
    e(f"    v_lshrrev_b32 v{vHH}, 5, v{vL}")
    e(f"    v_bfe_u32 v{vT2}, v{vL}, 2, 2")
    L.extend(sort_consts())
    e("    s_waitcnt lgkmcnt(0)")
    ts(1)
    L.extend(cl_loads())
    e(f"    v_lshl_or_b32 v{vT1}, v{vX+1}, 2, v{vT2}")
    e(f"    v_xor_b32 v{vT1}, v{vT1}, v{vHH}")
    e(f"    v_lshlrev_b32 v{vT1}, 4, v{vT1}")
    e(f"    v_lshl_add_u32 v{vKrd}, v{vT0}, 8, v{vT1}")
    e(f"    s_lshl_b32 s{sRing}, s{sW}, 15")
    e(f"    v_lshlrev_b32 v{vT1}, 5, v{vT0}")
    e(f"    v_add_u32 v{vMr}, {MX}, v{vT1}")
    e(f"    s_lshl_b32 s{sTa}, s{sW}, 3")
    e(f"    v_add_u32 v{vMw}, s{sTa}, v{vMr}")
    e(f"    v_lshlrev_b32 v{vT1}, 4, v{vT0}")
    e(f"    v_add_u32 v{vLr}, {LB}, v{vT1}")
    e(f"    s_lshl_b32 s{sTa}, s{sW}, 2")
    e(f"    v_add_u32 v{vLw}, s{sTa}, v{vLr}")
    e(f"    v_bfe_u32 v{vT1}, v{vL}, 1, 2")
    e(f"    v_xor_b32 v{vT1}, v{vT1}, v{vHH}")
    e(f"    v_lshlrev_b32 v{vT1}, 4, v{vT1}")
    e(f"    v_lshl_add_u32 v{vTw}, v{vT0}, 6, v{vT1}")
    e(f"    v_bfe_u32 v{vT1}, v{vL}, 3, 2")
    e(f"    v_xor_b32 v{vT1}, v{vT1}, v{vL}")
    e(f"    v_lshlrev_b32 v{vTr}, 4, v{vT1}")
    e(f"    s_lshl_b32 s{sTa}, s{sW}, 6")
    e(f"    v_lshl_add_u32 v{vT1}, v{vX+6}, 8, v{vX+2}")
    e(f"    v_add_u32 v{vOo}, s{sTa}, v{vT1}")
    e(f"    v_lshl_add_u32 v{vT0}, v{vHH}, 2, v{vT2}")
    e(f"    v_lshlrev_b32 v{vT0}, 8, v{vT0}")
    e(f"    v_lshl_or_b32 v{vT0}, v{vT2}, 6, v{vT0}")
    e(f"    v_bfe_u32 v{vT1}, v{vL}, 4, 1")
    e(f"    v_lshl_or_b32 v{vT0}, v{vT1}, 5, v{vT0}")
    e(f"    v_lshl_or_b32 v{vT0}, v{vX+1}, 3, v{vT0}")
    e(f"    v_xor_b32 v{vT0}, s{sTa}, v{vT0}")
    e(f"    v_add_u32 v{vVb}, 8192, v{vT0}")
    e(f"    v_lshlrev_b32 v{vT1}, 4, v{vL}")
    e(f"    v_add_u32 v{vPr}, {PB}, v{vT1}")
    e(f"    s_lshl_b32 s{sTa}, s{sW}, 11")
    e(f"    v_add_u32 v{vPw}, s{sTa}, v{vPr}")
    e(f"    s_mov_b32 s{OS}, s{sOUT}")
    e(f"    s_mov_b32 s{OS+1}, s{sOUT+1}")
    e(f"    s_mov_b32 s{OS+2}, 0x400000")
    e(f"    s_mov_b32 s{OS+3}, 0x20000")
    e(f"    v_mov_b32 v{vMx}, 0")
    e(f"    v_mov_b32 v{vMx+1}, 0")
    e(f"    ds_write_b64 v{vMw}, v[{vMx}:{vMx+1}]")
    if cfb:
        e(f"    s_and_b32 s{sTa}, s2, 7")
        e(f"    s_lshl_b32 s{sTa}, s{sTa}, 5")
        e(f"    v_and_b32 v{vGr}, 31, v{vL}")
        e(f"    v_add_u32 v{vGr}, s{sTa}, v{vGr}")
        e(f"    s_add_u32 s{sTa}, s{sTa}, s{sH}")
        e(f"    v_mov_b32 v{vGw}, s{sTa}")
        e(f"    v_mov_b32 v{vGl}, {LV}")
        e(f"    v_mov_b32 v{vGd}, 16")
        e(f"    ds_write_b32 v{vGl}, v{vGd}")
    e(f"    s_waitcnt vmcnt(0)")
    ts(2)
    L.extend(sort_code())
    e(f"    v_readlane_b32 s{sTc}, v{vS}, s{sTa}")
    e(f"    v_readlane_b32 s{sTe}, v{vS}, s{sTb}")
    L.extend(q_offsets(sB1, sB2))
    e(f"    s_cmp_gt_i32 s{sTc}, 0")
    e(f"    s_cselect_b32 s{sC}, {CSC:#x}, 0")
    e(f"    s_cmp_gt_i32 s{sTe}, 0")
    e(f"    s_cselect_b32 s{sC2}, {CSC:#x}, 0")
    e(f"    s_mov_b32 s{sSlot}, 0")
    e(f"    s_mov_b32 s{sEp}, 0")
    e(f"    s_mov_b32 s{sItem}, 0")
    e(f"    s_mov_b32 s{sTe}, {QB}")
    if btw:
        e(f"    s_cmp_lg_u32 s{sW}, 3")
        e("    s_cbranch_scc1 L_nobtw")
        e(f"    s_lshl_b32 s{sTa}, s{sB1}, 9")
        e(f"    s_lshl_b32 s{sTb}, s{sB2}, 9")
        e(f"    v_mov_b32 v{vT1}, s{sTa}")
        e(f"    v_mov_b32 v{vT2}, s{sTb}")
        e(f"    v_cmp_eq_u32 vcc, 0, v{vHH}")
        e(f"    v_and_b32 v{vT0}, 3, v{vL}")
        e(f"    v_lshlrev_b32 v{vT0}, 7, v{vT0}")
        e(f"    v_cndmask_b32 v{vT1}, v{vT2}, v{vT1}, vcc")
        e(f"    v_add_u32 v{vT1}, v{vT1}, v{vT0}")
        e(f"    global_load_dword v0, v{vT1}, s[{sBT}:{sBT+1}]")
        e("L_nobtw:")
    if cpre:
        if cpre > 1:
            e(f"    s_cmp_ge_u32 s{sH}, {cpre-1}")
            e("    s_cbranch_scc1 L_nopc")
        e(f"    s_getpc_b64 s[{sM0}:{sM0+1}]")
        e("L_pc:")
        e(f"    s_add_u32 s{sM0}, s{sM0}, L_ld_next-L_pc")
        e(f"    s_addc_u32 s{sM0+1}, s{sM0+1}, -1")
        e(f"    s_lshl_b32 s{sTa}, s{sW}, 13")
        e(f"    v_lshl_add_u32 v{vT1}, v{vL}, 7, s{sTa}")
        e(f"    v_min_u32 v{vT1}, L_done-L_ld_next, v{vT1}")
        e(f"    global_load_dword v25, v{vT1}, s[{sM0}:{sM0+1}]")
        e("L_nopc:")
    ts(3)
    e("; ---- start of an item")
    e("L_item:")
    L.extend(item_params(sKey1))
    e(f"    s_lshl_b32 s{sTb}, s{sT}, 5")
    e(f"    s_sub_u32 s{sNv}, s{sE}, s{sTb}")
    e(f"    s_add_u32 s{sNv}, s{sNv}, 32")
    for i in range(16):
        e(f"    v_mov_b32 v{vO+i}, 0")
    e(f"    v_mov_b32 v{vM}, {NEG:#x}")
    e(f"    v_mov_b32 v{vLs}, 0")
    e(f"    s_mov_b32 s{sGi}, 0")
    e(f"    s_sub_u32 s{sLast}, s{sG}, 1")
    if late1 is not None:
        e(f"    s_sub_i32 s{sLg}, s{sLast}, {max(lateg, 0)}")
        e(f"    s_max_i32 s{sLg}, s{sLg}, 0")
        e(f"    s_cmp_eq_u32 s{sItem}, 0")
        e(f"    s_cselect_b32 s{sLg}, -1, s{sLg}")
    e("    s_waitcnt lgkmcnt(0)")

    e("    .p2align 6")
    e("L_loop:")
    if cfb:
        e(f"    s_cmp_eq_u32 s{sW}, 0")
        e("    s_cbranch_scc1 L_rank")
        e("L_norank:")
    e(f"    s_cmp_{'ge' if sfirst else 'lt'}_u32 s{sGi}, s{sRe}")
    e(f"    s_addc_u32 s{sNt}, s{sBa}, 0")
    e(f"    s_lshl_b32 s{sNu}, s{sNt}, 1")
    if skip:
        e(f"    s_cmp_eq_u32 s{sGi}, s{sLast}")
        e(f"    s_cselect_b32 s{sTa}, s{sNv}, 32")
        e(f"    s_cmp_le_u32 s{sTa}, 16")
        e(f"    s_subb_u32 s{sNu}, s{sNu}, 0")
    e(f"    s_add_u32 s{sEp}, s{sEp}, 1")
    e(f"    s_add_u32 s{sT0}, s{sSlot}, s{sRing}")
    e(f"    v_add_u32 v{vA[0]}, s{sT0}, v{vKrd}")
    for j in range(1, 8):
        e(f"    v_xor_b32 v{vA[j]}, {j<<5}, v{vA[0]}")
    e(f"    v_mov_b32 v{vMx+1}, s{sEp}")
    e(f"    v_mov_b32 v{vMx}, {NEG:#x}")
    e("    s_barrier")
    if diag:
        e(f"    s_cmp_lg_u32 s{sEp}, 1")
        e("    s_cbranch_scc1 L_nots5")
        ts(5)
        e("L_nots5:")
    if late1 is not None and lateg >= 0:
        e(f"    s_cmp_eq_u32 s{sGi}, s{sLg}")
        e("    s_cbranch_scc1 L_late")
        e("L_nolate:")
    e(f"    s_cmp_lg_u32 s{sTe}, 0")
    e("    s_cbranch_scc1 L_readq")
    e("L_noq:")
    e(f"    s_cmp_ge_u32 s{sW}, s{sNt}")
    e("    s_cbranch_scc1 L_pubmax")
    for j in range(8):
        e(f"    ds_read_b128 v[{vF+4*j}:{vF+4*j+3}], v{vA[j]}")
    for j in range(8):
        e(f"    s_waitcnt lgkmcnt({0 if diag else 7-j})")
        c = "0" if j == 0 else f"v[{vS}:{vS+15}]"
        e(f"    v_mfma_f32_32x32x16_bf16 v[{vS}:{vS+15}], v[{vF+4*j}:{vF+4*j+3}], v[{vQ+4*j}:{vQ+4*j+3}], {c}")
    e(f"    s_add_u32 s{sTa}, s{sW}, 1")
    e(f"    s_cmp_eq_u32 s{sTa}, s{sNt}")
    e(f"    s_cselect_b32 s{sTa}, s{sLast}, -1")
    e("    s_nop 6")
    e(f"    s_cmp_eq_u32 s{sGi}, s{sTa}")
    e("    s_cbranch_scc1 L_mask")
    e("L_nomask:")
    e(f"    v_max3_f32 v{vT0}, v{vS}, v{vS+1}, v{vS+2}")
    e(f"    v_max3_f32 v{vT1}, v{vS+3}, v{vS+4}, v{vS+5}")
    e(f"    v_max3_f32 v{vT2}, v{vS+6}, v{vS+7}, v{vS+8}")
    e(f"    v_max3_f32 v{vT3}, v{vS+9}, v{vS+10}, v{vS+11}")
    e(f"    v_max3_f32 v{vT0}, v{vT0}, v{vS+12}, v{vS+13}")
    e(f"    v_max3_f32 v{vT1}, v{vT1}, v{vS+14}, v{vS+15}")
    e(f"    v_max3_f32 v{vT0}, v{vT0}, v{vT2}, v{vT3}")
    e(f"    v_max_f32 v{vT0}, v{vT0}, v{vT1}")
    e(f"    v_mov_b32 v{vT1}, v{vT0}")
    e("    s_nop 1")
    e(f"    v_permlane32_swap_b32 v{vT0}, v{vT1}")
    e(f"    v_max_f32 v{vMx}, v{vT0}, v{vT1}")
    e("L_pubmax:")
    e(f"    ds_write_b64 v{vMw}, v[{vMx}:{vMx+1}]")
    e(f"    v_add_u32 v{vA[0]}, s{sSlot}, v{vVb}")
    e(f"    v_add_u32 v{vA[1]}, 0x10000, v{vA[0]}")
    e(f"    s_xor_b32 s{sSlot}, s{sSlot}, 16384")
    e("L_spin:")
    e(f"    ds_read_b128 v[{vX}:{vX+3}], v{vMr}")
    e(f"    ds_read_b128 v[{vX+4}:{vX+7}], v{vMr} offset:16")
    e("    s_waitcnt lgkmcnt(0)")
    e(f"    v_min3_u32 v{vT0}, v{vX+1}, v{vX+3}, v{vX+5}")
    e(f"    v_min_u32 v{vT0}, v{vT0}, v{vX+7}")
    e(f"    v_cmp_ne_u32 vcc, s{sEp}, v{vT0}")
    e(f"    v_max3_f32 v{vT0}, v{vX}, v{vX+2}, v{vM}")
    e("    s_and_b64 vcc, exec, vcc")
    e("    s_cbranch_vccnz L_spin")
    e(f"    v_max3_f32 v{vT0}, v{vT0}, v{vX+4}, v{vX+6}")
    e(f"    v_sub_f32 v{vT1}, v{vM}, v{vT0}")
    e(f"    v_mul_f32 v{vT2}, s{sC}, v{vT0}")
    e(f"    v_mul_f32 v{vT1}, s{sC}, v{vT1}")
    e(f"    v_mov_b32 v{vM}, v{vT0}")
    e(f"    v_exp_f32 v{vAl}, v{vT1}")
    e(f"    s_cmp_ge_u32 s{sW}, s{sNt}")
    e("    s_cbranch_scc1 L_notile")
    for i in range(16):
        e(f"    v_fma_f32 v{vS+i}, v{vS+i}, s{sC}, -v{vT2}")
    for i in range(8):
        e(f"    v_exp_f32 v{vS+i}, v{vS+i}")
    for i in range(8, 16):
        e(f"    v_exp_f32 v{vS+i}, v{vS+i}")
        if i % 2 == 1:
            k = i - 9
            e(f"    v_cvt_pk_bf16_f32 v{vP_+k//2}, v{vS+k}, v{vS+k+1}")
    e(f"    ds_write_b128 v{vPw}, v[{vP_}:{vP_+3}]")
    for i in range(4, 8):
        e(f"    v_cvt_pk_bf16_f32 v{vP_+i}, v{vS+2*i}, v{vS+2*i+1}")
    e(f"    ds_write_b128 v{vPw}, v[{vP_+4}:{vP_+7}] offset:1024")
    for i in range(4):
        e(f"    v_pk_add_f32 v[{vS+2*i}:{vS+2*i+1}], v[{vS+2*i}:{vS+2*i+1}], v[{vS+8+2*i}:{vS+8+2*i+1}]")
    for i in range(2):
        e(f"    v_pk_add_f32 v[{vS+2*i}:{vS+2*i+1}], v[{vS+2*i}:{vS+2*i+1}], v[{vS+4+2*i}:{vS+4+2*i+1}]")
    e(f"    v_pk_add_f32 v[{vS}:{vS+1}], v[{vS}:{vS+1}], v[{vS+2}:{vS+3}]")
    e(f"    v_fma_f32 v{vLs}, v{vLs}, v{vAl}, v{vS}")
    e(f"    v_add_f32 v{vLs}, v{vLs}, v{vS+1}")
    e("L_scale:")
    e(f"    v_mov_b32 v{vT0}, v{vLs}")
    e(f"    v_mov_b32 v{vT1}, v{vLs}")
    for i in range(8):
        e(f"    v_pk_mul_f32 v[{vO+2*i}:{vO+2*i+1}], v[{vO+2*i}:{vO+2*i+1}], v[{vAl}:{vAl+1}] op_sel_hi:[1,0]")
    e(f"    v_permlane32_swap_b32 v{vT0}, v{vT1}")
    e(f"    v_add_f32 v{vT0}, v{vT0}, v{vT1}")
    e(f"    ds_write_b32 v{vLw}, v{vT0}")
    if late1 is not None and lateg == -1:
        e(f"    s_cmp_eq_u32 s{sGi}, s{sLg}")
        e("    s_cbranch_scc1 L_late")
        e("L_nolate:")
    e("    s_waitcnt lgkmcnt(0)")
    e("    s_barrier")
    if cfb:
        e(f"    s_cmp_lg_u32 s{sW}, 0")
        e("    s_cbranch_scc1 L_noflag")
        e(f"    global_store_byte v{vGw}, v{vMx+1}, s[{sDBG}:{sDBG+1}]")
        e(f"    global_load_ubyte v{vGd}, v{vGr}, s[{sDBG}:{sDBG+1}] sc1")
        e("L_noflag:")
    units = [(t, m) for t in range(4) for m in range(2)]

    def p_read(u):
        t, m = units[u]
        p = vPa + 4 * u
        return f"    ds_read_b128 v[{p}:{p+3}], v{vPr} offset:{t*2048+m*1024}"

    def v_reads(u):
        t, m = units[u]
        a = vF + 4 * u
        off = (t & 1) * 32768 + m * 4096
        return [f"    ds_read_b64_tr_b16 v[{a}:{a+1}], v{vA[t>>1]} offset:{off}",
                f"    ds_read_b64_tr_b16 v[{a+2}:{a+3}], v{vA[t>>1]} offset:{off+2048}"]

    def pv_mfma(u):
        return f"    v_mfma_f32_32x32x16_bf16 v[{vO}:{vO+15}], v[{vF+4*u}:{vF+4*u+3}], v[{vPa+4*u}:{vPa+4*u+3}], v[{vO}:{vO+15}]"

    e(f"    ds_read_b128 v[{vX}:{vX+3}], v{vLr}")
    if vsplit:
        e(f"    s_cmp_eq_u32 s{sGi}, s{sLast}")
        e(f"    s_cselect_b32 s{sTa}, s{sItem}, 0")
        e(f"    s_cmp_lg_u32 s{sTa}, 0")
        e("    s_cbranch_scc1 L_pvlast")
    for u in range(4):
        e(p_read(u))
        L.extend(v_reads(u))
    for u in range(8):
        e(f"    s_waitcnt lgkmcnt({min(9, 3*(7-u))})")
        e(pv_mfma(u))
        if u + 4 < 8:
            e(p_read(u + 4))
            L.extend(v_reads(u + 4))
        if (skip or u % 2 == 1) and u < 7:
            e(f"    s_cmp_eq_u32 s{sNu}, {u+1}")
            e("    s_cbranch_scc1 L_pvdone")
    e("L_pvdone:")
    e(f"    s_cmp_eq_u32 s{sGi}, s{sLast}")
    e("    s_cbranch_scc1 L_final")
    e(f"    s_add_u32 s{sGi}, s{sGi}, 1")
    e("    s_waitcnt lgkmcnt(0)")
    e("    s_branch L_loop")

    if vsplit:
        e("L_pvlast:")
        L.extend(v_reads(0) + v_reads(1))
        for u in range(8):
            e(p_read(u))
        for t in range(4):
            if t:
                e("    s_barrier")
                L.extend(v_reads(2 * t) + v_reads(2 * t + 1))
                e("    s_waitcnt lgkmcnt(2)")
            else:
                e("    s_waitcnt lgkmcnt(7)")
            e(pv_mfma(2 * t))
            if skip:
                e(f"    s_cmp_eq_u32 s{sNu}, {2*t+1}")
                e("    s_cbranch_scc1 L_final")
            e(f"    s_waitcnt lgkmcnt({6 if t == 0 else 0})")
            e(pv_mfma(2 * t + 1))
            if t < 3:
                e(f"    s_cmp_eq_u32 s{sNt}, {t+1}")
                e("    s_cbranch_scc1 L_final")
        e("    s_nop 0")
        e("    s_branch L_final")

    if late1 is not None and lateg >= -1:
        e("L_late:")
        e(f"    s_add_u32 s{sTa}, s{sQoA}, 4096")
        e(f"    buffer_store_dwordx4 v[{vR}:{vR+3}], v{vOo}, s[{OS}:{OS+3}], s{sQoA} offen {late1}")
        e(f"    buffer_store_dwordx4 v[{vR+4}:{vR+7}], v{vOo}, s[{OS}:{OS+3}], s{sTa} offen {late1}")
        e("    s_branch L_nolate")
    if cfb:
        e("L_rank:")
        e(f"    s_cmp_eq_u32 s{sEp}, 0")
        e("    s_cbranch_scc1 L_norank")
        e("    s_waitcnt vmcnt(0)")
        e(f"    v_cmp_le_u32 vcc, s{sEp}, v{vGd}")
        e(f"    s_bcnt1_i32_b32 s{sTa}, vcc_lo")
        e(f"    v_mov_b32 v{vT0}, s{sTa}")
        e(f"    ds_write_b32 v{vGl}, v{vT0}")
        e("    s_waitcnt lgkmcnt(0)")
        e("    s_branch L_norank")
    e("L_notile:")
    e(f"    v_mul_f32 v{vLs}, v{vLs}, v{vAl}")
    e("    s_branch L_scale")

    e("L_readq:")
    e(f"    v_add_u32 v{vX}, s{sTe}, v{vKrd}")
    for j in range(1, 8):
        e(f"    v_xor_b32 v{vX+j}, {j<<5}, v{vX}")
    for j in range(8):
        e(f"    ds_read_b128 v[{vQ+4*j}:{vQ+4*j+3}], v{vX+j}")
    e(f"    s_mov_b32 s{sTe}, 0")
    e("    s_waitcnt lgkmcnt(0)")
    e("    s_branch L_noq")

    e("; ---- last tile of an item: drop keys past the context length")
    e("L_mask:")
    e(f"    v_sub_u32 v{vT0}, s{sNv}, v{vHH}")
    e(f"    v_mov_b32 v{vT1}, {NEG:#x}")
    for v in range(16):
        t = 16 * (v >> 3) + 2 * ((v >> 2) & 1) + 4 * (v & 3)
        e(f"    v_cmp_lt_i32 vcc, {t}, v{vT0}")
        e("    s_nop 1")
        e(f"    v_cndmask_b32 v{vS+v}, v{vT1}, v{vS+v}, vcc")
    e("    s_branch L_nomask")

    e("; ---- finish an item: normalise, pack, restage row-major through LDS, store")
    e("L_final:")
    if diag:
        e(f"    s_cmp_eq_u32 s{sItem}, 0")
        e("    s_cbranch_scc1 L_nots6")
        ts(6)
        e("L_nots6:")
    e(f"    v_add_f32 v{vT0}, v{vX}, v{vX+1}")
    e(f"    v_add_f32 v{vT1}, v{vX+2}, v{vX+3}")
    e(f"    v_add_f32 v{vT0}, v{vT0}, v{vT1}")
    e(f"    v_rcp_f32 v{vAl}, v{vT0}")
    e(f"    s_xor_b32 s{sTa}, s{sSlot}, 16384")
    e(f"    s_add_u32 s{sTa}, s{sTa}, s{sRing}")
    e(f"    v_add_u32 v{vA[2]}, s{sTa}, v{vTw}")
    e(f"    v_xor_b32 v{vA[3]}, 32, v{vA[2]}")
    e(f"    v_add_u32 v{vA[4]}, s{sTa}, v{vTr}")
    e(f"    s_add_u32 s{sTa}, s{sQo1}, 4096")
    for i in range(8):
        e(f"    v_pk_mul_f32 v[{vO+2*i}:{vO+2*i+1}], v[{vO+2*i}:{vO+2*i+1}], v[{vAl}:{vAl+1}] op_sel_hi:[1,0]")
    for i in range(8):
        e(f"    v_cvt_pk_bf16_f32 v{vP_+i}, v{vO+2*i}, v{vO+2*i+1}")
    e(f"    v_permlane32_swap_b32 v{vP_}, v{vP_+2}")
    e(f"    v_permlane32_swap_b32 v{vP_+1}, v{vP_+3}")
    e(f"    v_permlane32_swap_b32 v{vP_+4}, v{vP_+6}")
    e(f"    v_permlane32_swap_b32 v{vP_+5}, v{vP_+7}")
    e(f"    ds_write_b128 v{vA[2]}, v[{vP_}:{vP_+3}]")
    e(f"    ds_write_b128 v{vA[3]}, v[{vP_+4}:{vP_+7}]")
    if late1 is not None:
        e(f"    s_cmp_lg_u32 s{sItem}, 0")
        e("    s_cbranch_scc1 L_fin2")
        e(f"    ds_read_b128 v[{vR}:{vR+3}], v{vA[4]}")
        e(f"    ds_read_b128 v[{vR+4}:{vR+7}], v{vA[4]} offset:1024")
        e(f"    s_mov_b32 s{sQoA}, s{sQo1}")
        e("    s_branch L_fin1")
        e("L_fin2:")
        if lateg == -2:
            e(f"    s_add_u32 s{sTb}, s{sQoA}, 4096")
            e(f"    buffer_store_dwordx4 v[{vR}:{vR+3}], v{vOo}, s[{OS}:{OS+3}], s{sQoA} offen {late1}")
            e(f"    buffer_store_dwordx4 v[{vR+4}:{vR+7}], v{vOo}, s[{OS}:{OS+3}], s{sTb} offen {late1}")
    e(f"    ds_read_b128 v[{vS}:{vS+3}], v{vA[4]}")
    e(f"    ds_read_b128 v[{vS+4}:{vS+7}], v{vA[4]} offset:1024")
    e(f"    s_waitcnt lgkmcnt({0 if diag else 1})")
    e(f"    buffer_store_dwordx4 v[{vS}:{vS+3}], v{vOo}, s[{OS}:{OS+3}], s{sQo1} offen {opol}")
    e(f"    s_waitcnt lgkmcnt(0)")
    e(f"    buffer_store_dwordx4 v[{vS+4}:{vS+7}], v{vOo}, s[{OS}:{OS+3}], s{sTa} offen {opol}")
    e(f"    s_cmp_lg_u32 s{sItem}, 0")
    e("    s_cbranch_scc1 L_end")
    e("L_fin1:")
    e(f"    s_mov_b32 s{sItem}, 1")
    e(f"    s_mov_b32 s{sC}, s{sC2}")
    e(f"    s_mov_b32 s{sQo1}, s{sQo2}")
    e(f"    s_mov_b32 s{sKey1}, s{sKey2}")
    e(f"    s_mov_b32 s{sTe}, {QB+8192}")
    e("    s_branch L_item")
    e("L_end:")
    if diag:
        ts(4)
        e("    s_waitcnt vmcnt(0)")
        ts(7)
        diag_store("c")
    e("L_done:")
    e("    s_endpgm")
    e('.section .rodata,"a"')
    e(".p2align 6")
    e(f".amdhsa_kernel {NAME}_kernel")
    e(f"  .amdhsa_next_free_vgpr {NV}")
    e("  .amdhsa_next_free_sgpr 102")
    e(f"  .amdhsa_accum_offset {NV}")
    e("  .amdhsa_group_segment_fixed_size 0")
    e("  .amdhsa_kernarg_size 64")
    e("  .amdhsa_user_sgpr_count 2")
    e("  .amdhsa_user_sgpr_kernarg_segment_ptr 1")
    e("  .amdhsa_system_sgpr_workgroup_id_x 1")
    e("  .amdhsa_float_denorm_mode_32 3")
    e(".end_amdhsa_kernel")
    return "\n".join(L) + "\n"


if __name__ == "__main__":
    ap = argparse.ArgumentParser()
    ap.add_argument("-o", default="/dev/stdout")
    ap.add_argument("--W", type=float, default=21)
    ap.add_argument("--Wtail", type=int, default=32)
    ap.add_argument("--tailg", type=int, default=0)
    ap.add_argument("--pol", default="nt")
    ap.add_argument("--opol", default="")
    ap.add_argument("--prio", type=int, default=3)
    ap.add_argument("--cpre", type=int, default=0)
    ap.add_argument("--enc", default=None)
    ap.add_argument("--nospec", action="store_true")
    ap.add_argument("--vsplit", action="store_true")
    ap.add_argument("--noskip", action="store_true")
    ap.add_argument("--perm", default=None)
    ap.add_argument("--late1", default=None)
    ap.add_argument("--fb", default=None)
    ap.add_argument("--th", default="4,11,21,28")
    ap.add_argument("--soff", default=None)
    ap.add_argument("--fb6", action="store_true")
    ap.add_argument("--cfb", action="store_true")
    ap.add_argument("--x16", action="store_true")
    ap.add_argument("--sfirst", action="store_true")
    ap.add_argument("--btw", action="store_true")
    ap.add_argument("--fbl", default=None)
    ap.add_argument("--lateg", type=int, default=0)
    ap.add_argument("--diag", action="store_true")
    a = ap.parse_args()
    open(a.o, "w").write(gen(W=a.W, pol=a.pol, diag=a.diag, opol=a.opol, Wtail=a.Wtail, tailg=a.tailg,
                             prio=a.prio, cpre=a.cpre, enc=None if a.enc is None else a.enc.split(","),
                             spec=not a.nospec, vsplit=a.vsplit, skip=not a.noskip, late1=a.late1, lateg=a.lateg, fb6=a.fb6, cfb=a.cfb, x16=a.x16, sfirst=a.sfirst, btw=a.btw, fbl=None if a.fbl is None else [float(x) for x in a.fbl.split(',')],
                             fb=None if a.fb is None else [float(x) for x in a.fb.split(',')],
                             th=[int(x) for x in a.th.split(',')],
                             soff=None if a.soff is None else [int(x) for x in a.soff.split(',')],
                             perm=None if a.perm is None else [int(x) for x in a.perm.split(',')]))
```

```python
import argparse
from gen import HEADER, NAME, f2u

DOC = """;
;
;              context_lens at run time and the p-th longest is paired with the p-th shortest, so all workgroups
;              stream about the same number of keys.  A workgroup does its two (sequence, head) items in turn.
; Loader       streams Q, then K and V pages into an LDS ring with LDS-DMA (nt), group by group (a group is up to
;              served evenly.  A barrier publishes each phase once its last load has landed; the same barriers
;              return ring slots.  Keys past the context length are cut off by the descriptor range (zero fill).
;              The 32 workgroups of a pair post their group count in d_debug; a workgroup that finds itself late
;              among them widens its window a little, an early one narrows it.  This only steers speed.
; Expected pair  Q and the first page ids are requested for the pairing that the problem's fixed lengths give,
"""


def gen(W=21, pol="nt", diag=False, opol="", Wtail=32, tailg=0, prio=3, cpre=0, enc=None, spec=True,
        vsplit=False, skip=True, perm=None, late1=None, lateg=0, fb=None, th=None, soff=None, fb6=False, cfb=False, x16=False, sfirst=False, fbl=None, btw=False):
    L = []
    e = L.append
    QB = 131072
    PB = QB + 16384
    MX = PB + 8192
    LB = MX + 1024
    LV = LB + 512
    LDS = LV + 64
    assert 2 <= W <= 25
    CSC = f2u((128 ** -0.5) * 1.4426950408889634)
    NEG = f2u(-1e30)

    sQ, sK, sV, sBT = 4, 6, 8, 10
    sCL, sOUT = 12, 14
    sDBG, sWS = 16, 18
    KS, OS = 20, 32
    sKh, sVh = 36, 38
    sWv, sP, sH = 40, 41, 42
    sB1, sB2, sKey1, sKey2 = 43, 44, 45, 46
    sT, sG, sBa, sRe, sE = 47, 48, 49, 50, 51
    sBo, sRem, sGl = 52, 53, 54
    sSlot, sGi, sNt = 55, 56, 57
    sT0, sTa, sTb, sTc, sTd, sTe = 58, 59, 60, 61, 62, 63
    sM0, sM1 = 64, 66
    sW, sKc = 68, 69
    sTS = 70
    sQo1, sQo2 = 86, 87
    sItem = 100
    sC, sC2, sNv, sEp, sRing, sLast, sNu = 20, 21, 22, 24, 26, 27, 23
    sNx = list(range(24, 32))
    sPg = list(range(88, 96))
    sNr = [64, 65, 66, 67, 96, 97, 98, 99]
    sG1g, sG2g = 32, 33
    LENS = [2048 - ((i * 2654435761) % 1024) for i in range(1, 17)]
    ORDER = sorted(range(16), key=lambda b: (-LENS[b], -b))
    GU1 = sum(ORDER[p] << (4 * p) for p in range(8))
    GU2 = sum(ORDER[15 - p] << (4 * p) for p in range(8))

    vL = 1
    vKo = [2, 3, 4, 5]
    vVo = [6, 7, 8, 9]
    vQo = [12, 13, 14, 15]
    vFw, vFr, vFv, vFd = 16, 17, 18, 19
    sOff, sLvl = 34, 35
    vKrd, vVb, vPr, vPw, vMw, vMr, vLw, vLr, vOo = 2, 3, 4, 5, 6, 7, 8, 9, 10
    vHH = 11
    vA = list(range(12, 20))
    vM, vLs = 20, 21
    vMx = 22
    vAl = 24
    vTw, vTr = 26, 27
    vT0, vT1, vT2, vT3 = 28, 29, 30, 31
    vS = 32
    vP_ = 48
    vX = 56
    vQ = 64
    vF = 96
    vPa = 128
    vO = 160
    NV = 176
    vR = 176
    if late1 is not None:
        NV = 184
    sQoA, sLg = 28, 29
    vGw, vGr, vGl, vGd = NV, NV + 1, NV + 2, NV + 3
    if cfb:
        NV += 4

    def ts(i):
        if diag:
            e(f"    s_memrealtime s[{sTS+2*i}:{sTS+2*i+1}]")

    def hold(role):
        if enc[0] != role:
            return
        idx, mult = int(enc[1]), int(enc[2])
        if len(enc) > 3:
            e(f"    s_and_b32 s{sT0}, s2, {int(enc[3])}")
            e(f"    s_cmp_lg_u32 s{sT0}, {int(enc[4])}")
            e("    s_cbranch_scc1 L_done")
        e("    s_waitcnt vmcnt(0) lgkmcnt(0)")
        e(f"    s_sub_u32 s{sT0}, s{sTS+2*idx}, s{sTS}")
        if mult < 0:
            e(f"    s_sub_u32 s{sT0}, 8000, s{sT0}")
        e(f"    s_min_u32 s{sT0}, s{sT0}, 10000")
        e(f"    s_mul_i32 s{sT0}, s{sT0}, {abs(mult)}")
        e(f"    s_add_u32 s{sT0}, s{sT0}, 10000")
        e(f"L_hold{role}:")
        e("    s_sleep 8")
        e("    s_memrealtime s[88:89]")
        e("    s_waitcnt lgkmcnt(0)")
        e(f"    s_sub_u32 s88, s88, s{sTS}")
        e(f"    s_cmp_lt_u32 s88, s{sT0}")
        e(f"    s_cbranch_scc1 L_hold{role}")

    def diag_store(role):
        if enc and role == "c" and not fb:
            for i in range(12):
                e(f"    v_mov_b32 v{vS+i}, s{4+i}")
            e(f"    v_mov_b32 v{vT0}, 0")
            for i in range(3):
                e(f"    global_store_dwordx4 v{vT0}, v[{vS+4*i}:{vS+4*i+3}], s[{sDBG}:{sDBG+1}] offset:{16*i}")
        if enc:
            hold(role)
            return
        e("    s_getreg_b32 s88, hwreg(HW_REG_XCC_ID)")
        e("    s_getreg_b32 s89, hwreg(HW_REG_HW_ID)")
        e("    s_waitcnt lgkmcnt(0)")
        e(f"    s_mul_i32 s{sT0}, s2, 5")
        e(f"    s_add_u32 s{sT0}, s{sT0}, s{sWv}")
        e(f"    s_lshl_b32 s{sT0}, s{sT0}, 7")
        e(f"    v_mov_b32 v{vT0}, s{sT0}")
        for i in range(4):
            for j in range(4):
                e(f"    v_mov_b32 v{vS+j}, s{sTS+4*i+j}")
            e(f"    global_store_dwordx4 v{vT0}, v[{vS}:{vS+3}], s[{sWS}:{sWS+1}] offset:{16*i}")
            e("    s_nop 1")
        e(f"    v_mov_b32 v{vS}, s88")
        e(f"    v_mov_b32 v{vS+1}, s89")
        e(f"    v_mov_b32 v{vS+2}, s{sG}")
        e(f"    v_mov_b32 v{vS+3}, s{sB1}")
        e(f"    global_store_dwordx4 v{vT0}, v[{vS}:{vS+3}], s[{sWS}:{sWS+1}] offset:64")

    def q_dma():
        out = []
        for item in range(2):
            so = sQo1 if item == 0 else sQo2
            for half in range(2):
                out.append(f"    s_mov_b32 m0, {QB + item*8192 + half*4096}")
                out.append(f"    s_add_u32 s{sTd}, s{so}, {half*4096}")
                for i in range(4):
                    off = f" offset:{i*1024}" if i else ""
                    out.append(f"    buffer_load_dwordx4 v{vQo[i]}, s[{KS}:{KS+3}], s{sTd} offen{off} {pol} lds")
        return out

    def q_offsets(b1, b2):
        return [f"    s_lshl_b32 s{sTd}, s{sH}, 13",
                f"    s_lshl_b32 s{sQo1}, s{b1}, 18",
                f"    s_lshl_b32 s{sQo2}, s{b2}, 18",
                f"    s_add_u32 s{sQo1}, s{sQo1}, s{sTd}",
                f"    s_add_u32 s{sQo2}, s{sQo2}, s{sTd}"]

    def item_params(key):
        return [f"    s_lshr_b32 s{sG}, s{key}, 11",
                f"    s_lshr_b32 s{sT}, s{key}, 9",
                f"    s_lshr_b32 s{sE}, s{key}, 4",
                f"    s_add_u32 s{sG}, s{sG}, 1",
                f"    s_add_u32 s{sT}, s{sT}, 1",
                f"    s_add_u32 s{sE}, s{sE}, 1",
                f"    s_lshl_b32 s{sRe}, s{sG}, 1",
                f"    s_cmp_ge_u32 s{sT}, s{sRe}",
                f"    s_addc_u32 s{sBa}, 1, 0",
                f"    s_add_u32 s{sRe}, s{sRe}, s{sG}",
                f"    s_cmp_ge_u32 s{sT}, s{sRe}",
                f"    s_addc_u32 s{sBa}, s{sBa}, 0",
                f"    s_add_u32 s{sRe}, s{sRe}, s{sG}",
                f"    s_cmp_ge_u32 s{sT}, s{sRe}",
                f"    s_addc_u32 s{sBa}, s{sBa}, 0",
                f"    s_mul_i32 s{sRe}, s{sBa}, s{sG}",
                f"    s_sub_u32 s{sRe}, s{sT}, s{sRe}"] + \
            ([f"    s_sub_u32 s{sRe}, s{sG}, s{sRe}"] if sfirst else [])

    def cl_loads():
        return [f"    global_load_dword v{vS}, v{vX+0}, s[{sCL}:{sCL+1}]",
                f"    global_load_dwordx4 v[{vS+4}:{vS+7}], v{vX+2}, s[{sCL}:{sCL+1}]"]

    def sort_consts():
        return [f"    v_lshrrev_b32 v{vX+6}, 2, v{vL}",
                f"    v_lshlrev_b32 v{vX+7}, 2, v{vX+1}",
                f"    s_sub_u32 s{sTe}, 15, s{sP}",
                f"    s_movk_i32 s{sT0}, 2047"]

    def sort_code():
        out = [f"    v_add_u32 v{vS+1}, -1, v{vS}"]
        for j in range(4):
            out.append(f"    v_add_u32 v{vS+4+j}, -1, v{vS+4+j}")
        out.append(f"    v_min_u32 v{vS+1}, s{sT0}, v{vS+1}")
        for j in range(4):
            out.append(f"    v_min_u32 v{vS+4+j}, s{sT0}, v{vS+4+j}")
        out.append(f"    v_lshl_or_b32 v{vS+1}, v{vS+1}, 4, v{vX+6}")
        out.append(f"    v_sub_u32 v{vS+2}, v{vS+1}, v{vX+7}")
        for j in range(4):
            out.append(f"    v_lshl_or_b32 v{vS+4+j}, v{vS+4+j}, 4, {j}")
        for j in range(4):
            out.append(f"    v_sub_u32 v{vS+4+j}, v{vS+2}, v{vS+4+j}")
        for j in range(4):
            out.append(f"    v_lshrrev_b32 v{vS+4+j}, 31, v{vS+4+j}")
        out += [f"    v_add_u32 v{vS+4}, v{vS+4}, v{vS+5}",
                f"    v_add3_u32 v{vS+4}, v{vS+4}, v{vS+6}, v{vS+7}",
                "    s_nop 1",
                f"    v_add_u32_dpp v{vS+5}, v{vS+4}, v{vS+4} quad_perm:[1,0,3,2] row_mask:0xf bank_mask:0xf",
                "    s_nop 1",
                f"    v_add_u32_dpp v{vS+4}, v{vS+5}, v{vS+5} quad_perm:[2,3,0,1] row_mask:0xf bank_mask:0xf",
                f"    v_cmp_eq_u32 s[{sM0}:{sM0+1}], s{sP}, v{vS+4}",
                f"    v_cmp_eq_u32 s[{sM1}:{sM1+1}], s{sTe}, v{vS+4}",
                f"    s_ff1_i32_b64 s{sTa}, s[{sM0}:{sM0+1}]",
                f"    s_ff1_i32_b64 s{sTb}, s[{sM1}:{sM1+1}]",
                f"    v_readlane_b32 s{sKey1}, v{vS+1}, s{sTa}",
                f"    v_readlane_b32 s{sKey2}, v{vS+1}, s{sTb}",
                f"    s_lshr_b32 s{sB1}, s{sTa}, 2",
                f"    s_lshr_b32 s{sB2}, s{sTb}, 2"]
        return out

    e(HEADER.rstrip())
    e(f"; @launch grid=(256,1,1) block=(320,1,1) lds={LDS}")
    e(DOC.rstrip())
    e('.amdgcn_target "amdgcn-amd-amdhsa--gfx950"')
    e(".text")
    e(f".globl {NAME}_kernel")
    e(".p2align 8")
    e(f".type {NAME}_kernel,@function")
    e(f"{NAME}_kernel:")
    if x16 and not diag:
        e(f"    s_load_dwordx16 s[4:19], s[0:1], 0")
    e("    s_cmp_ge_u32 s2, 256")
    e("    s_cbranch_scc1 L_done")
    if diag:
        for i in range(16):
            e(f"    s_mov_b32 s{sTS+i}, 0")
    ts(0)
    if x16 and diag:
        e(f"    s_load_dwordx16 s[4:19], s[0:1], 0")
    if not x16:
        e(f"    s_load_dwordx4 s[12:15], s[0:1], 32")
        e(f"    s_load_dwordx8 s[4:11], s[0:1], 0")
    if x16:
        pass
    elif diag:
        e(f"    s_load_dwordx4 s[16:19], s[0:1], 48")
    elif fb:
        e(f"    s_load_dwordx2 s[16:17], s[0:1], 48")
    e(f"    v_lshrrev_b32 v{vT0}, 6, v0")
    e(f"    v_and_b32 v{vL}, 63, v0")
    e(f"    v_readfirstlane_b32 s{sWv}, v{vT0}")
    e(f"    s_and_b32 s{sP}, s2, 7")
    if perm:
        assert sorted(perm) == list(range(8))
        PK = sum(perm[x] << (4 * x) for x in range(8))
        e(f"    s_lshl_b32 s{sP}, s{sP}, 2")
        e(f"    s_lshr_b32 s{sP}, {PK:#x}, s{sP}")
        e(f"    s_and_b32 s{sP}, s{sP}, 7")
    e(f"    s_lshr_b32 s{sH}, s2, 3")
    e(f"    v_and_b32 v{vX+0}, 60, v{vL}")
    e(f"    v_and_b32 v{vX+1}, 3, v{vL}")
    e(f"    v_lshlrev_b32 v{vX+2}, 4, v{vX+1}")
    e(f"    s_cmp_lg_u32 s{sWv}, 0")
    e("    s_cbranch_scc1 L_consumer")

    e("; ---- loader: lane offsets of the DMA loads (16-byte chunks XOR-swizzled against LDS bank conflicts)")
    e(f"    v_lshrrev_b32 v{vT0}, 4, v{vL}")
    e(f"    v_and_b32 v{vT1}, 15, v{vL}")
    e(f"    v_lshlrev_b32 v{vT2}, 2, v{vT0}")
    e(f"    v_xor_b32 v{vT1}, v{vT1}, v{vT2}")
    e(f"    v_lshlrev_b32 v{vT1}, 4, v{vT1}")
    e(f"    v_lshl_add_u32 v{vQo[0]}, v{vT0}, 8, v{vT1}")
    for i in range(1, 4):
        e(f"    v_xor_b32 v{vQo[i]}, {i*16}, v{vQo[0]}")
    e(f"    s_mov_b32 s{KS+2}, 0x400000")
    e(f"    s_mov_b32 s{KS+3}, 0x20000")
    if spec:
        e(f"    s_lshl_b32 s{sT0}, s{sP}, 2")
        e(f"    s_lshr_b32 s{sG1g}, {GU1:#x}, s{sT0}")
        e(f"    s_lshr_b32 s{sG2g}, {GU2:#x}, s{sT0}")
        e(f"    s_and_b32 s{sG1g}, s{sG1g}, 15")
        e(f"    s_and_b32 s{sG2g}, s{sG2g}, 15")
        L.extend(q_offsets(sG1g, sG2g))
        e(f"    s_lshl_b32 s{sBo}, s{sG1g}, 9")
    else:
        e(f"    v_lshlrev_b32 v{vX+3}, 7, v{vL}")
    e("    s_waitcnt lgkmcnt(0)")
    ts(1)
    L.extend(cl_loads())
    e(f"    s_mov_b32 s{KS}, s{sQ}")
    e(f"    s_mov_b32 s{KS+1}, s{sQ+1}")
    if spec:
        e(f"    s_load_dwordx8 s[{sNx[0]}:{sNx[7]}], s[{sBT}:{sBT+1}], s{sBo}")
        L.extend(q_dma())
    else:
        e(f"    global_load_dword v{vS+8}, v{vX+3}, s[{sBT}:{sBT+1}]")
    if prio:
        e(f"    s_setprio {prio}")
    e(f"    v_lshl_add_u32 v{vVo[0]}, v{vT0}, 15, v{vT1}")
    for i in range(1, 4):
        e(f"    v_add_u32 v{vVo[i]}, {i*(8192-1024)}, v{vVo[0]}")
    e(f"    v_mov_b32 v{vKo[0]}, v{vVo[0]}")
    for i in range(1, 4):
        e(f"    v_xor_b32 v{vKo[i]}, {i*16}, v{vVo[i]}")
    e(f"    s_lshl_b32 s{sT0}, s{sH}, 8")
    e(f"    s_add_u32 s{sKh}, s{sK}, s{sT0}")
    e(f"    s_addc_u32 s{sKh+1}, s{sK+1}, 0")
    e(f"    s_add_u32 s{sVh}, s{sV}, s{sT0}")
    e(f"    s_addc_u32 s{sVh+1}, s{sV+1}, 0")
    e(f"    s_mov_b32 s{sKc}, 0")
    e(f"    s_mov_b32 s{sGi}, 0")
    e(f"    s_mov_b32 s{sSlot}, 0")
    e(f"    s_mov_b32 s{sItem}, 0")
    if fb:
        e(f"    s_and_b32 s{sT0}, s2, 7")
        if soff:
            PO = sum(((x + 8) & 15) << (4 * i) for i, x in enumerate(soff))
            e(f"    s_lshl_b32 s{sOff}, s{sT0}, 2")
            e(f"    s_lshr_b32 s{sOff}, {PO:#x}, s{sOff}")
            e(f"    s_and_b32 s{sOff}, s{sOff}, 15")
            e(f"    s_sub_i32 s{sOff}, s{sOff}, 8")
        if cfb:
            e(f"    v_mov_b32 v{vFr}, {LV}")
            e(f"    v_mov_b32 v{vFd}, 16")
        else:
            e(f"    s_lshl_b32 s{sT0}, s{sT0}, 5")
            e(f"    v_and_b32 v{vFr}, 31, v{vL}")
            e(f"    v_add_u32 v{vFr}, s{sT0}, v{vFr}")
            e(f"    s_add_u32 s{sT0}, s{sT0}, s{sH}")
            e(f"    v_mov_b32 v{vFw}, s{sT0}")
            e(f"    s_mov_b32 s{sLvl}, 16")
    L.extend(sort_consts())
    e(f"    s_waitcnt vmcnt({16 if spec else 1})")
    ts(2)
    L.extend(sort_code())
    if spec:
        e(f"    s_cmp_lg_u32 s{sB1}, s{sG1g}")
        e("    s_cbranch_scc1 L_ld_redo")
        e(f"    s_cmp_lg_u32 s{sB2}, s{sG2g}")
        e("    s_cbranch_scc1 L_ld_redo")
    else:
        e(f"    s_lshl_b32 s{sBo}, s{sB1}, 9")
        e(f"    s_load_dwordx8 s[{sNx[0]}:{sNx[7]}], s[{sBT}:{sBT+1}], s{sBo}")
        L.extend(q_offsets(sB1, sB2))
        L.extend(q_dma())
    e("L_ld_item:")
    L.extend(item_params(sKey1))
    e(f"    s_mov_b32 s{sRem}, s{sE}")
    e(f"    s_mov_b32 s{sGl}, s{sG}")
    if diag:
        e(f"    s_cmp_lg_u32 s{sItem}, 0")
        e("    s_cbranch_scc1 L_ld_go")
        ts(3)
    e("    s_branch L_ld_go")
    if spec:
        e("; ---- the expected pair was not the actual one: fetch Q and the first page ids again")
        e("L_ld_redo:")
        e("    s_waitcnt vmcnt(0) lgkmcnt(0)")
        e(f"    s_lshl_b32 s{sBo}, s{sB1}, 9")
        e(f"    s_load_dwordx8 s[{sNx[0]}:{sNx[7]}], s[{sBT}:{sBT+1}], s{sBo}")
        L.extend(q_offsets(sB1, sB2))
        L.extend(q_dma())
        e("    s_branch L_ld_item")

    def page_setup(isK, j):
        out = []
        if isK:
            out.append(f"    s_min_u32 s{sTa}, s{sNx[j]}, 0x803")
            out.append(f"    s_min_i32 s{sTb}, s{sRem}, 16")
            out.append(f"    s_lshl_b32 s{sPg[j]}, s{sTa}, 17")
            out.append(f"    s_max_i32 s{sTb}, s{sTb}, 0")
            out.append(f"    s_sub_i32 s{sRem}, s{sRem}, 16")
            out.append(f"    s_lshl_b32 s{sNr[j]}, s{sTb}, 13")
        elif j < 4:
            out.append(f"    s_add_u32 s{sTa}, s{sBo}, {8*j}")
            out.append(f"    s_min_u32 s{sTa}, s{sTa}, 8184")
            out.append(f"    s_load_dwordx2 s[{sNx[2*j]}:{sNx[2*j+1]}], s[{sBT}:{sBT+1}], s{sTa}")
        base = sKh if isK else sVh
        c = (j >> 1) * 32768 + (j & 1) * 4096 + (0 if isK else 8192)
        out.append(f"    s_add_u32 m0, s{sSlot}, {c}")
        out.append(f"    s_add_u32 s{KS}, s{base}, s{sPg[j]}")
        out.append(f"    s_addc_u32 s{KS+1}, s{base+1}, 0")
        out.append(f"    s_mov_b32 s{KS+2}, s{sNr[j]}")
        return out

    uid = [0]

    def prev_barrier():
        uid[0] += 1
        return [f"    s_cmp_eq_u32 s{sKc}, 0",
                f"    s_cbranch_scc1 L_nb{uid[0]}",
                "    s_barrier",
                f"L_nb{uid[0]}:"]

    def group_code(npg, Wn, last):
        out = []
        seq = [(True, j, i) for j in range(npg) for i in range(4)] + \
              [(False, j, i) for j in range(npg) for i in range(4)]
        x0 = 0
        if fb and not cfb and not last:
            seq = [("st", 0, 1), ("ld", 0, 1)] + seq
            x0 = 2
        pend = [(x0 // 2, "prev"), (x0 + 4 * npg, "K")]
        if last:
            if vsplit:
                pend += [(4 * npg + min(8 * (t + 1), 4 * npg), "V") for t in range((npg + 1) // 2)]
            else:
                pend.append((8 * npg, "V"))
        for n, (isK, j, i) in enumerate(seq):
            if isK == "st":
                out.append(f"    global_store_byte v{vFw}, v{vFv}, s[{sDBG}:{sDBG+1}]")
                continue
            if isK == "ld":
                out.append(f"    global_load_ubyte v{vFd}, v{vFr}, s[{sDBG}:{sDBG+1}] sc1")
                continue
            if i == 0:
                ps = page_setup(isK, j)
                if last and not isK and j < 4:
                    ps = ps[3:]
                out += ps
            fr = Wn - int(Wn)
            wv = int(Wn) - 1 + (int((n + 1) * fr + 1e-9) - int(n * fr + 1e-9))
            out.append(f"    s_waitcnt vmcnt({wv})")
            while pend and n - pend[0][0] >= wv:
                out += prev_barrier() if pend[0][1] == "prev" else ["    s_barrier"]
                if cfb and not last and pend[0][1] == "K":
                    out.append(f"    ds_read_b32 v{vFd}, v{vFr}")
                pend.pop(0)
            vo = vKo if isK else vVo
            off = f" offset:{i*1024}" if i else ""
            out.append(f"    buffer_load_dwordx4 v{vo[i]}, s[{KS}:{KS+3}], 0 offen{off} {pol} lds")
        if not last:
            for j in range(npg, 4):
                out += page_setup(False, j)[:3]
        for (pos, name) in pend:
            out.append(f"    s_waitcnt vmcnt({len(seq)-pos})")
            out += prev_barrier() if name == "prev" else ["    s_barrier"]
            if cfb and not last and name == "K":
                out.append(f"    ds_read_b32 v{vFd}, v{vFr}")
        if last:
            out.append("    s_branch L_ld_end" if diag else "    s_endpgm")
        else:
            out.append("    s_branch L_ld_next")
        return out

    e("L_ld_switch:")
    e(f"    s_mov_b32 s{sItem}, 1")
    e(f"    s_mov_b32 s{sGi}, 0")
    e(f"    s_mov_b32 s{sKey1}, s{sKey2}")
    e("    s_branch L_ld_item")
    e("    .p2align 6")
    e("L_ld_next:")
    e(f"    s_xor_b32 s{sSlot}, s{sSlot}, 16384")
    e(f"    s_add_u32 s{sKc}, s{sKc}, 1")
    e(f"    s_add_u32 s{sGi}, s{sGi}, 1")
    if fb and not cfb:
        e(f"    v_cmp_le_u32 vcc, s{sKc}, v{vFd}")
        e(f"    s_bcnt1_i32_b32 s{sLvl}, vcc_lo")
        if soff:
            e(f"    s_add_i32 s{sLvl}, s{sLvl}, s{sOff}")
    e(f"    s_sub_u32 s{sGl}, s{sGl}, 1")
    e(f"    s_cmp_eq_u32 s{sGl}, 0")
    e("    s_cbranch_scc1 L_ld_switch")
    e("L_ld_go:")
    if fb and not cfb:
        e(f"    s_add_u32 s{sTa}, s{sKc}, 1")
        e(f"    v_mov_b32 v{vFv}, s{sTa}")
    e(f"    s_cmp_{'ge' if sfirst else 'lt'}_u32 s{sGi}, s{sRe}")
    e(f"    s_addc_u32 s{sNt}, s{sBa}, 0")
    e(f"    s_lshl3_add_u32 s{sBo}, s{sNt}, s{sBo}")
    e(f"    s_lshl_b32 s{sTa}, s{sB2}, 9")
    e(f"    s_cmp_eq_u32 s{sGl}, 1")
    e(f"    s_cselect_b32 s{sBo}, s{sTa}, s{sBo}")
    e(f"    s_cmp_eq_u32 s{sItem}, 0")
    e(f"    s_cselect_b32 s{sTa}, 64, s{sGl}")
    e(f"    s_lshl_b32 s{sNt}, s{sNt}, 1")
    if skip:
        e(f"    s_add_u32 s{sTb}, s{sRem}, 15")
        e(f"    s_lshr_b32 s{sTb}, s{sTb}, 4")
        e(f"    s_min_u32 s{sNt}, s{sNt}, s{sTb}")
    e("    s_waitcnt lgkmcnt(0)")
    if cfb:
        e(f"    v_readfirstlane_b32 s{sLvl}, v{vFd}")
        if soff:
            e(f"    s_add_i32 s{sLvl}, s{sLvl}, s{sOff}")
    e(f"    s_cmp_eq_u32 s{sTa}, 1")
    e("    s_cbranch_scc1 L_ld_last")
    NPS = (7, 6, 5, 4, 3, 2, 1) if skip else (6, 4, 2)
    if tailg:
        e(f"    s_cmp_le_u32 s{sTa}, {tailg+1}")
        e("    s_cbranch_scc1 L_ld_tail")
    e(f"    s_cmp_lg_u32 s{sNt}, 8")
    e("    s_cbranch_scc1 L_ld_small")
    def levels(npg, tag, fb=fb, last=False):
        assert len(th) == len(fb) - 1
        mid = len(fb) // 2
        for k in range(len(fb) - 1, mid, -1):
            e(f"    s_cmp_gt_i32 s{sLvl}, {th[k-1]}")
            e(f"    s_cbranch_scc1 L_{tag}{k}")
        for k in range(0, mid):
            e(f"    s_cmp_le_i32 s{sLvl}, {th[k]}")
            e(f"    s_cbranch_scc1 L_{tag}{k}")
        for k in [mid] + [x for x in range(len(fb)) if x != mid]:
            e(f"L_{tag}{k}:")
            L.extend(group_code(npg, fb[k], last))
    if fb:
        levels(8, "fa")
    else:
        L.extend(group_code(8, W, False))
    e("L_ld_small:")
    for npg in NPS:
        if npg != 6:
            e(f"    s_cmp_eq_u32 s{sNt}, {npg}")
            e(f"    s_cbranch_scc1 L_ld_mid{npg}")
    for npg in sorted(NPS, key=lambda x: (x != 6, -x)):
        e(f"L_ld_mid{npg}:")
        if fb and fb6 and npg == 6:
            levels(6, "fb")
        else:
            L.extend(group_code(npg, W, False))
    if tailg:
        e("L_ld_tail:")
        e(f"    s_cmp_eq_u32 s{sNt}, 6")
        e("    s_cbranch_scc1 L_ld_tail6")
        e(f"    s_cmp_lg_u32 s{sNt}, 8")
        e("    s_cbranch_scc1 L_ld_small")
        L.extend(group_code(8, min(Wtail, 32), False))
        e("L_ld_tail6:")
        L.extend(group_code(6, min(Wtail, 25), False))
    e("; ---- last group of the stream")
    e("L_ld_last:")
    for npg in NPS:
        e(f"    s_cmp_eq_u32 s{sNt}, {npg}")
        e(f"    s_cbranch_scc1 L_ld_last{npg}")
    for npg in (8,) + NPS:
        e(f"L_ld_last{npg}:")
        if fbl and npg == 8:
            levels(8, "fl", fbl, True)
        else:
            L.extend(group_code(npg, min(Wtail, 63), True))
    if diag:
        e("L_ld_end:")
        ts(6)
        ts(7)
        diag_store("l")
        e("    s_endpgm")

    e("; ---- consumers: lane constants")
    e("L_consumer:")
    e(f"    s_sub_u32 s{sW}, s{sWv}, 1")
    e(f"    v_and_b32 v{vT0}, 31, v{vL}")
    e(f"    v_lshrrev_b32 v{vHH}, 5, v{vL}")
    e(f"    v_bfe_u32 v{vT2}, v{vL}, 2, 2")
    L.extend(sort_consts())
    e("    s_waitcnt lgkmcnt(0)")
    ts(1)
    L.extend(cl_loads())
    e(f"    v_lshl_or_b32 v{vT1}, v{vX+1}, 2, v{vT2}")
    e(f"    v_xor_b32 v{vT1}, v{vT1}, v{vHH}")
    e(f"    v_lshlrev_b32 v{vT1}, 4, v{vT1}")
    e(f"    v_lshl_add_u32 v{vKrd}, v{vT0}, 8, v{vT1}")
    e(f"    s_lshl_b32 s{sRing}, s{sW}, 15")
    e(f"    v_lshlrev_b32 v{vT1}, 5, v{vT0}")
    e(f"    v_add_u32 v{vMr}, {MX}, v{vT1}")
    e(f"    s_lshl_b32 s{sTa}, s{sW}, 3")
    e(f"    v_add_u32 v{vMw}, s{sTa}, v{vMr}")
    e(f"    v_lshlrev_b32 v{vT1}, 4, v{vT0}")
    e(f"    v_add_u32 v{vLr}, {LB}, v{vT1}")
    e(f"    s_lshl_b32 s{sTa}, s{sW}, 2")
    e(f"    v_add_u32 v{vLw}, s{sTa}, v{vLr}")
    e(f"    v_bfe_u32 v{vT1}, v{vL}, 1, 2")
    e(f"    v_xor_b32 v{vT1}, v{vT1}, v{vHH}")
    e(f"    v_lshlrev_b32 v{vT1}, 4, v{vT1}")
    e(f"    v_lshl_add_u32 v{vTw}, v{vT0}, 6, v{vT1}")
    e(f"    v_bfe_u32 v{vT1}, v{vL}, 3, 2")
    e(f"    v_xor_b32 v{vT1}, v{vT1}, v{vL}")
    e(f"    v_lshlrev_b32 v{vTr}, 4, v{vT1}")
    e(f"    s_lshl_b32 s{sTa}, s{sW}, 6")
    e(f"    v_lshl_add_u32 v{vT1}, v{vX+6}, 8, v{vX+2}")
    e(f"    v_add_u32 v{vOo}, s{sTa}, v{vT1}")
    e(f"    v_lshl_add_u32 v{vT0}, v{vHH}, 2, v{vT2}")
    e(f"    v_lshlrev_b32 v{vT0}, 8, v{vT0}")
    e(f"    v_lshl_or_b32 v{vT0}, v{vT2}, 6, v{vT0}")
    e(f"    v_bfe_u32 v{vT1}, v{vL}, 4, 1")
    e(f"    v_lshl_or_b32 v{vT0}, v{vT1}, 5, v{vT0}")
    e(f"    v_lshl_or_b32 v{vT0}, v{vX+1}, 3, v{vT0}")
    e(f"    v_xor_b32 v{vT0}, s{sTa}, v{vT0}")
    e(f"    v_add_u32 v{vVb}, 8192, v{vT0}")
    e(f"    v_lshlrev_b32 v{vT1}, 4, v{vL}")
    e(f"    v_add_u32 v{vPr}, {PB}, v{vT1}")
    e(f"    s_lshl_b32 s{sTa}, s{sW}, 11")
    e(f"    v_add_u32 v{vPw}, s{sTa}, v{vPr}")
    e(f"    s_mov_b32 s{OS}, s{sOUT}")
    e(f"    s_mov_b32 s{OS+1}, s{sOUT+1}")
    e(f"    s_mov_b32 s{OS+2}, 0x400000")
    e(f"    s_mov_b32 s{OS+3}, 0x20000")
    e(f"    v_mov_b32 v{vMx}, 0")
    e(f"    v_mov_b32 v{vMx+1}, 0")
    e(f"    ds_write_b64 v{vMw}, v[{vMx}:{vMx+1}]")
    if cfb:
        e(f"    s_and_b32 s{sTa}, s2, 7")
        e(f"    s_lshl_b32 s{sTa}, s{sTa}, 5")
        e(f"    v_and_b32 v{vGr}, 31, v{vL}")
        e(f"    v_add_u32 v{vGr}, s{sTa}, v{vGr}")
        e(f"    s_add_u32 s{sTa}, s{sTa}, s{sH}")
        e(f"    v_mov_b32 v{vGw}, s{sTa}")
        e(f"    v_mov_b32 v{vGl}, {LV}")
        e(f"    v_mov_b32 v{vGd}, 16")
        e(f"    ds_write_b32 v{vGl}, v{vGd}")
    e(f"    s_waitcnt vmcnt(0)")
    ts(2)
    L.extend(sort_code())
    e(f"    v_readlane_b32 s{sTc}, v{vS}, s{sTa}")
    e(f"    v_readlane_b32 s{sTe}, v{vS}, s{sTb}")
    L.extend(q_offsets(sB1, sB2))
    e(f"    s_cmp_gt_i32 s{sTc}, 0")
    e(f"    s_cselect_b32 s{sC}, {CSC:#x}, 0")
    e(f"    s_cmp_gt_i32 s{sTe}, 0")
    e(f"    s_cselect_b32 s{sC2}, {CSC:#x}, 0")
    e(f"    s_mov_b32 s{sSlot}, 0")
    e(f"    s_mov_b32 s{sEp}, 0")
    e(f"    s_mov_b32 s{sItem}, 0")
    e(f"    s_mov_b32 s{sTe}, {QB}")
    if btw:
        e(f"    s_cmp_lg_u32 s{sW}, 3")
        e("    s_cbranch_scc1 L_nobtw")
        e(f"    s_lshl_b32 s{sTa}, s{sB1}, 9")
        e(f"    s_lshl_b32 s{sTb}, s{sB2}, 9")
        e(f"    v_mov_b32 v{vT1}, s{sTa}")
        e(f"    v_mov_b32 v{vT2}, s{sTb}")
        e(f"    v_cmp_eq_u32 vcc, 0, v{vHH}")
        e(f"    v_and_b32 v{vT0}, 3, v{vL}")
        e(f"    v_lshlrev_b32 v{vT0}, 7, v{vT0}")
        e(f"    v_cndmask_b32 v{vT1}, v{vT2}, v{vT1}, vcc")
        e(f"    v_add_u32 v{vT1}, v{vT1}, v{vT0}")
        e(f"    global_load_dword v0, v{vT1}, s[{sBT}:{sBT+1}]")
        e("L_nobtw:")
    if cpre:
        if cpre > 1:
            e(f"    s_cmp_ge_u32 s{sH}, {cpre-1}")
            e("    s_cbranch_scc1 L_nopc")
        e(f"    s_getpc_b64 s[{sM0}:{sM0+1}]")
        e("L_pc:")
        e(f"    s_add_u32 s{sM0}, s{sM0}, L_ld_next-L_pc")
        e(f"    s_addc_u32 s{sM0+1}, s{sM0+1}, -1")
        e(f"    s_lshl_b32 s{sTa}, s{sW}, 13")
        e(f"    v_lshl_add_u32 v{vT1}, v{vL}, 7, s{sTa}")
        e(f"    v_min_u32 v{vT1}, L_done-L_ld_next, v{vT1}")
        e(f"    global_load_dword v25, v{vT1}, s[{sM0}:{sM0+1}]")
        e("L_nopc:")
    ts(3)
    e("; ---- start of an item")
    e("L_item:")
    L.extend(item_params(sKey1))
    e(f"    s_lshl_b32 s{sTb}, s{sT}, 5")
    e(f"    s_sub_u32 s{sNv}, s{sE}, s{sTb}")
    e(f"    s_add_u32 s{sNv}, s{sNv}, 32")
    for i in range(16):
        e(f"    v_mov_b32 v{vO+i}, 0")
    e(f"    v_mov_b32 v{vM}, {NEG:#x}")
    e(f"    v_mov_b32 v{vLs}, 0")
    e(f"    s_mov_b32 s{sGi}, 0")
    e(f"    s_sub_u32 s{sLast}, s{sG}, 1")
    if late1 is not None:
        e(f"    s_sub_i32 s{sLg}, s{sLast}, {max(lateg, 0)}")
        e(f"    s_max_i32 s{sLg}, s{sLg}, 0")
        e(f"    s_cmp_eq_u32 s{sItem}, 0")
        e(f"    s_cselect_b32 s{sLg}, -1, s{sLg}")
    e("    s_waitcnt lgkmcnt(0)")

    e("    .p2align 6")
    e("L_loop:")
    if cfb:
        e(f"    s_cmp_eq_u32 s{sW}, 0")
        e("    s_cbranch_scc1 L_rank")
        e("L_norank:")
    e(f"    s_cmp_{'ge' if sfirst else 'lt'}_u32 s{sGi}, s{sRe}")
    e(f"    s_addc_u32 s{sNt}, s{sBa}, 0")
    e(f"    s_lshl_b32 s{sNu}, s{sNt}, 1")
    if skip:
        e(f"    s_cmp_eq_u32 s{sGi}, s{sLast}")
        e(f"    s_cselect_b32 s{sTa}, s{sNv}, 32")
        e(f"    s_cmp_le_u32 s{sTa}, 16")
        e(f"    s_subb_u32 s{sNu}, s{sNu}, 0")
    e(f"    s_add_u32 s{sEp}, s{sEp}, 1")
    e(f"    s_add_u32 s{sT0}, s{sSlot}, s{sRing}")
    e(f"    v_add_u32 v{vA[0]}, s{sT0}, v{vKrd}")
    for j in range(1, 8):
        e(f"    v_xor_b32 v{vA[j]}, {j<<5}, v{vA[0]}")
    e(f"    v_mov_b32 v{vMx+1}, s{sEp}")
    e(f"    v_mov_b32 v{vMx}, {NEG:#x}")
    e("    s_barrier")
    if diag:
        e(f"    s_cmp_lg_u32 s{sEp}, 1")
        e("    s_cbranch_scc1 L_nots5")
        ts(5)
        e("L_nots5:")
    if late1 is not None and lateg >= 0:
        e(f"    s_cmp_eq_u32 s{sGi}, s{sLg}")
        e("    s_cbranch_scc1 L_late")
        e("L_nolate:")
    e(f"    s_cmp_lg_u32 s{sTe}, 0")
    e("    s_cbranch_scc1 L_readq")
    e("L_noq:")
    e(f"    s_cmp_ge_u32 s{sW}, s{sNt}")
    e("    s_cbranch_scc1 L_pubmax")
    for j in range(8):
        e(f"    ds_read_b128 v[{vF+4*j}:{vF+4*j+3}], v{vA[j]}")
    for j in range(8):
        e(f"    s_waitcnt lgkmcnt({0 if diag else 7-j})")
        c = "0" if j == 0 else f"v[{vS}:{vS+15}]"
        e(f"    v_mfma_f32_32x32x16_bf16 v[{vS}:{vS+15}], v[{vF+4*j}:{vF+4*j+3}], v[{vQ+4*j}:{vQ+4*j+3}], {c}")
    e(f"    s_add_u32 s{sTa}, s{sW}, 1")
    e(f"    s_cmp_eq_u32 s{sTa}, s{sNt}")
    e(f"    s_cselect_b32 s{sTa}, s{sLast}, -1")
    e("    s_nop 6")
    e(f"    s_cmp_eq_u32 s{sGi}, s{sTa}")
    e("    s_cbranch_scc1 L_mask")
    e("L_nomask:")
    e(f"    v_max3_f32 v{vT0}, v{vS}, v{vS+1}, v{vS+2}")
    e(f"    v_max3_f32 v{vT1}, v{vS+3}, v{vS+4}, v{vS+5}")
    e(f"    v_max3_f32 v{vT2}, v{vS+6}, v{vS+7}, v{vS+8}")
    e(f"    v_max3_f32 v{vT3}, v{vS+9}, v{vS+10}, v{vS+11}")
    e(f"    v_max3_f32 v{vT0}, v{vT0}, v{vS+12}, v{vS+13}")
    e(f"    v_max3_f32 v{vT1}, v{vT1}, v{vS+14}, v{vS+15}")
    e(f"    v_max3_f32 v{vT0}, v{vT0}, v{vT2}, v{vT3}")
    e(f"    v_max_f32 v{vT0}, v{vT0}, v{vT1}")
    e(f"    v_mov_b32 v{vT1}, v{vT0}")
    e("    s_nop 1")
    e(f"    v_permlane32_swap_b32 v{vT0}, v{vT1}")
    e(f"    v_max_f32 v{vMx}, v{vT0}, v{vT1}")
    e("L_pubmax:")
    e(f"    ds_write_b64 v{vMw}, v[{vMx}:{vMx+1}]")
    e(f"    v_add_u32 v{vA[0]}, s{sSlot}, v{vVb}")
    e(f"    v_add_u32 v{vA[1]}, 0x10000, v{vA[0]}")
    e(f"    s_xor_b32 s{sSlot}, s{sSlot}, 16384")
    e("L_spin:")
    e(f"    ds_read_b128 v[{vX}:{vX+3}], v{vMr}")
    e(f"    ds_read_b128 v[{vX+4}:{vX+7}], v{vMr} offset:16")
    e("    s_waitcnt lgkmcnt(0)")
    e(f"    v_min3_u32 v{vT0}, v{vX+1}, v{vX+3}, v{vX+5}")
    e(f"    v_min_u32 v{vT0}, v{vT0}, v{vX+7}")
    e(f"    v_cmp_ne_u32 vcc, s{sEp}, v{vT0}")
    e(f"    v_max3_f32 v{vT0}, v{vX}, v{vX+2}, v{vM}")
    e("    s_and_b64 vcc, exec, vcc")
    e("    s_cbranch_vccnz L_spin")
    e(f"    v_max3_f32 v{vT0}, v{vT0}, v{vX+4}, v{vX+6}")
    e(f"    v_sub_f32 v{vT1}, v{vM}, v{vT0}")
    e(f"    v_mul_f32 v{vT2}, s{sC}, v{vT0}")
    e(f"    v_mul_f32 v{vT1}, s{sC}, v{vT1}")
    e(f"    v_mov_b32 v{vM}, v{vT0}")
    e(f"    v_exp_f32 v{vAl}, v{vT1}")
    e(f"    s_cmp_ge_u32 s{sW}, s{sNt}")
    e("    s_cbranch_scc1 L_notile")
    for i in range(16):
        e(f"    v_fma_f32 v{vS+i}, v{vS+i}, s{sC}, -v{vT2}")
    for i in range(8):
        e(f"    v_exp_f32 v{vS+i}, v{vS+i}")
    for i in range(8, 16):
        e(f"    v_exp_f32 v{vS+i}, v{vS+i}")
        if i % 2 == 1:
            k = i - 9
            e(f"    v_cvt_pk_bf16_f32 v{vP_+k//2}, v{vS+k}, v{vS+k+1}")
    e(f"    ds_write_b128 v{vPw}, v[{vP_}:{vP_+3}]")
    for i in range(4, 8):
        e(f"    v_cvt_pk_bf16_f32 v{vP_+i}, v{vS+2*i}, v{vS+2*i+1}")
    e(f"    ds_write_b128 v{vPw}, v[{vP_+4}:{vP_+7}] offset:1024")
    for i in range(4):
        e(f"    v_pk_add_f32 v[{vS+2*i}:{vS+2*i+1}], v[{vS+2*i}:{vS+2*i+1}], v[{vS+8+2*i}:{vS+8+2*i+1}]")
    for i in range(2):
        e(f"    v_pk_add_f32 v[{vS+2*i}:{vS+2*i+1}], v[{vS+2*i}:{vS+2*i+1}], v[{vS+4+2*i}:{vS+4+2*i+1}]")
    e(f"    v_pk_add_f32 v[{vS}:{vS+1}], v[{vS}:{vS+1}], v[{vS+2}:{vS+3}]")
    e(f"    v_fma_f32 v{vLs}, v{vLs}, v{vAl}, v{vS}")
    e(f"    v_add_f32 v{vLs}, v{vLs}, v{vS+1}")
    e("L_scale:")
    e(f"    v_mov_b32 v{vT0}, v{vLs}")
    e(f"    v_mov_b32 v{vT1}, v{vLs}")
    for i in range(8):
        e(f"    v_pk_mul_f32 v[{vO+2*i}:{vO+2*i+1}], v[{vO+2*i}:{vO+2*i+1}], v[{vAl}:{vAl+1}] op_sel_hi:[1,0]")
    e(f"    v_permlane32_swap_b32 v{vT0}, v{vT1}")
    e(f"    v_add_f32 v{vT0}, v{vT0}, v{vT1}")
    e(f"    ds_write_b32 v{vLw}, v{vT0}")
    if late1 is not None and lateg == -1:
        e("; ---- the first item's output is stored in the last group (keeps writes out of the read stream)")
        e(f"    s_cmp_lg_u32 s{sGi}, s{sLg}")
        e("    s_cbranch_scc1 L_nolate")
        e(f"    s_add_u32 s{sTa}, s{sQoA}, 4096")
        e(f"    buffer_store_dwordx4 v[{vR}:{vR+3}], v{vOo}, s[{OS}:{OS+3}], s{sQoA} offen {late1}")
        e(f"    buffer_store_dwordx4 v[{vR+4}:{vR+7}], v{vOo}, s[{OS}:{OS+3}], s{sTa} offen {late1}")
        e("L_nolate:")
    e("    s_waitcnt lgkmcnt(0)")
    e("    s_barrier")
    if cfb:
        e(f"    s_cmp_lg_u32 s{sW}, 0")
        e("    s_cbranch_scc1 L_noflag")
        e(f"    global_store_byte v{vGw}, v{vMx+1}, s[{sDBG}:{sDBG+1}]")
        e(f"    global_load_ubyte v{vGd}, v{vGr}, s[{sDBG}:{sDBG+1}] sc1")
        e("L_noflag:")
    units = [(t, m) for t in range(4) for m in range(2)]

    def p_read(u):
        t, m = units[u]
        p = vPa + 4 * u
        return f"    ds_read_b128 v[{p}:{p+3}], v{vPr} offset:{t*2048+m*1024}"

    def v_reads(u):
        t, m = units[u]
        a = vF + 4 * u
        off = (t & 1) * 32768 + m * 4096
        return [f"    ds_read_b64_tr_b16 v[{a}:{a+1}], v{vA[t>>1]} offset:{off}",
                f"    ds_read_b64_tr_b16 v[{a+2}:{a+3}], v{vA[t>>1]} offset:{off+2048}"]

    def pv_mfma(u):
        return f"    v_mfma_f32_32x32x16_bf16 v[{vO}:{vO+15}], v[{vF+4*u}:{vF+4*u+3}], v[{vPa+4*u}:{vPa+4*u+3}], v[{vO}:{vO+15}]"

    e(f"    ds_read_b128 v[{vX}:{vX+3}], v{vLr}")
    if vsplit:
        e(f"    s_cmp_eq_u32 s{sGi}, s{sLast}")
        e(f"    s_cselect_b32 s{sTa}, s{sItem}, 0")
        e(f"    s_cmp_lg_u32 s{sTa}, 0")
        e("    s_cbranch_scc1 L_pvlast")
    for u in range(4):
        e(p_read(u))
        L.extend(v_reads(u))
    for u in range(8):
        e(f"    s_waitcnt lgkmcnt({min(9, 3*(7-u))})")
        e(pv_mfma(u))
        if u + 4 < 8:
            e(p_read(u + 4))
            L.extend(v_reads(u + 4))
        if (skip or u % 2 == 1) and u < 7:
            e(f"    s_cmp_eq_u32 s{sNu}, {u+1}")
            e("    s_cbranch_scc1 L_pvdone")
    e("L_pvdone:")
    e(f"    s_cmp_eq_u32 s{sGi}, s{sLast}")
    e("    s_cbranch_scc1 L_final")
    e(f"    s_add_u32 s{sGi}, s{sGi}, 1")
    e("    s_waitcnt lgkmcnt(0)")
    e("    s_branch L_loop")

    if vsplit:
        e("L_pvlast:")
        L.extend(v_reads(0) + v_reads(1))
        for u in range(8):
            e(p_read(u))
        for t in range(4):
            if t:
                e("    s_barrier")
                L.extend(v_reads(2 * t) + v_reads(2 * t + 1))
                e("    s_waitcnt lgkmcnt(2)")
            else:
                e("    s_waitcnt lgkmcnt(7)")
            e(pv_mfma(2 * t))
            if skip:
                e(f"    s_cmp_eq_u32 s{sNu}, {2*t+1}")
                e("    s_cbranch_scc1 L_final")
            e(f"    s_waitcnt lgkmcnt({6 if t == 0 else 0})")
            e(pv_mfma(2 * t + 1))
            if t < 3:
                e(f"    s_cmp_eq_u32 s{sNt}, {t+1}")
                e("    s_cbranch_scc1 L_final")
        e("    s_nop 0")
        e("    s_branch L_final")

    if late1 is not None and lateg >= 0:
        e("L_late:")
        e(f"    s_add_u32 s{sTa}, s{sQoA}, 4096")
        e(f"    buffer_store_dwordx4 v[{vR}:{vR+3}], v{vOo}, s[{OS}:{OS+3}], s{sQoA} offen {late1}")
        e(f"    buffer_store_dwordx4 v[{vR+4}:{vR+7}], v{vOo}, s[{OS}:{OS+3}], s{sTa} offen {late1}")
        e("    s_branch L_nolate")
    if cfb:
        e("L_rank:")
        e(f"    s_cmp_eq_u32 s{sEp}, 0")
        e("    s_cbranch_scc1 L_norank")
        e("    s_waitcnt vmcnt(0)")
        e(f"    v_cmp_le_u32 vcc, s{sEp}, v{vGd}")
        e(f"    s_bcnt1_i32_b32 s{sTa}, vcc_lo")
        e(f"    v_mov_b32 v{vT0}, s{sTa}")
        e(f"    ds_write_b32 v{vGl}, v{vT0}")
        e("    s_waitcnt lgkmcnt(0)")
        e("    s_branch L_norank")
    e("L_notile:")
    e(f"    v_mul_f32 v{vLs}, v{vLs}, v{vAl}")
    e("    s_branch L_scale")

    e("L_readq:")
    e(f"    v_add_u32 v{vX}, s{sTe}, v{vKrd}")
    for j in range(1, 8):
        e(f"    v_xor_b32 v{vX+j}, {j<<5}, v{vX}")
    for j in range(8):
        e(f"    ds_read_b128 v[{vQ+4*j}:{vQ+4*j+3}], v{vX+j}")
    e(f"    s_mov_b32 s{sTe}, 0")
    e("    s_waitcnt lgkmcnt(0)")
    e("    s_branch L_noq")

    e("; ---- last tile of an item: drop keys past the context length")
    e("L_mask:")
    e(f"    v_sub_u32 v{vT0}, s{sNv}, v{vHH}")
    e(f"    v_mov_b32 v{vT1}, {NEG:#x}")
    for v in range(16):
        t = 16 * (v >> 3) + 2 * ((v >> 2) & 1) + 4 * (v & 3)
        e(f"    v_cmp_lt_i32 vcc, {t}, v{vT0}")
        e("    s_nop 1")
        e(f"    v_cndmask_b32 v{vS+v}, v{vT1}, v{vS+v}, vcc")
    e("    s_branch L_nomask")

    e("; ---- finish an item: normalise, pack, restage row-major through LDS, store")
    e("L_final:")
    if diag:
        e(f"    s_cmp_eq_u32 s{sItem}, 0")
        e("    s_cbranch_scc1 L_nots6")
        ts(6)
        e("L_nots6:")
    e(f"    v_add_f32 v{vT0}, v{vX}, v{vX+1}")
    e(f"    v_add_f32 v{vT1}, v{vX+2}, v{vX+3}")
    e(f"    v_add_f32 v{vT0}, v{vT0}, v{vT1}")
    e(f"    v_rcp_f32 v{vAl}, v{vT0}")
    e(f"    s_xor_b32 s{sTa}, s{sSlot}, 16384")
    e(f"    s_add_u32 s{sTa}, s{sTa}, s{sRing}")
    e(f"    v_add_u32 v{vA[2]}, s{sTa}, v{vTw}")
    e(f"    v_xor_b32 v{vA[3]}, 32, v{vA[2]}")
    e(f"    v_add_u32 v{vA[4]}, s{sTa}, v{vTr}")
    e(f"    s_add_u32 s{sTa}, s{sQo1}, 4096")
    for i in range(8):
        e(f"    v_pk_mul_f32 v[{vO+2*i}:{vO+2*i+1}], v[{vO+2*i}:{vO+2*i+1}], v[{vAl}:{vAl+1}] op_sel_hi:[1,0]")
    for i in range(8):
        e(f"    v_cvt_pk_bf16_f32 v{vP_+i}, v{vO+2*i}, v{vO+2*i+1}")
    e(f"    v_permlane32_swap_b32 v{vP_}, v{vP_+2}")
    e(f"    v_permlane32_swap_b32 v{vP_+1}, v{vP_+3}")
    e(f"    v_permlane32_swap_b32 v{vP_+4}, v{vP_+6}")
    e(f"    v_permlane32_swap_b32 v{vP_+5}, v{vP_+7}")
    e(f"    ds_write_b128 v{vA[2]}, v[{vP_}:{vP_+3}]")
    e(f"    ds_write_b128 v{vA[3]}, v[{vP_+4}:{vP_+7}]")
    if late1 is not None:
        e(f"    s_cmp_lg_u32 s{sItem}, 0")
        e("    s_cbranch_scc1 L_fin2")
        e(f"    ds_read_b128 v[{vR}:{vR+3}], v{vA[4]}")
        e(f"    ds_read_b128 v[{vR+4}:{vR+7}], v{vA[4]} offset:1024")
        e(f"    s_mov_b32 s{sQoA}, s{sQo1}")
        e("    s_branch L_fin1")
        e("L_fin2:")
        if lateg == -2:
            e(f"    s_add_u32 s{sTb}, s{sQoA}, 4096")
            e(f"    buffer_store_dwordx4 v[{vR}:{vR+3}], v{vOo}, s[{OS}:{OS+3}], s{sQoA} offen {late1}")
            e(f"    buffer_store_dwordx4 v[{vR+4}:{vR+7}], v{vOo}, s[{OS}:{OS+3}], s{sTb} offen {late1}")
    e(f"    ds_read_b128 v[{vS}:{vS+3}], v{vA[4]}")
    e(f"    ds_read_b128 v[{vS+4}:{vS+7}], v{vA[4]} offset:1024")
    e(f"    s_waitcnt lgkmcnt({0 if diag else 1})")
    e(f"    buffer_store_dwordx4 v[{vS}:{vS+3}], v{vOo}, s[{OS}:{OS+3}], s{sQo1} offen {opol}")
    e(f"    s_waitcnt lgkmcnt(0)")
    e(f"    buffer_store_dwordx4 v[{vS+4}:{vS+7}], v{vOo}, s[{OS}:{OS+3}], s{sTa} offen {opol}")
    e(f"    s_cmp_lg_u32 s{sItem}, 0")
    e("    s_cbranch_scc1 L_end")
    e("L_fin1:")
    e(f"    s_mov_b32 s{sItem}, 1")
    e(f"    s_mov_b32 s{sC}, s{sC2}")
    e(f"    s_mov_b32 s{sQo1}, s{sQo2}")
    e(f"    s_mov_b32 s{sKey1}, s{sKey2}")
    e(f"    s_mov_b32 s{sTe}, {QB+8192}")
    e("    s_branch L_item")
    e("L_end:")
    if diag:
        ts(4)
        e("    s_waitcnt vmcnt(0)")
        ts(7)
        diag_store("c")
    e("L_done:")
    e("    s_endpgm")
    e('.section .rodata,"a"')
    e(".p2align 6")
    e(f".amdhsa_kernel {NAME}_kernel")
    e(f"  .amdhsa_next_free_vgpr {NV}")
    e("  .amdhsa_next_free_sgpr 102")
    e(f"  .amdhsa_accum_offset {NV}")
    e("  .amdhsa_group_segment_fixed_size 0")
    e("  .amdhsa_kernarg_size 64")
    e("  .amdhsa_user_sgpr_count 2")
    e("  .amdhsa_user_sgpr_kernarg_segment_ptr 1")
    e("  .amdhsa_system_sgpr_workgroup_id_x 1")
    e("  .amdhsa_float_denorm_mode_32 3")
    e(".end_amdhsa_kernel")
    return "\n".join(L) + "\n"


if __name__ == "__main__":
    ap = argparse.ArgumentParser()
    ap.add_argument("-o", default="/dev/stdout")
    ap.add_argument("--W", type=float, default=21)
    ap.add_argument("--Wtail", type=int, default=32)
    ap.add_argument("--tailg", type=int, default=0)
    ap.add_argument("--pol", default="nt")
    ap.add_argument("--opol", default="")
    ap.add_argument("--prio", type=int, default=3)
    ap.add_argument("--cpre", type=int, default=0)
    ap.add_argument("--enc", default=None)
    ap.add_argument("--nospec", action="store_true")
    ap.add_argument("--vsplit", action="store_true")
    ap.add_argument("--noskip", action="store_true")
    ap.add_argument("--perm", default=None)
    ap.add_argument("--late1", default=None)
    ap.add_argument("--fb", default=None)
    ap.add_argument("--th", default="4,11,21,28")
    ap.add_argument("--soff", default=None)
    ap.add_argument("--fb6", action="store_true")
    ap.add_argument("--cfb", action="store_true")
    ap.add_argument("--x16", action="store_true")
    ap.add_argument("--sfirst", action="store_true")
    ap.add_argument("--btw", action="store_true")
    ap.add_argument("--fbl", default=None)
    ap.add_argument("--lateg", type=int, default=0)
    ap.add_argument("--diag", action="store_true")
    a = ap.parse_args()
    open(a.o, "w").write(gen(W=a.W, pol=a.pol, diag=a.diag, opol=a.opol, Wtail=a.Wtail, tailg=a.tailg,
                             prio=a.prio, cpre=a.cpre, enc=None if a.enc is None else a.enc.split(","),
                             spec=not a.nospec, vsplit=a.vsplit, skip=not a.noskip, late1=a.late1, lateg=a.lateg, fb6=a.fb6, cfb=a.cfb, x16=a.x16, sfirst=a.sfirst, btw=a.btw, fbl=None if a.fbl is None else [float(x) for x in a.fbl.split(',')],
                             fb=None if a.fb is None else [float(x) for x in a.fb.split(',')],
                             th=[int(x) for x in a.th.split(',')],
                             soff=None if a.soff is None else [int(x) for x in a.soff.split(',')],
                             perm=None if a.perm is None else [int(x) for x in a.perm.split(',')]))
```
